```python
import torch

def _softmax(x, axis=-1):
    return torch.softmax(x, dim=axis)
def _gelu(x):
    return torch.nn.functional.gelu(x, approximate="tanh")
def _silu(x):
    return torch.nn.functional.silu(x)
def _sigmoid(x):
    return torch.sigmoid(x)
def _layernorm(x, axis=-1, eps=1e-5):
    m = x.mean(dim=axis, keepdim=True)
    v = x.var(dim=axis, keepdim=True, unbiased=False)
    return (x - m) / torch.sqrt(v + eps)
def _scatter_add(tgt, idx, src, axis=0):
    return tgt.clone().index_add_(axis, idx, src)
def _segment_sum(src, seg, n):
    out = torch.zeros((n,) + src.shape[1:], dtype=src.dtype)
    return out.index_add_(0, seg, src)
def _pad(x, pw):
    flat = tuple(v for pair in reversed(pw) for v in pair)
    return torch.nn.functional.pad(x, flat)

kernel_name = 'gated_mix__spectral_fnet__swiglu_ffn__prompt'

def setup_inputs():

    _w = (lambda a: (lambda t: t.to(torch.bfloat16) if t.is_floating_point() else t)(torch.as_tensor(a)))
    def _A_setup():
        B, S, D = 1, 2048, 576
        ns = torch.arange(S)[:, None] * torch.arange(S)[None, :]
        nd = torch.arange(D)[:, None] * torch.arange(D)[None, :]
        Ws_re = torch.cos(-2.0 * torch.pi * ns / S).to(float)
        Ws_im = torch.sin(-2.0 * torch.pi * ns / S).to(float)
        Wd_re = torch.cos(-2.0 * torch.pi * nd / D).to(float)
        Wd_im = torch.sin(-2.0 * torch.pi * nd / D).to(float)
        return {
            "x": _w((lambda *s: torch.randn(*s, dtype=torch.bfloat16) * 0.05)(B, S, D)),
            "dft_seq_re": _w(Ws_re),
            "dft_seq_im": _w(Ws_im),
            "dft_hid_re": _w(Wd_re),
            "dft_hid_im": _w(Wd_im),
        }
    _A_in = _A_setup()

    def _B_setup():
        B, S, D, F = 1, 2048, 576, 4608
        return {
            "x": _w((lambda *s: torch.randn(*s, dtype=torch.bfloat16) * 0.05)(B, S, D)),
            "w_gate": _w((lambda *s: torch.randn(*s, dtype=torch.bfloat16) * 0.8)(D, F)),
            "w_up": _w((lambda *s: torch.randn(*s, dtype=torch.bfloat16) * 0.8)(D, F)),
            "w_down": _w((lambda *s: torch.randn(*s, dtype=torch.bfloat16) * 0.8)(F, D)),
        }
    _B_in = _B_setup()

    return {
        "A_x": _A_in["x"],
        "A_dft_seq_re": _A_in["dft_seq_re"],
        "A_dft_seq_im": _A_in["dft_seq_im"],
        "A_dft_hid_re": _A_in["dft_hid_re"],
        "A_dft_hid_im": _A_in["dft_hid_im"],
        "B_x": _B_in["x"],
        "B_w_gate": _B_in["w_gate"],
        "B_w_up": _B_in["w_up"],
        "B_w_down": _B_in["w_down"],
        "gate_w": _w((lambda *s: torch.randn(*s, dtype=torch.bfloat16) * 0.05)(576) * 16.0),
    }

def reference(A_x, A_dft_seq_re, A_dft_seq_im, A_dft_hid_re, A_dft_hid_im, B_x, B_w_gate, B_w_up, B_w_down, gate_w):
    def _A_ref(x, dft_seq_re, dft_seq_im, dft_hid_re, dft_hid_im):
        a = torch.einsum("bsd,ed->bse", x, dft_hid_re)
        b = torch.einsum("bsd,ed->bse", x, dft_hid_im)
        y = torch.einsum("ts,bse->bte", dft_seq_re, a) - torch.einsum("ts,bse->bte", dft_seq_im, b)
        return y

    def _B_ref(x, w_gate, w_up, w_down):
        g = _silu(x @ w_gate)
        u = x @ w_up
        return (g * u) @ w_down

    x = A_x
    g = _sigmoid((x * gate_w).sum(-1, keepdims=True))
    a = _A_ref(x, A_dft_seq_re, A_dft_seq_im, A_dft_hid_re, A_dft_hid_im)
    b = _B_ref(x, B_w_gate, B_w_up, B_w_down)
    return g * a + (1 - g) * b
```

```python
class Emit:
    def __init__(self):
        self.l = []
        self.vm = []
        self.lg = []
    def __call__(self, s=""):
        for x in s.split("\n"):
            x = x.strip()
            if x: self.l.append(x if x.endswith(":") else "  " + x)
    def text(self): return "\n".join(self.l) + "\n"
    def vmem(self, s, tag=None):
        self(s); self.vm.append(tag)
    def lds(self, s, tag=None):
        self(s); self.lg.append(tag)
    @staticmethod
    def _after(lst, tags):
        last = -1
        for i, t in enumerate(lst):
            if t in tags: last = i
        return None if last < 0 else len(lst) - 1 - last
    def vm_count(self, tags):
        if not isinstance(tags, (set, list)): tags = [tags]
        return self._after(self.vm, set(tags))
    def lg_count(self, tags):
        if not isinstance(tags, (set, list)): tags = [tags]
        return self._after(self.lg, set(tags))
    def wait(self, vm=None, lg=None, vmn=None, lgn=None):
        parts = []
        if vm is not None:
            n = self.vm_count(vm)
            assert n is not None, vm
            parts.append(f"vmcnt({min(n, 63)})")
        if vmn is not None: parts.append(f"vmcnt({vmn})")
        if lg is not None:
            n = self.lg_count(lg)
            assert n is not None, lg
            parts.append(f"lgkmcnt({min(n, 15)})")
        if lgn is not None: parts.append(f"lgkmcnt({lgn})")
        self("s_waitcnt " + " ".join(parts))

def srd(e, sreg, slot, nbytes, tmp=None, off=0):
    e(f"s_and_b32 s{sreg+1}, s{sreg+1}, 0xffff")
    e(f"s_mov_b32 s{sreg+2}, {nbytes}")
    e(f"s_mov_b32 s{sreg+3}, 0x20000")

def kbegin(name):
    return f".globl {name}\n.p2align 8\n.type {name},@function\n{name}:\n"
def kdesc(name, arch_vgpr, agpr=0, sgpr=96):
    acc = (arch_vgpr + 3) // 4 * 4
    return f""".section .rodata,"a"
.p2align 6
.amdhsa_kernel {name}
  .amdhsa_next_free_vgpr {acc + agpr if agpr else arch_vgpr}
  .amdhsa_next_free_sgpr {sgpr}
  .amdhsa_accum_offset {acc}
  .amdhsa_group_segment_fixed_size 0
  .amdhsa_kernarg_size 104
  .amdhsa_user_sgpr_count 2
  .amdhsa_user_sgpr_kernarg_segment_ptr 1
  .amdhsa_system_sgpr_workgroup_id_x 1
  .amdhsa_float_denorm_mode_32 3
.end_amdhsa_kernel
.text
"""

KA_AX, KA_CS, KA_SS, KA_CD, KA_SD, KA_BX, KA_WG, KA_WU, KA_WD, KA_GW, KA_OUT, KA_DBG, KA_WS = [8 * i for i in range(13)]

WS_HX   = 0
WS_PART = 32 << 20
WS_Z    = 64 << 20
WS_G    = 72 << 20
WS_FLAG = 76 << 20
WS_BYTES = 256 << 20
```

```python
from common import *

ROWW = 9216
ROWD = 1152
SLOT = 36864
NUNIT = 27
LDS_BYTES = 4 * SLOT

S_WG, S_WU, S_WD, S_X, S_WS, S_DBG = 8, 12, 16, 20, 24, 28
sW, sI, sJ, sODD = 32, 33, 34, 35
sGA, sGL, sSA_, sSL_ = 36, 37, 38, 39
sDAo, sDLo, sDAp, sDLp = 40, 41, 42, 43
sUA, sUB, sUL = 44, 45, 46
sM0A, sM0L = 47, 48
sT0, sT1, sT2 = 49, 50, 51
sHXo, sHXp, sPART = 52, 53, 54
sFoffP, sFbitP = 55, 56
sOBp = 57
vL16 = 1
vWK = (2, 3)
vPGp = (4, 5); vPGs = 6; vPDp = (7, 8); vPDs = 9
vPOLL = 10; vZERO = 11; vFOFF = 12; vFBIT = 13; vOB = 12
vOB0 = 109
vTMP = 16
vH = 24
vG = (96, 128); vU = 160; vUS = 192
DACC = [128, 144, 160, 176, 208, 224, 96, 112, 192]
vDGp, vDGs, vDDp, vDDs = 240, 244, 248, 252
aFR = 144

def unit_desc(u):
    if u < 16:
        p, r = divmod(u, 4)
        return dict(kind="GUp", mat="G" if r < 2 else "U", p=p, kh=r & 1)
    if u == 16: return dict(kind="GUs", mat="G")
    if u == 17: return dict(kind="GUs", mat="U")
    if u < 22: return dict(kind="Dp", ps=1, q=u - 18)
    if u == 22: return dict(kind="S")
    return dict(kind="Dp", ps=2, q=u - 23)

def dma_ops(u):
    d = unit_desc(u); sb = (u % 4) * SLOT
    ops = []
    k = d["kind"]
    if k == "GUp":
        srd_ = S_WG if d["mat"] == "G" else S_WU
        c = 288 * d["kh"] * ROWW + 128 * d["p"]
        A, B, L = (sGA, c), (sGA, c + 128 * ROWW), (sGL, c)
        vo = vDGp
    elif k == "GUs":
        srd_ = S_WG if d["mat"] == "G" else S_WU
        A, B, L = (sSA_, 0), (sSA_, 256 * ROWW), (sSL_, 0)
        vo = vDGs
    elif k == "Dp":
        srd_ = S_WD
        a, l = (sDAo, sDLo) if d["ps"] == 1 else (sDAp, sDLp)
        c = 128 * d["q"]
        A, B, L = (a, c), (a, c + 128 * ROWD), (l, c)
        vo = vDDp
    else:
        srd_ = S_WD
        A, B, L = (sUA, 0), (sUB, 0), (sUL, 0)
        vo = vDDs
    groups = []
    for gi, (base, c) in enumerate((A, B, L)):
        st = sT0 + gi
        pre = [f"s_add_u32 s{st}, s{base}, {c}"]
        if gi == 0: pre.append(f"s_add_u32 m0, s{sM0A}, {sb}")
        elif gi == 1: pre.append(f"s_add_u32 m0, s{sM0A}, {sb + 16384}")
        else: pre.append(f"s_add_u32 m0, s{sM0L}, {sb}")
        loads = []
        for q in range(4 if gi < 2 else 1):
            off = f" offset:{1024 * q}" if q else ""
            loads.append(f"buffer_load_dwordx4 v{vo + q}, s[{srd_}:{srd_+3}], s{st} offen{off} lds")
        groups.append((pre, loads))
    return groups

def frag_reads(u, n):
    d = unit_desc(u); k = d["kind"]
    if k == "GUp":
        ks, hf = n >> 1, n & 1
        return vWK[hf], [2048 * ks, 2048 * ks + 512]
    if k == "GUs":
        return vWK[0], [1024 * n, 1024 * n + 256]
    if k == "Dp":
        ks, hf = n >> 1, n & 1
        return vWK[hf], [2048 * ks, 2048 * ks + 1024]
    ks = n % 18; par = n // 18
    R = (256 * par + 16 * ks) if ks < 16 else (512 + 32 * par + 16 * (ks - 16))
    return vWK[0], [64 * R, 64 * R + 512]

def unit_patterns(u):
    k = unit_desc(u)["kind"]
    if k == "GUp": return vPGp
    if k == "GUs": return (vPGs,)
    if k == "Dp": return vPDp
    return (vPDs,)

def vr(b, n=4): return f"v[{b}:{b+n-1}]"
def ar(b, n=4): return f"a[{b}:{b+n-1}]"

def mfma(u, n):
    d = unit_desc(u); k = d["kind"]
    gn = 36 * u + n
    A = ar(aFR + 4 * (gn % 8))
    if k == "GUp":
        ks, hf = n >> 1, n & 1
        kk = 18 * d["kh"] + ks
        acc = (vG[d["p"] & 1] if d["mat"] == "G" else vU) + 16 * hf
        B = ar(4 * kk); first = kk == 0
    elif k == "GUs":
        acc = vG[0] if d["mat"] == "G" else vUS
        B = ar(4 * n); first = n == 0
    elif k == "Dp":
        ks, hf = n >> 1, n & 1
        acc = DACC[2 * d["q"] + hf]
        if d["ps"] == 1: B = vr(vH + 4 * ks); first = ks == 0
        else: B = ar(4 * ks); first = False
    else:
        acc = DACC[8]
        if n < 18: B = vr(vH + 4 * n)
        else: B = ar(4 * (n - 18))
        first = n == 0
    if "m16" in ABL:
        o = []
        for z in range(2):
            a4 = acc + 8 * (n & 1) % 16 + 4 * z
            o.append(f"v_mfma_f32_16x16x32_bf16 {vr(a4,4)}, {A}, {B}, {'0' if first else vr(a4,4)}")
        return "\n".join(o)
    C = "0" if first else vr(acc, 16)
    return f"v_mfma_f32_32x32x16_bf16 {vr(acc,16)}, {A}, {B}, {C}"

NLOG2E = "0xbfb8aa3b"

def silu_ops(g0, n):
    ops = []
    for e in range(0, n, 2):
        ta = vTMP + (e % 8); tb = ta + 1
        a, b = g0 + e, g0 + e + 1
        ops += [(f"v_mul_f32 v{ta}, {NLOG2E}, v{a}", 1), (f"v_mul_f32 v{tb}, {NLOG2E}, v{b}", 1),
                (f"v_exp_f32 v{ta}, v{ta}", 2), (f"v_exp_f32 v{tb}, v{tb}", 2),
                (f"v_add_f32 v{ta}, 1.0, v{ta}", 1), (f"v_add_f32 v{tb}, 1.0, v{tb}", 1),
                (f"v_rcp_f32 v{ta}, v{ta}", 2), (f"v_rcp_f32 v{tb}, v{tb}", 2),
                (f"v_mul_f32 v{a}, v{a}, v{ta}", 1), (f"v_mul_f32 v{b}, v{b}, v{tb}", 1)]
    return ops

def h_ops(g0, u0, tile):
    ops = []
    H = vH + 8 * tile
    for q in range(8):
        a, b = g0 + 2 * q, g0 + 2 * q + 1
        ops += [(f"v_mul_f32 v{a}, v{a}, v{u0 + 2*q}", 1), (f"v_mul_f32 v{b}, v{b}, v{u0 + 2*q + 1}", 1),
                (f"v_cvt_pk_bf16_f32 v{H + q}, v{a}, v{b}", 1)]
        if q == 3 or q == 7:
            half = q >> 2
            off = tile * 2048 + half * 1024
            ops.append((f"s_add_u32 s{60}, s{sHXo}, {off & ~4095}", 1))
            ops.append((f"buffer_store_dwordx4 {vr(H + 4*half)}, v{vL16}, s[{S_WS}:{S_WS+3}], s60 offen offset:{off & 4095} sc1", 1, ("hst", tile)))
    return ops

def epi_ops(tile):
    ops = []
    T = DACC[tile]
    for q in range(8):
        ops.append((f"v_cvt_pk_bf16_f32 v{T + q}, v{T + 2*q}, v{T + 2*q + 1}", 1))
        if q == 3 or q == 7:
            half = q >> 2
            off = tile * 2048 + half * 1024
            ops.append((f"s_add_u32 s{61}, s{sPART}, {off & ~4095}", 1))
            ops.append((f"buffer_store_dwordx4 {vr(T + 4*half)}, v{vL16}, s[{S_WS}:{S_WS+3}], s61 offen offset:{off & 4095} sc1", 1, ("pst", tile)))
    return ops

DIAG = False
ABL = set()
WS_DIAG = 80 << 20
def stamp(e, idx, settled=False):
    if not DIAG: return
    e(f"{'s_memtime' if DIAG == 2 else 's_memrealtime'} s[{76 + 2*(idx % 2)}:{77 + 2*(idx % 2)}]")
    e.pending_stamp = idx
def settle(e):
    if not DIAG: return
    idx = getattr(e, "pending_stamp", None)
    if idx is None: return
    e(f"v_writelane_b32 v15, s{76 + 2*(idx % 2)}, {idx}")
    e.pending_stamp = None

def prologue(e):
    e(f"""
    s_cmp_ge_u32 s2, 256
    s_cbranch_scc1 K1_end
    {("s_memtime s[80:81]" if DIAG == 2 else "s_memrealtime s[80:81]") if DIAG else ""}
    s_load_dwordx2 s[{S_WG}:{S_WG+1}], s[0:1], {KA_WG}
    s_load_dwordx2 s[{S_WU}:{S_WU+1}], s[0:1], {KA_WU}
    s_load_dwordx2 s[{S_WD}:{S_WD+1}], s[0:1], {KA_WD}
    s_load_dwordx2 s[{S_X}:{S_X+1}], s[0:1], {KA_AX}
    s_load_dwordx2 s[{S_WS}:{S_WS+1}], s[0:1], {KA_WS}
    s_load_dwordx2 s[{S_DBG}:{S_DBG+1}], s[0:1], {KA_DBG}
    v_lshrrev_b32 v2, 6, v0
    v_and_b32 v0, 63, v0
    v_readfirstlane_b32 s{sW}, v2
    v_lshlrev_b32 v{vL16}, 4, v0
    s_and_b32 s60, s2, 1
    s_lshl_b32 s60, s60, 3
    s_lshr_b32 s61, s2, 3
    s_and_b32 s62, s61, 7
    s_add_u32 s{sI}, s60, s62
    s_and_b32 s60, s2, 6
    s_lshl_b32 s60, s60, 1
    s_lshr_b32 s61, s61, 3
    s_add_u32 s{sJ}, s60, s61
    s_and_b32 s{sODD}, s{sJ}, 1
    """)
    e(f"""
    s_mul_i32 s60, s{sJ}, 288            ; F0
    s_lshl_b32 s61, s{sODD}, 5           ; 32*odd
    s_add_u32 s62, s60, s61              ; pairbase (f)
    s_xor_b32 s63, s{sODD}, 1
    s_lshl_b32 s63, s63, 8               ; 256*(1-odd)
    s_add_u32 s63, s60, s63              ; singlebase (f)
    s_xor_b32 s64, s{sJ}, 1
    s_mul_i32 s64, s64, 288              ; F0 partner
    s_xor_b32 s65, s{sODD}, 1
    s_lshl_b32 s66, s65, 5
    s_add_u32 s66, s64, s66
    s_lshl_b32 s67, s{sODD}, 8
    s_add_u32 s67, s64, s67
    s_mul_i32 s68, s{sW}, {32 * ROWW}
    s_lshl_b32 s69, s62, 1
    s_add_u32 s{sGA}, s68, s69
    s_mul_i32 s68, s{sW}, {8 * ROWW}
    s_add_u32 s68, s68, {256 * ROWW}
    s_add_u32 s{sGL}, s68, s69
    s_mul_i32 s68, s{sW}, {64 * ROWW}
    s_lshl_b32 s69, s63, 1
    s_add_u32 s{sSA_}, s68, s69
    s_mul_i32 s68, s{sW}, {16 * ROWW}
    s_add_u32 s68, s68, {512 * ROWW}
    s_add_u32 s{sSL_}, s68, s69
    s_mul_i32 s70, s{sODD}, {320 * 2}
    s_mul_i32 s71, s{sODD}, {288 * 2}
    s_lshl_b32 s72, s65, 9
    s_add_u32 s71, s71, s72
    s_lshl_b32 s68, s{sW}, 5
    s_add_u32 s69, s62, s68
    s_mul_i32 s69, s69, {ROWD}
    s_add_u32 s{sDAo}, s69, s70
    s_add_u32 s69, s66, s68
    s_mul_i32 s69, s69, {ROWD}
    s_add_u32 s{sDAp}, s69, s70
    s_lshl_b32 s68, s{sW}, 3
    s_add_u32 s69, s63, s68
    s_mul_i32 s69, s69, {ROWD}
    s_add_u32 s{sDLo}, s69, s70
    s_add_u32 s69, s67, s68
    s_mul_i32 s69, s69, {ROWD}
    s_add_u32 s{sDLp}, s69, s70
    s_lshl_b32 s68, s{sW}, 6
    s_add_u32 s69, s62, s68
    s_mul_i32 s69, s69, {ROWD}
    s_add_u32 s{sUA}, s69, s71
    s_add_u32 s69, s66, s68
    s_mul_i32 s69, s69, {ROWD}
    s_add_u32 s{sUB}, s69, s71
    s_cmp_lt_u32 s{sW}, 2
    s_cselect_b32 s69, s63, s67
    s_and_b32 s68, s{sW}, 1
    s_lshl_b32 s68, s68, 4
    s_add_u32 s69, s69, s68
    s_mul_i32 s69, s69, {ROWD}
    s_add_u32 s{sUL}, s69, s71
    s_lshl_b32 s{sM0A}, s{sW}, 12
    s_lshl_b32 s{sM0L}, s{sW}, 10
    s_add_u32 s{sM0L}, s{sM0L}, 32768
    s_lshl_b32 s68, s{sI}, 4
    s_add_u32 s68, s68, s{sJ}
    s_mul_i32 s69, s{sW}, 18432
    s_mul_i32 s72, s68, 73728
    s_add_u32 s72, s72, s69
    s_add_u32 s{sHXo}, s72, {WS_HX}
    s_add_u32 s{sPART}, s72, {WS_PART}
    s_xor_b32 s73, s68, 1
    s_mul_i32 s72, s73, 73728
    s_add_u32 s72, s72, s69
    s_add_u32 s{sHXp}, s72, {WS_HX}
    s_and_b32 s{sFoffP}, s73, 63
    s_lshl_b32 s{sFoffP}, s{sFoffP}, 2
    s_lshr_b32 s{sFbitP}, s73, 6
    s_lshl_b32 s74, s73, 7
    s_lshl_b32 s75, s{sW}, 2
    s_add_u32 s74, s74, s75
    s_add_u32 s{sOBp}, s74, {WS_FLAG}
    s_and_b32 s74, s68, 63
    s_lshl_b32 s74, s74, 2
    s_lshr_b32 s75, s68, 6
    s_lshl_b32 s75, 1, s75
    v_mov_b32 v{vFBIT}, s75
    v_mov_b32 v{vFOFF}, s74
    v_mov_b32 v{vZERO}, 0
    v_mov_b32 v16, 0x7ffffff0
    s_lshl_b32 s74, s68, 7
    s_add_u32 s74, s74, {WS_FLAG}
    s_lshl_b32 s75, s{sW}, 2
    s_add_u32 s75, s75, s74
    v_mov_b32 v{vOB0}, s75
    v_mov_b32 v17, s74
    v_cmp_eq_u32 vcc, 0, v0
    s_nop 1
    v_cndmask_b32 v{vOB0}, v16, v{vOB0}, vcc
    s_lshl_b32 s75, s{sW}, 6
    v_add_u32 v18, s75, v0
    v_cmp_eq_u32 vcc, 0, v18
    s_nop 1
    v_cndmask_b32 v{vFOFF}, v16, v{vFOFF}, vcc
    v_cndmask_b32 v23, v16, v17, vcc
    v_mov_b32 v104, 0
    v_mov_b32 v105, 0
    v_mov_b32 v106, 0
    v_mov_b32 v107, 0
    v_mov_b32 v108, v23
    """)
    e(f"""
    v_lshrrev_b32 v14, 5, v0             ; h
    v_bfe_u32 v15, v0, 4, 1              ; fb
    v_bfe_u32 v16, v0, 2, 2              ; r
    v_and_b32 v17, 3, v0                 ; c4
    v_lshlrev_b32 v18, 5, v15
    v_lshl_add_u32 v18, v17, 3, v18      ; 32 fb + 8 c4
    v_lshrrev_b32 v19, 1, v16            ; (r>>1)&1
    v_lshlrev_b32 v20, 6, v19
    v_xor_b32 v21, 64, v20               ; hf=1
    v_lshl_add_u32 v22, v14, 3, v16      ; 8h + r
    v_lshl_add_u32 v23, v14, 2, v16      ; 4h + r
    v_lshlrev_b32 v2, 7, v22
    v_add3_u32 v{vPGp[0]}, v2, v20, v18
    v_add3_u32 v{vPGp[1]}, v2, v21, v18
    v_lshl_add_u32 v{vPGs}, v22, 6, v18
    v_lshlrev_b32 v2, 7, v23
    v_add3_u32 v{vPDp[0]}, v2, v20, v18
    v_add3_u32 v{vPDp[1]}, v2, v21, v18
    v_lshl_add_u32 v{vPDs}, v23, 6, v18
    v_lshrrev_b32 v14, 3, v0             ; r8
    v_bfe_u32 v15, v0, 2, 1              ; cp>>2
    v_bfe_u32 v16, v0, 4, 1              ; (r8>>1)&1
    v_xor_b32 v15, v15, v16
    v_lshlrev_b32 v15, 6, v15
    v_lshl_add_u32 v15, v17, 4, v15      ; colb
    s_mov_b32 s60, {ROWW}
    s_mov_b32 s61, {ROWD}
    v_mul_lo_u32 v16, v14, s60
    v_add_u32 v{vDGp}, v16, v15
    v_mul_lo_u32 v16, v14, s61
    v_add_u32 v{vDDp}, v16, v15
    v_lshrrev_b32 v14, 2, v0             ; r16
    v_lshlrev_b32 v15, 4, v17            ; 16*cp
    v_mul_lo_u32 v16, v14, s60
    v_add_u32 v{vDGs}, v16, v15
    v_mul_lo_u32 v16, v14, s61
    v_add_u32 v{vDDs}, v16, v15
    """)
    for q in range(1, 4):
        e(f"v_add_u32 v{vDGp+q}, {q * (8 * ROWW - 1024)}, v{vDGp}")
        e(f"v_add_u32 v{vDDp+q}, {q * (8 * ROWD - 1024)}, v{vDDp}")
        e(f"v_add_u32 v{vDGs+q}, {q * (16 * ROWW - 1024)}, v{vDGs}")
        e(f"v_add_u32 v{vDDs+q}, {q * (16 * ROWD - 1024)}, v{vDDs}")
    e(f"""
    s_and_b32 s60, s{sI}, 7
    s_lshl_b32 s60, s60, 1
    s_lshr_b32 s61, s{sW}, 1
    s_add_u32 s60, s60, s61              ; a
    s_lshl_b32 s60, s60, 6               ; 64a
    s_and_b32 s61, s{sW}, 1
    s_add_u32 s60, s60, s61              ; 64a + p
    s_lshr_b32 s62, s{sI}, 3             ; upper
    v_lshrrev_b32 v14, 3, v0             ; r8
    v_and_b32 v15, 7, v0                 ; cp
    s_movk_i32 s63, 1152
    """)
    for q in range(4):
        e(f"""
        v_add_u32 v16, {8 * q}, v14          ; m
        v_lshl_add_u32 v17, v16, 1, s60      ; t' = 64a + 2m + p
        v_sub_u32 v18, 2048, v17
        v_cmp_eq_u32 vcc, 0, v17
        v_mov_b32 v19, 1024
        s_nop 0
        v_cndmask_b32 v18, v18, v19, vcc
        s_cmp_eq_u32 s62, 0
        s_cselect_b64 vcc, -1, 0
        s_nop 0
        v_cndmask_b32 v17, v18, v17, vcc
        v_mul_lo_u32 v17, v17, s63
        v_bfe_u32 v18, v16, 1, 3             ; swz
        v_xor_b32 v18, v18, v15
        v_lshl_add_u32 v{96+q}, v18, 4, v17
        """)
    e(f"""
    v_and_b32 v14, 31, v0                ; m
    v_lshrrev_b32 v15, 5, v0             ; h
    v_lshrrev_b32 v16, 3, v14
    v_lshlrev_b32 v16, 10, v16
    v_and_b32 v17, 7, v14
    v_lshl_add_u32 v16, v17, 7, v16      ; (m>>3)*1024 + (m&7)*128
    s_mul_i32 s64, s{sW}, {SLOT}
    v_add_u32 v16, s64, v16
    v_bfe_u32 v17, v14, 1, 3             ; swz
    """)
    for q4 in range(4):
        e(f"""
        v_add_u32 v18, {2 * q4}, v15
        v_xor_b32 v18, v18, v17
        v_lshl_add_u32 v{100+q4}, v18, 4, v16
        """)
    e("s_waitcnt lgkmcnt(0)")
    if DIAG: e("v_mov_b32 v15, 0\nv_writelane_b32 v15, s80, 0")
    for s_, nb in ((S_WG, 576 * ROWW), (S_WU, 576 * ROWW), (S_WD, 4608 * ROWD), (S_X, 2048 * ROWD), (S_WS, WS_BYTES), (S_DBG, 256)):
        srd(e, s_, None, nb)
    e.vmem(f"buffer_store_dwordx4 v[104:107], v108, s[{S_WS}:{S_WS+3}], 0 offen sc1", "clr")
    for kc in range(9):
        e(f"s_movk_i32 s60, {128 * kc}")
        for q in range(4):
            e(f"s_add_u32 m0, s64, {kc * 4096 + q * 1024}")
            e("s_nop 0")
            e.vmem(f"buffer_load_dwordx4 v{96+q}, s[{S_X}:{S_X+3}], s60 offen lds", ("x", kc))
    for kc in range(9):
        e.wait(vm=("x", kc))
        for q4 in range(4):
            ks = 4 * kc + q4
            e.lds(f"ds_read_b128 {ar(4 * ks)}, v{100+q4} offset:{kc * 4096}", ("xf", ks))
    e.vmem(f"buffer_atomic_or v{vFBIT}, v{vFOFF}, s[{S_DBG}:{S_DBG+3}], 0 offen", "clrbit")
    e(f"v_mov_b32 v{vOB}, v{vOB0}")
    e("s_waitcnt lgkmcnt(0)")
    stamp(e, 1)
    e("s_barrier")

def emit_dma_unit(e, u):
    for pre, loads in dma_ops(u):
        for s in pre: e(s)
        e("s_nop 0")
        for s in loads: e.vmem(s, ("u", u))

def gen_k1():
    e = Emit()
    e.l.append(kbegin("k1_kernel").rstrip("\n"))
    prologue(e)
    for u in range(4): emit_dma_unit(e, u)
    def set_work(u):
        pats = unit_patterns(u); sb = (u % 4) * SLOT
        for i, p in enumerate(pats):
            if sb: e(f"v_add_u32 v{vWK[i]}, {sb}, v{p}")
            else: e(f"v_mov_b32 v{vWK[i]}, v{p}")
    def reads(u, n):
        gn = 36 * u + n
        va, offs = frag_reads(u, n)
        b = aFR + 4 * (gn % 8)
        for t in range(2):
            if "noread" in ABL and u >= 1: e.lg.append(("f", gn)); e.lg.pop(0) if False else None; continue
            if "halfread" in ABL and u >= 1 and (n & 1): e.lg.append(("f", gn)); continue
            e.lds(f"ds_read_b64_tr_b16 {ar(b + 2*t, 2)}, v{va} offset:{offs[t]}", ("f", gn))
    e.wait(vm=("u", 0)); e("s_barrier")
    if DIAG:
        e("s_waitcnt lgkmcnt(0)"); settle(e); stamp(e, 2)
    set_work(0)
    for n in range(6): reads(0, n)

    queue = []
    def add(ops, gslot):
        for o in ops:
            queue.append((o[0], o[1], o[2] if len(o) > 2 else None, gslot))
    for p in range(4 if "noact" not in ABL else 0):
        u_u0 = 4 * p + 2
        add(silu_ops(vG[p & 1], 32), 36 * u_u0 + 3)
        u_n = 4 * p + 4
        add(h_ops(vG[p & 1], vU, 2 * p), 36 * u_n + 3)
        add(h_ops(vG[p & 1] + 16, vU + 16, 2 * p + 1), 36 * u_n + 3)
    add(silu_ops(vG[0], 16), 36 * 17 + 3)
    add(h_ops(vG[0], vUS, 8), 36 * 18 + 3)
    add(epi_ops(8), 36 * 23 + 3)
    for q in range(3):
        add(epi_ops(2 * q), 36 * (24 + q) + 3)
        add(epi_ops(2 * q + 1), 36 * (24 + q) + 3)
    deadlines = {}
    for p in range(3): deadlines[36 * (4 * p + 6)] = ("hst", 2 * p + 1)
    deadlines[36 * 18 + 32] = ("hst", 8)
    deadlines[36 * 18] = ("hst", 7)

    def drain_until(tag):
        while any(o[2] == tag for o in queue):
            t, c, tg, nb = queue.pop(0)
            if tg: e.vmem(t, tg)
            else: e(t)

    for u in range(NUNIT):
        dm = {}
        if u >= 1 and u + 3 < NUNIT and not ("nodma" in ABL and u + 3 < 18):
            g = dma_ops(u + 3)
            dm[1] = [(s, False) for s in g[0][0]]
            for q, sl in enumerate((4, 7, 10, 13)): dm[sl] = [(g[0][1][q], True)]
            dm[16] = [(s, False) for s in g[1][0]]
            for q, sl in enumerate((19, 22, 25, 28)): dm[sl] = [(g[1][1][q], True)]
            dm[30] = [(s, False) for s in g[2][0]]
            dm[31] = [(g[2][1][0], True)]
        for n in range(36):
            gs = 36 * u + n
            if gs in deadlines: drain_until(deadlines[gs])
            cost = 0
            if n % 3 == 0:
                if n == 33 and u + 1 < NUNIT:
                    tags = [("u", u + 1)]
                    if "nodma" in ABL and 4 <= u + 1 < 18: tags = [("u", 3)]
                    if u == 19: tags.append(("hst", 8))
                    nvm = e.vm_count(tags)
                    e(f"s_waitcnt vmcnt({min(nvm,63)}) lgkmcnt(0)")
                    settle(e)
                    e("s_barrier")
                    stamp(e, 4 + u)
                    set_work(u + 1)
                    if u == 19:
                        e(f"v_mov_b32 v{vFBIT}, 1")
                        e.vmem(f"buffer_store_dword v{vFBIT}, v{vOB}, s[{S_WS}:{S_WS+3}], 0 offen sc1", "flag")
                else:
                    e.wait(lg=[("f", gs), ("f", gs + 1), ("f", gs + 2)])
                cost += 1
            if u == 10 and n == 6:
                e.wait(vm="pollc")
                e(f"v_readfirstlane_b32 s62, v{vPOLL}")
                e("s_nop 3")
                e(f"s_bitcmp1_b32 s62, s{sFbitP}")
                e("s_cbranch_scc0 K1_spinc")
                e.l.append("K1_spinc_done:")
            if u == 21 and n == 6:
                e.wait(vm="poll")
                e(f"v_readfirstlane_b32 s62, v{vPOLL}")
                e("s_nop 3")
                e(f"s_cmp_eq_u32 s62, 1")
                e("s_cbranch_scc0 K1_spin")
                e.l.append("K1_spin_done:")
            e(mfma(u, n))
            if n <= 29: reads(u, n + 6); cost += 2
            elif n >= 33 and u + 1 < NUNIT:
                reads(u + 1, 2 * (n - 33)); reads(u + 1, 2 * (n - 33) + 1); cost += 4
            for s, isv in dm.get(n, []):
                if isv: e.vmem(s, ("u", u + 3))
                else: e(s)
                cost += 1
            if u == 20 and n == 24:
                e.vmem(f"buffer_load_dword v{vPOLL}, v{vZERO}, s[{S_WS}:{S_WS+3}], s{sOBp} offen sc1", "poll"); cost += 1
            if u == 8 and n == 24:
                e.vmem(f"buffer_load_dword v{vPOLL}, v{vZERO}, s[{S_DBG}:{S_DBG+3}], s{sFoffP} offen sc1", "pollc"); cost += 1
            if u == 21 and 6 <= n < 24:
                k = n - 6
                if k % 4 == 0: e(f"s_add_u32 s63, s{sHXp}, {k * 1024}"); cost += 1
                e.vmem(f"buffer_load_dwordx4 {ar(4 * k)}, v{vL16}, s[{S_WS}:{S_WS+3}], s63 offen offset:{(k % 4) * 1024} sc1", "hp"); cost += 1
            if u == 22 and n == 17:
                pass
            if n == 32: continue
            if u == 22 and n == 16:
                e.wait(vm="hp")
            while queue and queue[0][3] <= gs and cost + queue[0][1] <= 5:
                t, c, tg, nb = queue.pop(0)
                if tg: e.vmem(t, tg)
                else: e(t)
                cost += c
    e("s_nop 7"); e("s_nop 7")
    while queue:
        t, c, tg, nb = queue.pop(0)
        if tg: e.vmem(t, tg)
        else: e(t)
    for t in epi_ops(6) + epi_ops(7):
        e(t[0])
    if DIAG:
        e("s_waitcnt lgkmcnt(0)"); settle(e); stamp(e, 40); e("s_waitcnt lgkmcnt(0)"); settle(e)
    e("s_waitcnt vmcnt(0)")
    if DIAG:
        stamp(e, 41); e("s_waitcnt lgkmcnt(0)"); settle(e)
        e(f"s_lshl_b32 s60, s2, 2\ns_add_u32 s60, s60, s{sW}\ns_lshl_b32 s60, s60, 8\ns_add_u32 s60, s60, {WS_DIAG}")
        e("v_lshlrev_b32 v14, 2, v0")
        e(f"buffer_store_dword v15, v14, s[{S_WS}:{S_WS+3}], s60 offen")
        e("s_waitcnt vmcnt(0)")
    e.l.append("K1_end:")
    e("s_endpgm")
    for nm, srd_, so, test in (("K1_spin", S_WS, sOBp, "s_cmp_eq_u32 s62, 1"), ("K1_spinc", S_DBG, sFoffP, f"s_bitcmp1_b32 s62, s{sFbitP}")):
        e.l.append(nm + ":")
        e(f"""
        s_mov_b32 s63, 0
        {nm}_loop:
        s_sleep 4
        buffer_load_dword v{vPOLL}, v{vZERO}, s[{srd_}:{srd_+3}], s{so} offen sc1
        s_waitcnt vmcnt(0)
        v_readfirstlane_b32 s62, v{vPOLL}
        s_nop 3
        {test}
        s_cbranch_scc1 {nm}_done
        s_add_u32 s63, s63, 1
        s_cmp_lt_u32 s63, 0x40000
        s_cbranch_scc1 {nm}_loop
        s_branch {nm}_done
        """)
    return e.text() + kdesc("k1_kernel", 256, 176, 96)

if __name__ == "__main__":
    print(gen_k1())
```

```python
from common import *
S_CS, S_SS, S_WS, S_OUT = 8, 12, 16, 20
sW, sB, sG = 32, 33, 34
NW = 6
LDS_BYTES = 2 * 36864
def vr(b, n=4): return f"v[{b}:{b+n-1}]"

def gen_k2(name="k2_kernel"):
    e = Emit()
    e.l.append(kbegin(name).rstrip("\n"))
    e(f"""
    s_cmp_ge_u32 s2, 192
    s_cbranch_scc1 K2_end
    s_load_dwordx2 s[{S_CS}:{S_CS+1}], s[0:1], {KA_CS}
    s_load_dwordx2 s[{S_SS}:{S_SS+1}], s[0:1], {KA_SS}
    s_load_dwordx2 s[{S_WS}:{S_WS+1}], s[0:1], {KA_WS}
    s_load_dwordx2 s[{S_OUT}:{S_OUT+1}], s[0:1], {KA_OUT}
    v_lshrrev_b32 v2, 6, v0
    v_and_b32 v0, 63, v0
    v_readfirstlane_b32 s{sW}, v2
    ; id -> b = id / 3 (m-block 0..63 : i = b>>2, w1 = b&3), eg = id % 3
    s_mul_hi_u32 s{sB}, s2, {-(-(1 << 32) // 3)}
    s_mul_i32 s40, s{sB}, 3
    s_sub_u32 s{sG}, s2, s40
    s_lshr_b32 s41, s{sB}, 2             ; i
    s_and_b32 s42, s{sB}, 3              ; w1
    s_and_b32 s43, s41, 7
    s_lshl_b32 s43, s43, 1
    s_lshr_b32 s44, s42, 1
    s_add_u32 s43, s43, s44              ; a
    s_lshl_b32 s43, s43, 6
    s_and_b32 s44, s42, 1                ; p
    s_add_u32 s43, s43, s44              ; 64a + p
    s_lshr_b32 s45, s41, 3               ; upper
    s_mul_i32 s46, s{sG}, 6
    s_add_u32 s46, s46, s{sW}
    """)
    def rowcalc(dst, mreg):
        e(f"""
        v_lshl_add_u32 v{dst}, v{mreg}, 1, s43      ; t'
        v_sub_u32 v8, 2048, v{dst}
        v_cmp_eq_u32 vcc, 0, v{dst}
        v_mov_b32 v9, 1024
        s_nop 0
        v_cndmask_b32 v8, v8, v9, vcc
        s_cmp_eq_u32 s45, 0
        s_cselect_b64 vcc, -1, 0
        s_nop 1
        v_cndmask_b32 v{dst}, v8, v{dst}, vcc
        """)
    e("v_lshrrev_b32 v3, 3, v0\nv_and_b32 v4, 7, v0")
    for q in range(4):
        e(f"v_add_u32 v5, {8*q}, v3")
        rowcalc(10 + q, 5)
        e(f"""
        v_lshlrev_b32 v{10+q}, 12, v{10+q}
        v_bfe_u32 v6, v5, 1, 3
        v_xor_b32 v6, v6, v4
        v_lshl_add_u32 v{10+q}, v6, 4, v{10+q}
        """)
    e("v_and_b32 v5, 31, v0")
    rowcalc(14, 5)
    e("""
    v_lshrrev_b32 v6, 5, v0
    v_lshrrev_b32 v7, 3, v5
    v_lshlrev_b32 v7, 10, v7
    v_and_b32 v8, 7, v5
    v_lshl_add_u32 v7, v8, 7, v7
    v_bfe_u32 v8, v5, 1, 3
    """)
    for q4 in range(4):
        e(f"""
        v_add_u32 v9, {2*q4}, v6
        v_xor_b32 v9, v9, v8
        v_lshl_add_u32 v{16+q4}, v9, 4, v7
        """)
    e("v_lshlrev_b32 v1, 4, v0")
    e("s_waitcnt lgkmcnt(0)")
    for s_, nb in ((S_CS, 2048 * 4096), (S_SS, 2048 * 4096), (S_WS, WS_BYTES), (S_OUT, 2048 * 1152)):
        srd(e, s_, None, nb)
    e(f"""
    s_cmp_ge_u32 s46, 9
    s_cselect_b32 s47, 1, 0              ; hh
    s_sub_u32 s48, s46, 10
    s_cmp_eq_u32 s46, 9
    s_cselect_b32 s48, 8, s48
    s_cmp_lt_u32 s46, 9
    s_cselect_b32 s48, s46, s48          ; c
    s_lshl_b32 s49, s41, 4
    s_add_u32 s49, s49, s47              ; i*16 + hh
    s_mul_i32 s49, s49, 73728
    s_mul_i32 s50, s42, 18432
    s_add_u32 s49, s49, s50
    s_lshl_b32 s50, s48, 11
    s_add_u32 s49, s49, s50
    s_add_u32 s49, s49, {WS_PART}
    """)
    vP = 64
    for jp in range(8):
        e.vmem(f"buffer_load_dwordx4 {vr(vP + 8*jp)}, v1, s[{S_WS}:{S_WS+3}], s49 offen", "part")
        e.vmem(f"buffer_load_dwordx4 {vr(vP + 8*jp + 4)}, v1, s[{S_WS}:{S_WS+3}], s49 offen offset:1024", "part")
        if jp < 7: e(f"s_add_u32 s49, s49, {2 * 73728}")
    e(f"v_lshlrev_b32 v15, 2, v14\ns_mov_b32 s51, {WS_G}")
    e.vmem(f"buffer_load_dword v20, v15, s[{S_WS}:{S_WS+3}], s51 offen", "g")
    e(f"s_mul_i32 s52, s{sW}, 3")
    for gi in range(3):
        e(f"""
        s_add_u32 s53, s52, {gi}
        s_cmp_ge_u32 s53, 9
        s_cselect_b32 s54, 9, 0
        s_sub_u32 s54, s53, s54              ; kc
        s_lshl_b32 s55, s54, 7
        s_lshl_b32 s56, s53, 12
        s_cmp_ge_u32 s53, 9
        s_cbranch_scc1 K2_ss{gi}
        """)
        for q in range(4):
            e(f"s_add_u32 m0, s56, {1024*q}\ns_nop 0")
            e(f"buffer_load_dwordx4 v{10+q}, s[{S_CS}:{S_CS+3}], s55 offen lds")
        e(f"s_branch K2_dn{gi}\nK2_ss{gi}:")
        for q in range(4):
            e(f"s_add_u32 m0, s56, {1024*q}\ns_nop 0")
            e(f"buffer_load_dwordx4 v{10+q}, s[{S_SS}:{S_SS+3}], s55 offen lds")
        e(f"K2_dn{gi}:")
        for q in range(4): e.vm.append("m")
    e(f"""
    s_lshl_b32 s57, s44, 1
    s_mul_i32 s57, s57, 18
    s_add_u32 s57, s57, s46
    s_mul_i32 s57, s57, {33*1024}
    s_add_u32 s57, s57, {WS_Z}
    """)
    vZ = 128
    acc = 32
    def zload(cs, ks, slot):
        off = cs * 18 * 33 * 1024 + ks * 1024
        e(f"s_add_u32 s58, s57, {off & ~4095}")
        e.vmem(f"buffer_load_dwordx4 {vr(vZ + 4*slot)}, v1, s[{S_WS}:{S_WS+3}], s58 offen offset:{off & 4095}", ("z", cs, ks))
    seq = [(cs, ks) for cs in range(2) for ks in range(33)]
    NBUF = 30
    for n in range(NBUF): zload(*seq[n], n % NBUF)
    e.wait(vm="m"); e("s_barrier")
    fb = 24
    def bread(n):
        cs, ks = seq[n]
        off = cs * 36864 + (ks >> 2) * 4096
        d = fb + 4 * (n & 1)
        if off > 65535:
            e(f"v_add_u32 v21, {off & ~0x7fff}, v{16 + (ks & 3)}")
            e.lds(f"ds_read_b128 {vr(d)}, v21 offset:{off & 0x7fff}", ("b", n))
        else:
            e.lds(f"ds_read_b128 {vr(d)}, v{16 + (ks & 3)} offset:{off}", ("b", n))
    bread(0)
    for n in range(len(seq)):
        if n + 1 < len(seq): bread(n + 1)
        e.wait(vm=("z", *seq[n]), lg=("b", n))
        e(f"v_mfma_f32_32x32x16_bf16 {vr(acc,16)}, {vr(vZ + 4*(n % NBUF))}, {vr(fb + 4*(n & 1))}, {'0' if n == 0 else vr(acc,16)}")
        if n + NBUF < len(seq): zload(*seq[n + NBUF], n % NBUF)
    e.wait(vm=["part", "g"])
    bs = 48
    for jp in range(8):
        for q in range(8):
            src = vP + 8 * jp + q
            if jp == 0:
                e(f"v_lshlrev_b32 v{bs + 2*q}, 16, v{src}")
                e(f"v_and_b32 v{bs + 2*q + 1}, 0xffff0000, v{src}")
            else:
                e(f"v_lshlrev_b32 v22, 16, v{src}")
                e(f"v_and_b32 v23, 0xffff0000, v{src}")
                e(f"v_add_f32 v{bs + 2*q}, v{bs + 2*q}, v22")
                e(f"v_add_f32 v{bs + 2*q + 1}, v{bs + 2*q + 1}, v23")
    e("s_nop 7")
    for r in range(16):
        e(f"v_sub_f32 v{acc + r}, v{acc + r}, v{bs + r}")
        e(f"v_fma_f32 v{acc + r}, v20, v{acc + r}, v{bs + r}")
    for q in range(8):
        e(f"v_cvt_pk_bf16_f32 v{64 + q}, v{acc + 2*q}, v{acc + 2*q + 1}")
    e("s_nop 1")
    for z in range(2):
        e(f"v_permlane32_swap_b32 v{64 + 4*z}, v{66 + 4*z}")
        e(f"v_permlane32_swap_b32 v{65 + 4*z}, v{67 + 4*z}")
    e(f"""
    s_movk_i32 s58, 1152
    v_mul_lo_u32 v15, v14, s58
    v_lshrrev_b32 v6, 5, v0
    v_lshl_add_u32 v15, v6, 4, v15
    s_lshl_b32 s59, s46, 6
    buffer_store_dwordx4 {vr(64)}, v15, s[{S_OUT}:{S_OUT+3}], s59 offen
    buffer_store_dwordx4 {vr(68)}, v15, s[{S_OUT}:{S_OUT+3}], s59 offen offset:32
    K2_end:
    s_endpgm
    """)
    return e.text() + kdesc(name, 256, 0, 64)
if __name__ == "__main__":
    print(gen_k2())
```

```python
from common import *
ROWD = 1152
CH = 24576
NSLOT = 6
LDS_BYTES = NSLOT * CH
S_X, S_CD, S_SD, S_WS, S_GW = 8, 12, 16, 20, 24
sW, sSIG, sC = 32, 33, 34
def vr(b, n=4): return f"v[{b}:{b+n-1}]"

def gen_ka(name="ka_kernel", ngrid=170):
    e = Emit()
    e.l.append(kbegin(name).rstrip("\n"))
    e(f"""
    s_cmp_ge_u32 s2, {ngrid}
    s_cbranch_scc1 KA_end
    s_load_dwordx2 s[{S_X}:{S_X+1}], s[0:1], {KA_AX}
    s_load_dwordx2 s[{S_CD}:{S_CD+1}], s[0:1], {KA_CD}
    s_load_dwordx2 s[{S_SD}:{S_SD+1}], s[0:1], {KA_SD}
    s_load_dwordx2 s[{S_WS}:{S_WS+1}], s[0:1], {KA_WS}
    s_load_dwordx2 s[{S_GW}:{S_GW+1}], s[0:1], {KA_GW}
    v_lshrrev_b32 v2, 6, v0
    v_and_b32 v0, 63, v0
    v_readfirstlane_b32 s{sW}, v2
    ; unit: sigma = id / 10, c = id % 10
    s_mul_hi_u32 s{sSIG}, s2, {-(-(1 << 32) // 10)}
    s_mul_i32 s40, s{sSIG}, 10
    s_sub_u32 s{sC}, s2, s40
    """)
    e(f"""
    v_lshrrev_b32 v3, 3, v0              ; r8
    v_and_b32 v4, 7, v0                  ; cp
    s_lshl_b32 s41, s{sSIG}, 5           ; 32 sigma
    s_movk_i32 s42, 1152
    s_cmp_eq_u32 s{sW}, 0
    s_cselect_b32 s43, 0, 1024
    s_cmp_eq_u32 s{sW}, 3
    s_cselect_b32 s43, 2048, s43         ; base
    s_and_b32 s44, s{sW}, 1
    """)
    def rowcalc(dst, mreg):
        e(f"""
        v_add_u32 v6, s41, v{mreg}           ; s
        v_sub_u32 v7, s43, v6
        v_add_u32 v8, s43, v6
        s_cmp_eq_u32 s44, 1
        s_cselect_b64 vcc, -1, 0
        s_nop 1
        v_cndmask_b32 v7, v8, v7, vcc        ; row
        v_mul_lo_u32 v{dst}, v7, s42
        v_mov_b32 v9, 0x7ff00000
        v_cmp_lt_u32 vcc, 512, v6            ; s > 512
        s_nop 1
        v_cndmask_b32 v{dst}, v{dst}, v9, vcc
        s_and_b32 s45, s{sW}, 1              ; g1,g3 mask s==512
        s_mul_i32 s45, s45, 512
        s_cmp_eq_u32 s45, 0
        s_cselect_b32 s45, 0xffff, s45
        v_cmp_eq_u32 vcc, s45, v6
        s_nop 1
        v_cndmask_b32 v{dst}, v{dst}, v9, vcc
        s_cmp_ge_u32 s{sW}, 2                ; g2,g3 mask s==0
        s_cselect_b32 s45, 0, 0xffff
        v_cmp_eq_u32 vcc, s45, v6
        s_nop 1
        v_cndmask_b32 v{dst}, v{dst}, v9, vcc
        """)
    for q in range(4):
        e(f"v_add_u32 v5, {8 * q}, v3")
        rowcalc(10 + q, 5)
        e(f"""
        v_bfe_u32 v6, v5, 1, 3
        v_xor_b32 v6, v6, v4
        v_lshl_add_u32 v{10+q}, v6, 4, v{10+q}
        """)
    e(f"""
    s_lshl_b32 s45, s{sW}, 3
    v_add_u32 v5, s45, v3                ; 8w + r8
    s_lshl_b32 s46, s{sC}, 5
    v_add_u32 v6, s46, v5
    v_mul_lo_u32 v14, v6, s42
    v_bfe_u32 v6, v5, 1, 3
    v_xor_b32 v6, v6, v4
    v_lshl_add_u32 v14, v6, 4, v14
    v_and_b32 v5, 31, v0
    v_lshrrev_b32 v6, 5, v0
    v_lshrrev_b32 v7, 3, v5
    v_lshlrev_b32 v7, 10, v7
    v_and_b32 v8, 7, v5
    v_lshl_add_u32 v7, v8, 7, v7
    v_bfe_u32 v8, v5, 1, 3               ; swz
    s_lshl_b32 s45, s{sW}, 12
    """)
    for q4 in range(4):
        e(f"""
        v_add_u32 v9, {2 * q4}, v6
        v_xor_b32 v9, v9, v8
        v_lshl_add_u32 v{20+q4}, v9, 4, v7
        v_add_u32 v{16+q4}, s45, v{20+q4}         ; x pattern
        """)
    e("v_and_b32 v5, 31, v0")
    rowcalc(24, 5)
    e("s_waitcnt lgkmcnt(0)")
    for s_, nb in ((S_X, 2048 * ROWD), (S_CD, 576 * ROWD), (S_SD, 576 * ROWD), (S_WS, WS_BYTES), (S_GW, 1152)):
        srd(e, s_, None, nb)
    e(f"s_lshl_b32 s47, s{sW}, 12")
    e(f"s_lshl_b32 s48, s{sW}, 10")
    def dma(kc):
        sb = (kc % NSLOT) * CH
        e(f"s_movk_i32 s49, {128 * kc}")
        for q in range(4):
            e(f"s_add_u32 m0, s47, {sb + 1024 * q}\ns_nop 0")
            e.vmem(f"buffer_load_dwordx4 v{10+q}, s[{S_X}:{S_X+3}], s49 offen lds", ("c", kc))
        e(f"s_add_u32 m0, s48, {sb + 16384}\ns_nop 0")
        e.vmem(f"buffer_load_dwordx4 v14, s[{S_CD}:{S_CD+3}], s49 offen lds", ("c", kc))
        e(f"s_add_u32 m0, s48, {sb + 20480}\ns_nop 0")
        e.vmem(f"buffer_load_dwordx4 v14, s[{S_SD}:{S_SD+3}], s49 offen lds", ("c", kc))
    for kc in range(NSLOT): dma(kc)
    accC, accS = 32, 48
    fx, fc, fs = 64, 80, 96
    vXF = 112
    for kc in range(9):
        e.wait(vm=("c", kc)); e("s_barrier")
        if kc >= 1 and kc + NSLOT - 1 < 9: dma(kc + NSLOT - 1)
        sb = (kc % NSLOT) * CH
        for q4 in range(4):
            ks = 4 * kc + q4
            xa = vXF + 4 * ks
            for (dst, va, off) in ((xa, 16 + q4, sb), (fc + 4 * q4, 20 + q4, sb + 16384), (fs + 4 * q4, 20 + q4, sb + 20480)):
                if off > 65535:
                    e(f"v_add_u32 v25, {off & ~0x7fff}, v{va}")
                    e.lds(f"ds_read_b128 {vr(dst)}, v25 offset:{off & 0x7fff}")
                else:
                    e.lds(f"ds_read_b128 {vr(dst)}, v{va} offset:{off}")
        e("s_waitcnt lgkmcnt(0)")
        for q4 in range(4):
            ks = 4 * kc + q4
            xa = vXF + 4 * ks
            e(f"v_mfma_f32_32x32x16_bf16 {vr(accC,16)}, {vr(xa)}, {vr(fc + 4*q4)}, {'0' if ks == 0 else vr(accC,16)}")
            e(f"v_mfma_f32_32x32x16_bf16 {vr(accS,16)}, {vr(xa)}, {vr(fs + 4*q4)}, {'0' if ks == 0 else vr(accS,16)}")
    e("s_nop 7\ns_nop 7")
    e("s_barrier")
    e(f"s_cmp_lg_u32 s{sC}, 0\ns_cbranch_scc1 KA_nogate")
    e("v_lshrrev_b32 v5, 5, v0\nv_lshlrev_b32 v5, 4, v5\nv_mov_b32 v26, 0")
    for kc in range(9):
        for q4 in range(4):
            ks = 4 * kc + q4
            e(f"buffer_load_dwordx4 {vr(fc + 4*q4)}, v5, s[{S_GW}:{S_GW+3}], 0 offen offset:{32 * ks}")
        e("s_waitcnt vmcnt(0)")
        for q4 in range(4):
            ks = 4 * kc + q4
            for d in range(4):
                e(f"v_dot2_f32_bf16 v26, v{vXF + 4*ks + d}, v{fc + 4*q4 + d}, v26")
    e(f"""
    s_nop 4
    v_mov_b32 v27, v26
    s_nop 1
    v_permlane32_swap_b32 v26, v27
    s_nop 1
    v_add_f32 v26, v26, v27
    v_mul_f32 v26, 0xbfb8aa3b, v26
    v_exp_f32 v26, v26
    s_nop 0
    v_add_f32 v26, 1.0, v26
    v_rcp_f32 v26, v26
    s_mov_b32 s45, {-(-(1 << 32) // 288)}
    v_mul_hi_u32 v27, v24, s45           ; row*4
    v_mov_b32 v9, 0x7ff00000
    v_cmp_le_u32 vcc, v9, v24
    s_nop 1
    v_cndmask_b32 v27, v27, v9, vcc
    v_cmp_lt_u32 vcc, 31, v0
    s_nop 1
    v_cndmask_b32 v27, v27, v9, vcc
    s_mov_b32 s45, {WS_G}
    buffer_store_dword v26, v27, s[{S_WS}:{S_WS+3}], s45 offen
    KA_nogate:
    """)
    e(f"v_lshlrev_b32 v5, 4, v0\ns_lshl_b32 s45, s{sW}, 13\nv_add_u32 v6, s45, v5")
    for cs, acc in ((0, accC), (1, accS)):
        for z in range(4):
            e(f"ds_write_b128 v6, {vr(acc + 4*z)} offset:{cs * 4096 + z * 1024}")
    e("s_waitcnt lgkmcnt(0)\ns_barrier")
    e(f"""
    s_lshr_b32 s45, s{sW}, 1
    s_lshl_b32 s45, s45, 12
    v_add_u32 v6, s45, v5
    """)
    for g in range(4):
        for z in range(4):
            e(f"ds_read_b128 {vr(64 + 16*g + 4*z)}, v6 offset:{g * 8192 + z * 1024}")
    signs = [(1, 1, 1, 1), (1, -1, -1, 1), (-1, 1, -1, 1), (-1, -1, 1, 1)]
    for g in range(4):
        e(f"s_mov_b32 s{50+g}, 1.0")
        for w in range(4):
            if signs[w][g] < 0:
                e(f"s_cmp_eq_u32 s{sW}, {w}\ns_cselect_b32 s{50+g}, 0xbf800000, s{50+g}")
    e("s_waitcnt lgkmcnt(0)")
    for r in range(16):
        e(f"v_mul_f32 v{32+r}, s50, v{64+r}")
        for g in range(1, 4):
            e(f"v_fma_f32 v{32+r}, s{50+g}, v{64 + 16*g + r}, v{32+r}")
    for q in range(8):
        e(f"v_cvt_pk_bf16_f32 v{48+q}, v{32 + 2*q}, v{33 + 2*q}")
    e("s_nop 1")
    for z in range(2):
        e(f"v_permlane32_swap_b32 v{48 + 4*z}, v{50 + 4*z}")
        e(f"v_permlane32_swap_b32 v{49 + 4*z}, v{51 + 4*z}")
    e(f"""
    v_and_b32 v5, 31, v0
    s_lshl_b32 s45, s{sC}, 5
    v_add_u32 v5, s45, v5                ; e'
    v_and_b32 v6, 32, v0                 ; 32h
    s_and_b32 s46, s{sW}, 1
    s_lshl_b32 s46, s46, 1
    s_lshr_b32 s47, s{sW}, 1
    s_add_u32 s46, s46, s47              ; p*2+cs
    s_mul_i32 s46, s46, {18 * 33 * 1024}
    s_lshl_b32 s47, s{sSIG}, 11
    s_add_u32 s46, s46, s47
    s_add_u32 s46, s46, {WS_Z}
    s_mov_b32 s48, {33 * 1024}
    v_mov_b32 v9, 0x7ff00000
    ; direct
    v_lshrrev_b32 v7, 5, v5
    v_mul_lo_u32 v7, v7, s48
    v_and_b32 v8, 31, v5
    v_add_u32 v8, v8, v6
    v_lshl_add_u32 v7, v8, 4, v7
    v_cmp_lt_u32 vcc, 288, v5
    s_nop 1
    v_cndmask_b32 v10, v7, v9, vcc
    ; mirror e = 576 - e'
    v_sub_u32 v11, 576, v5
    v_lshrrev_b32 v7, 5, v11
    v_mul_lo_u32 v7, v7, s48
    v_and_b32 v8, 31, v11
    v_add_u32 v8, v8, v6
    v_lshl_add_u32 v7, v8, 4, v7
    v_cmp_lt_u32 vcc, 287, v5
    s_nop 1
    v_cndmask_b32 v7, v7, v9, vcc
    v_cmp_eq_u32 vcc, 0, v5
    s_nop 1
    v_cndmask_b32 v11, v7, v9, vcc
    """)
    e(f"buffer_store_dwordx4 {vr(48)}, v10, s[{S_WS}:{S_WS+3}], s46 offen")
    e(f"s_cmp_eq_u32 s{sSIG}, 16\ns_cbranch_scc1 KA_skip1")
    e(f"buffer_store_dwordx4 {vr(52)}, v10, s[{S_WS}:{S_WS+3}], s46 offen offset:1024")
    e("KA_skip1:")
    e(f"s_cmp_ge_u32 s{sW}, 2\ns_cselect_b32 s49, 0x80008000, 0")
    for q in range(8): e(f"v_xor_b32 v{56+q}, s49, v{48+q}")
    e(f"buffer_store_dwordx4 {vr(56)}, v11, s[{S_WS}:{S_WS+3}], s46 offen")
    e(f"s_cmp_eq_u32 s{sSIG}, 16\ns_cbranch_scc1 KA_end")
    e(f"buffer_store_dwordx4 {vr(60)}, v11, s[{S_WS}:{S_WS+3}], s46 offen offset:1024")
    e("KA_end:")
    e("s_endpgm")
    return e.text() + kdesc(name, 256, 0, 64)
if __name__ == "__main__":
    print(gen_ka())
```

```python
import sys, os
sys.path.insert(0, os.path.dirname(os.path.abspath(__file__)))
from common import *
import k1, ka, k2
def header(launches):
    s = ""
    for (k, g, b, lds) in launches:
        s += f"; @launch kernel={k} grid=({g},1,1) block=({b},1,1) lds={lds}\n"
    s += '.amdgcn_target "amdgcn-amd-amdhsa--gfx950"\n.text\n'
    return s
def build_k1_only():
    return header([("k1_kernel", 256, 256, k1.LDS_BYTES)]) + k1.gen_k1()
def build_k1_diag():
    k1.DIAG = True
    return build_k1_only()
def build_k1_diag2():
    k1.DIAG = 2
    return build_k1_only()
TOP = open(os.path.join(os.path.dirname(os.path.abspath(__file__)), "top_comment.txt")).read()
def build_v1():
    return TOP + header([("ka_kernel", 170, 256, ka.LDS_BYTES), ("k1_kernel", 256, 256, k1.LDS_BYTES), ("k2_kernel", 192, 384, k2.LDS_BYTES)]) + ka.gen_ka() + k1.gen_k1() + k2.gen_k2()
def build_abl(name):
    k1.DIAG = 1
    k1.ABL = set(name.split("+")) - {"base"}
    return build_k1_only()
if __name__ == "__main__":
    what = sys.argv[1]; out = sys.argv[2]
    if what.startswith("abl:"): open(out, "w").write(build_abl(what[4:]))
    else: open(out, "w").write(globals()["build_" + what]())
```

```python
from common import *

ROWW = 9216
ROWD = 1152
SLOT = 36864
NUNIT = 27
LDS_BYTES = 4 * SLOT

S_WG, S_WU, S_WD, S_X, S_WS, S_DBG = 8, 12, 16, 20, 24, 28
sW, sI, sJ, sODD = 32, 33, 34, 35
sGA, sGL, sSA_, sSL_ = 36, 37, 38, 39
sDAo, sDLo, sDAp, sDLp = 40, 41, 42, 43
sUA, sUB, sUL = 44, 45, 46
sM0A, sM0L = 47, 48
sT0, sT1, sT2 = 49, 50, 51
sHXo, sHXp, sPART = 52, 53, 54
sFoffP, sFbitP = 55, 56
sOBp = 57
vL16 = 1
vWK = (2, 3)
vPGp = (4, 5); vPGs = 6; vPDp = (7, 8); vPDs = 9
vPOLL = 10; vZERO = 11; vFOFF = 12; vFBIT = 13; vOB = 12
vOB0 = 109
vTMP = 16
vH = 24
vG = (96, 128); vU = 160; vUS = 192
DACC = [128, 144, 160, 176, 208, 224, 96, 112, 192]
vDGp, vDGs, vDDp, vDDs = 240, 244, 248, 252
vTG, vTD = 14, 0
vDUM = 23
PF = 6
TOUCH_SLOT = 29
sTG, sTGs, sTDo, sTDp, sTS = 82, 83, 84, 85, 86
aFR = 144

def unit_desc(u):
    if u < 16:
        p, r = divmod(u, 4)
        return dict(kind="GUp", mat="G" if r < 2 else "U", p=p, kh=r & 1)
    if u == 16: return dict(kind="GUs", mat="G")
    if u == 17: return dict(kind="GUs", mat="U")
    if u < 22: return dict(kind="Dp", ps=1, q=u - 18)
    if u == 22: return dict(kind="S")
    return dict(kind="Dp", ps=2, q=u - 23)

def dma_ops(u):
    d = unit_desc(u); sb = (u % 4) * SLOT
    ops = []
    k = d["kind"]
    if k == "GUp":
        srd_ = S_WG if d["mat"] == "G" else S_WU
        c = 288 * d["kh"] * ROWW + 128 * d["p"]
        A, B, L = (sGA, c), (sGA, c + 128 * ROWW), (sGL, c)
        vo = vDGp
    elif k == "GUs":
        srd_ = S_WG if d["mat"] == "G" else S_WU
        A, B, L = (sSA_, 0), (sSA_, 256 * ROWW), (sSL_, 0)
        vo = vDGs
    elif k == "Dp":
        srd_ = S_WD
        a, l = (sDAo, sDLo) if d["ps"] == 1 else (sDAp, sDLp)
        c = 128 * d["q"]
        A, B, L = (a, c), (a, c + 128 * ROWD), (l, c)
        vo = vDDp
    else:
        srd_ = S_WD
        A, B, L = (sUA, 0), (sUB, 0), (sUL, 0)
        vo = vDDs
    groups = []
    for gi, (base, c) in enumerate((A, B, L)):
        st = sT0 + gi
        pre = [f"s_add_u32 s{st}, s{base}, {c}"]
        if gi == 0: pre.append(f"s_add_u32 m0, s{sM0A}, {sb}")
        elif gi == 1: pre.append(f"s_add_u32 m0, s{sM0A}, {sb + 16384}")
        else: pre.append(f"s_add_u32 m0, s{sM0L}, {sb}")
        loads = []
        for q in range(4 if gi < 2 else 1):
            off = f" offset:{1024 * q}" if q else ""
            loads.append(f"buffer_load_dwordx4 v{vo + q}, s[{srd_}:{srd_+3}], s{st} offen{off} lds")
        groups.append((pre, loads))
    return groups

def touch_ops(u):
    d = unit_desc(u); k = d["kind"]
    ops = []
    def t(srd_, vo, base, c):
        ops.append((f"s_add_u32 s87, s{base}, {c}", False))
        ops.append((f"buffer_load_dword a176, v{vo}, s[{srd_}:{srd_+3}], s87 offen", True))
    if k == "GUp":
        t(S_WG if d["mat"] == "G" else S_WU, vTG, sTG, 288 * d["kh"] * ROWW + 128 * d["p"])
    elif k == "GUs":
        srd_ = S_WG if d["mat"] == "G" else S_WU
        t(srd_, vTG, sTGs, 0); t(srd_, vTG, sTGs, 288 * ROWW)
    elif k == "Dp":
        t(S_WD, vTD, sTDo if d["ps"] == 1 else sTDp, 128 * d["q"])
    else:
        t(S_WD, vTD, sTS, 0); t(S_WD, vTD, sTS, 288 * ROWD)
    return ops

def frag_reads(u, n):
    d = unit_desc(u); k = d["kind"]
    if k == "GUp":
        ks, hf = n >> 1, n & 1
        return vWK[hf], [2048 * ks, 2048 * ks + 512]
    if k == "GUs":
        return vWK[0], [1024 * n, 1024 * n + 256]
    if k == "Dp":
        ks, hf = n >> 1, n & 1
        return vWK[hf], [2048 * ks, 2048 * ks + 1024]
    ks = n % 18; par = n // 18
    R = (256 * par + 16 * ks) if ks < 16 else (512 + 32 * par + 16 * (ks - 16))
    return vWK[0], [64 * R, 64 * R + 512]

def unit_patterns(u):
    k = unit_desc(u)["kind"]
    if k == "GUp": return vPGp
    if k == "GUs": return (vPGs,)
    if k == "Dp": return vPDp
    return (vPDs,)

def vr(b, n=4): return f"v[{b}:{b+n-1}]"
def ar(b, n=4): return f"a[{b}:{b+n-1}]"

def mfma(u, n):
    d = unit_desc(u); k = d["kind"]
    gn = 36 * u + n
    A = ar(aFR + 4 * (gn % 8))
    if k == "GUp":
        ks, hf = n >> 1, n & 1
        kk = 18 * d["kh"] + ks
        acc = (vG[d["p"] & 1] if d["mat"] == "G" else vU) + 16 * hf
        B = ar(4 * kk); first = kk == 0
    elif k == "GUs":
        acc = vG[0] if d["mat"] == "G" else vUS
        B = ar(4 * n); first = n == 0
    elif k == "Dp":
        ks, hf = n >> 1, n & 1
        acc = DACC[2 * d["q"] + hf]
        if d["ps"] == 1: B = vr(vH + 4 * ks); first = ks == 0
        else: B = ar(4 * ks); first = False
    else:
        acc = DACC[8]
        if n < 18: B = vr(vH + 4 * n)
        else: B = ar(4 * (n - 18))
        first = n == 0
    if "m16" in ABL:
        o = []
        for z in range(2):
            a4 = acc + 8 * (n & 1) % 16 + 4 * z
            o.append(f"v_mfma_f32_16x16x32_bf16 {vr(a4,4)}, {A}, {B}, {'0' if first else vr(a4,4)}")
        return "\n".join(o)
    C = "0" if first else vr(acc, 16)
    return f"v_mfma_f32_32x32x16_bf16 {vr(acc,16)}, {A}, {B}, {C}"

NLOG2E = "0xbfb8aa3b"

def silu_ops(g0, n):
    ops = []
    for e in range(0, n, 2):
        ta = vTMP + (e % 8); tb = ta + 1
        a, b = g0 + e, g0 + e + 1
        ops += [(f"v_mul_f32 v{ta}, {NLOG2E}, v{a}", 1), (f"v_mul_f32 v{tb}, {NLOG2E}, v{b}", 1),
                (f"v_exp_f32 v{ta}, v{ta}", 2), (f"v_exp_f32 v{tb}, v{tb}", 2),
                (f"v_add_f32 v{ta}, 1.0, v{ta}", 1), (f"v_add_f32 v{tb}, 1.0, v{tb}", 1),
                (f"v_rcp_f32 v{ta}, v{ta}", 2), (f"v_rcp_f32 v{tb}, v{tb}", 2),
                (f"v_mul_f32 v{a}, v{a}, v{ta}", 1), (f"v_mul_f32 v{b}, v{b}, v{tb}", 1)]
    return ops

def h_ops(g0, u0, tile):
    ops = []
    H = vH + 8 * tile
    for q in range(8):
        a, b = g0 + 2 * q, g0 + 2 * q + 1
        ops += [(f"v_mul_f32 v{a}, v{a}, v{u0 + 2*q}", 1), (f"v_mul_f32 v{b}, v{b}, v{u0 + 2*q + 1}", 1),
                (f"v_cvt_pk_bf16_f32 v{H + q}, v{a}, v{b}", 1)]
        if q == 3 or q == 7:
            half = q >> 2
            off = tile * 2048 + half * 1024
            ops.append((f"s_add_u32 s{60}, s{sHXo}, {off & ~4095}", 1))
            ops.append((f"buffer_store_dwordx4 {vr(H + 4*half)}, v{vL16}, s[{S_WS}:{S_WS+3}], s60 offen offset:{off & 4095}{'' if 'plainst' in ABL else ' sc1'}" if "nohst" not in ABL else "s_nop 0", 1, ("hst", tile)))
    return ops

def epi_ops(tile):
    ops = []
    T = DACC[tile]
    for q in range(8):
        ops.append((f"v_cvt_pk_bf16_f32 v{T + q}, v{T + 2*q}, v{T + 2*q + 1}", 1))
        if q == 3 or q == 7:
            half = q >> 2
            off = tile * 2048 + half * 1024
            ops.append((f"s_add_u32 s{61}, s{sPART}, {off & ~4095}", 1))
            ops.append((f"buffer_store_dwordx4 {vr(T + 4*half)}, v{vL16}, s[{S_WS}:{S_WS+3}], s61 offen offset:{off & 4095}{'' if 'plainst' in ABL else ' sc1'}", 1, ("pst", tile)))
    return ops

DIAG = False
ABL = set()
WS_DIAG = 80 << 20
def stamp(e, idx, settled=False):
    if not DIAG: return
    e(f"{'s_memtime' if DIAG == 2 else 's_memrealtime'} s[{76 + 2*(idx % 2)}:{77 + 2*(idx % 2)}]")
    e.pending_stamp = idx
def settle(e):
    if not DIAG: return
    idx = getattr(e, "pending_stamp", None)
    if idx is None: return
    e(f"v_writelane_b32 v15, s{76 + 2*(idx % 2)}, {idx}")
    e.pending_stamp = None

def prologue(e):
    e(f"""
    s_cmp_ge_u32 s2, 256
    s_cbranch_scc1 K1_end
    {("s_memtime s[80:81]" if DIAG == 2 else "s_memrealtime s[80:81]") if DIAG else ""}
    s_load_dwordx2 s[{S_WG}:{S_WG+1}], s[0:1], {KA_WG}
    s_load_dwordx2 s[{S_WU}:{S_WU+1}], s[0:1], {KA_WU}
    s_load_dwordx2 s[{S_WD}:{S_WD+1}], s[0:1], {KA_WD}
    s_load_dwordx2 s[{S_X}:{S_X+1}], s[0:1], {KA_AX}
    s_load_dwordx2 s[{S_WS}:{S_WS+1}], s[0:1], {KA_WS}
    s_load_dwordx2 s[{S_DBG}:{S_DBG+1}], s[0:1], {KA_DBG}
    v_lshrrev_b32 v2, 6, v0
    v_and_b32 v0, 63, v0
    v_readfirstlane_b32 s{sW}, v2
    v_lshlrev_b32 v{vL16}, 4, v0
    s_and_b32 s60, s2, 1
    s_lshl_b32 s60, s60, 3
    s_lshr_b32 s61, s2, 3
    s_and_b32 s62, s61, 7
    s_add_u32 s{sI}, s60, s62
    s_and_b32 s60, s2, 6
    s_lshl_b32 s60, s60, 1
    s_lshr_b32 s61, s61, 3
    s_add_u32 s{sJ}, s60, s61
    s_and_b32 s{sODD}, s{sJ}, 1
    """)
    e(f"""
    s_mul_i32 s60, s{sJ}, 288            ; F0
    s_lshl_b32 s61, s{sODD}, 5           ; 32*odd
    s_add_u32 s62, s60, s61              ; pairbase (f)
    s_xor_b32 s63, s{sODD}, 1
    s_lshl_b32 s63, s63, 8               ; 256*(1-odd)
    s_add_u32 s63, s60, s63              ; singlebase (f)
    s_xor_b32 s64, s{sJ}, 1
    s_mul_i32 s64, s64, 288              ; F0 partner
    s_xor_b32 s65, s{sODD}, 1
    s_lshl_b32 s66, s65, 5
    s_add_u32 s66, s64, s66
    s_lshl_b32 s67, s{sODD}, 8
    s_add_u32 s67, s64, s67
    s_mul_i32 s68, s{sW}, {32 * ROWW}
    s_lshl_b32 s69, s62, 1
    s_add_u32 s{sGA}, s68, s69
    s_mul_i32 s68, s{sW}, {8 * ROWW}
    s_add_u32 s68, s68, {256 * ROWW}
    s_add_u32 s{sGL}, s68, s69
    s_mul_i32 s68, s{sW}, {64 * ROWW}
    s_lshl_b32 s69, s63, 1
    s_add_u32 s{sSA_}, s68, s69
    s_mul_i32 s68, s{sW}, {16 * ROWW}
    s_add_u32 s68, s68, {512 * ROWW}
    s_add_u32 s{sSL_}, s68, s69
    s_mul_i32 s70, s{sODD}, {320 * 2}
    s_mul_i32 s71, s{sODD}, {288 * 2}
    s_lshl_b32 s72, s65, 9
    s_add_u32 s71, s71, s72
    s_lshl_b32 s68, s{sW}, 5
    s_add_u32 s69, s62, s68
    s_mul_i32 s69, s69, {ROWD}
    s_add_u32 s{sDAo}, s69, s70
    s_add_u32 s69, s66, s68
    s_mul_i32 s69, s69, {ROWD}
    s_add_u32 s{sDAp}, s69, s70
    s_lshl_b32 s68, s{sW}, 3
    s_add_u32 s69, s63, s68
    s_mul_i32 s69, s69, {ROWD}
    s_add_u32 s{sDLo}, s69, s70
    s_add_u32 s69, s67, s68
    s_mul_i32 s69, s69, {ROWD}
    s_add_u32 s{sDLp}, s69, s70
    s_lshl_b32 s68, s{sW}, 6
    s_add_u32 s69, s62, s68
    s_mul_i32 s69, s69, {ROWD}
    s_add_u32 s{sUA}, s69, s71
    s_add_u32 s69, s66, s68
    s_mul_i32 s69, s69, {ROWD}
    s_add_u32 s{sUB}, s69, s71
    s_cmp_lt_u32 s{sW}, 2
    s_cselect_b32 s69, s63, s67
    s_and_b32 s68, s{sW}, 1
    s_lshl_b32 s68, s68, 4
    s_add_u32 s69, s69, s68
    s_mul_i32 s69, s69, {ROWD}
    s_add_u32 s{sUL}, s69, s71
    s_lshl_b32 s{sTG}, s62, 1
    s_lshl_b32 s{sTGs}, s63, 1
    s_mul_i32 s68, s60, {ROWD}
    s_add_u32 s{sTDo}, s68, s70
    s_mul_i32 s68, s64, {ROWD}
    s_add_u32 s{sTDp}, s68, s70
    s_and_b32 s68, s{sJ}, 14
    s_mul_i32 s68, s68, {288 * ROWD}
    s_add_u32 s{sTS}, s68, s71
    s_lshl_b32 s{sM0A}, s{sW}, 12
    s_lshl_b32 s{sM0L}, s{sW}, 10
    s_add_u32 s{sM0L}, s{sM0L}, 32768
    s_lshl_b32 s68, s{sI}, 4
    s_add_u32 s68, s68, s{sJ}
    s_mul_i32 s69, s{sW}, 18432
    s_mul_i32 s72, s68, 73728
    s_add_u32 s72, s72, s69
    s_add_u32 s{sHXo}, s72, {WS_HX}
    s_add_u32 s{sPART}, s72, {WS_PART}
    s_xor_b32 s73, s68, 1
    s_mul_i32 s72, s73, 73728
    s_add_u32 s72, s72, s69
    s_add_u32 s{sHXp}, s72, {WS_HX}
    s_and_b32 s{sFoffP}, s73, 63
    s_lshl_b32 s{sFoffP}, s{sFoffP}, 2
    s_lshr_b32 s{sFbitP}, s73, 6
    s_lshl_b32 s74, s73, 7
    s_lshl_b32 s75, s{sW}, 2
    s_add_u32 s74, s74, s75
    s_add_u32 s{sOBp}, s74, {WS_FLAG}
    s_and_b32 s74, s68, 63
    s_lshl_b32 s74, s74, 2
    s_lshr_b32 s75, s68, 6
    s_lshl_b32 s75, 1, s75
    v_mov_b32 v{vFBIT}, s75
    v_mov_b32 v{vFOFF}, s74
    v_mov_b32 v{vZERO}, 0
    v_mov_b32 v16, 0x7ffffff0
    s_lshl_b32 s74, s68, 7
    s_add_u32 s74, s74, {WS_FLAG}
    s_lshl_b32 s75, s{sW}, 2
    s_add_u32 s75, s75, s74
    v_mov_b32 v{vOB0}, s75
    v_mov_b32 v17, s74
    v_cmp_eq_u32 vcc, 0, v0
    s_nop 1
    v_cndmask_b32 v{vOB0}, v16, v{vOB0}, vcc
    s_lshl_b32 s75, s{sW}, 6
    v_add_u32 v18, s75, v0
    v_cmp_eq_u32 vcc, 0, v18
    s_nop 1
    v_cndmask_b32 v{vFOFF}, v16, v{vFOFF}, vcc
    v_cndmask_b32 v23, v16, v17, vcc
    v_mov_b32 v104, 0
    v_mov_b32 v105, 0
    v_mov_b32 v106, 0
    v_mov_b32 v107, 0
    v_mov_b32 v108, v23
    """)
    e(f"""
    v_lshrrev_b32 v14, 5, v0             ; h
    v_bfe_u32 v15, v0, 4, 1              ; fb
    v_bfe_u32 v16, v0, 2, 2              ; r
    v_and_b32 v17, 3, v0                 ; c4
    v_lshlrev_b32 v18, 5, v15
    v_lshl_add_u32 v18, v17, 3, v18      ; 32 fb + 8 c4
    v_lshrrev_b32 v19, 1, v16            ; (r>>1)&1
    v_lshlrev_b32 v20, 6, v19
    v_xor_b32 v21, 64, v20               ; hf=1
    v_lshl_add_u32 v22, v14, 3, v16      ; 8h + r
    v_lshl_add_u32 v23, v14, 2, v16      ; 4h + r
    v_lshlrev_b32 v2, 7, v22
    v_add3_u32 v{vPGp[0]}, v2, v20, v18
    v_add3_u32 v{vPGp[1]}, v2, v21, v18
    v_lshl_add_u32 v{vPGs}, v22, 6, v18
    v_lshlrev_b32 v2, 7, v23
    v_add3_u32 v{vPDp[0]}, v2, v20, v18
    v_add3_u32 v{vPDp[1]}, v2, v21, v18
    v_lshl_add_u32 v{vPDs}, v23, 6, v18
    v_lshrrev_b32 v14, 3, v0             ; r8
    v_bfe_u32 v15, v0, 2, 1              ; cp>>2
    v_bfe_u32 v16, v0, 4, 1              ; (r8>>1)&1
    v_xor_b32 v15, v15, v16
    v_lshlrev_b32 v15, 6, v15
    v_lshl_add_u32 v15, v17, 4, v15      ; colb
    s_mov_b32 s60, {ROWW}
    s_mov_b32 s61, {ROWD}
    v_mul_lo_u32 v16, v14, s60
    v_add_u32 v{vDGp}, v16, v15
    v_mul_lo_u32 v16, v14, s61
    v_add_u32 v{vDDp}, v16, v15
    v_lshrrev_b32 v14, 2, v0             ; r16
    v_lshlrev_b32 v15, 4, v17            ; 16*cp
    v_mul_lo_u32 v16, v14, s60
    v_add_u32 v{vDGs}, v16, v15
    v_mul_lo_u32 v16, v14, s61
    v_add_u32 v{vDDs}, v16, v15
    """)
    for q in range(1, 4):
        e(f"v_add_u32 v{vDGp+q}, {q * (8 * ROWW - 1024)}, v{vDGp}")
        e(f"v_add_u32 v{vDDp+q}, {q * (8 * ROWD - 1024)}, v{vDDp}")
        e(f"v_add_u32 v{vDGs+q}, {q * (16 * ROWW - 1024)}, v{vDGs}")
        e(f"v_add_u32 v{vDDs+q}, {q * (16 * ROWD - 1024)}, v{vDDs}")
    e(f"""
    s_and_b32 s60, s{sI}, 7
    s_lshl_b32 s60, s60, 1
    s_lshr_b32 s61, s{sW}, 1
    s_add_u32 s60, s60, s61              ; a
    s_lshl_b32 s60, s60, 6               ; 64a
    s_and_b32 s61, s{sW}, 1
    s_add_u32 s60, s60, s61              ; 64a + p
    s_lshr_b32 s62, s{sI}, 3             ; upper
    v_lshrrev_b32 v14, 3, v0             ; r8
    v_and_b32 v15, 7, v0                 ; cp
    s_movk_i32 s63, 1152
    """)
    for q in range(4):
        e(f"""
        v_add_u32 v16, {8 * q}, v14          ; m
        v_lshl_add_u32 v17, v16, 1, s60      ; t' = 64a + 2m + p
        v_sub_u32 v18, 2048, v17
        v_cmp_eq_u32 vcc, 0, v17
        v_mov_b32 v19, 1024
        s_nop 0
        v_cndmask_b32 v18, v18, v19, vcc
        s_cmp_eq_u32 s62, 0
        s_cselect_b64 vcc, -1, 0
        s_nop 0
        v_cndmask_b32 v17, v18, v17, vcc
        v_mul_lo_u32 v17, v17, s63
        v_bfe_u32 v18, v16, 1, 3             ; swz
        v_xor_b32 v18, v18, v15
        v_lshl_add_u32 v{96+q}, v18, 4, v17
        """)
    e(f"""
    v_and_b32 v14, 31, v0                ; m
    v_lshrrev_b32 v15, 5, v0             ; h
    v_lshrrev_b32 v16, 3, v14
    v_lshlrev_b32 v16, 10, v16
    v_and_b32 v17, 7, v14
    v_lshl_add_u32 v16, v17, 7, v16      ; (m>>3)*1024 + (m&7)*128
    s_mul_i32 s64, s{sW}, {SLOT}
    v_add_u32 v16, s64, v16
    v_bfe_u32 v17, v14, 1, 3             ; swz
    """)
    for q4 in range(4):
        e(f"""
        v_add_u32 v18, {2 * q4}, v15
        v_xor_b32 v18, v18, v17
        v_lshl_add_u32 v{100+q4}, v18, 4, v16
        """)
    e(f"""
    s_lshr_b32 s60, s2, 3
    s_and_b32 s60, s60, 7
    s_mul_i32 s60, s60, 36
    s_mul_i32 s61, s{sW}, 9
    s_add_u32 s60, s60, s61
    v_add_u32 v16, s60, v0               ; row
    s_mov_b32 s60, {ROWW}
    s_mov_b32 s61, {ROWD}
    v_mul_lo_u32 v17, v16, s60
    v_mul_lo_u32 v18, v16, s61
    v_mov_b32 v19, 0x7ff00000
    v_cmp_gt_u32 vcc, 9, v0
    v_lshlrev_b32 v110, 2, v0
    s_nop 0
    v_cndmask_b32 v{vTG}, v19, v17, vcc
    v_cndmask_b32 v111, v19, v18, vcc
    """)
    e("s_waitcnt lgkmcnt(0)")
    if DIAG: e("v_mov_b32 v15, 0\nv_writelane_b32 v15, s80, 0")
    for s_, nb in ((S_WG, 576 * ROWW), (S_WU, 576 * ROWW), (S_WD, 4608 * ROWD), (S_X, 2048 * ROWD), (S_WS, WS_BYTES), (S_DBG, 256)):
        srd(e, s_, None, nb)
    e(f"v_mov_b32 v{vTD}, v111")
    if "xtouch" in ABL:
        e(f"""
        s_lshr_b32 s60, s2, 6                ; jq 0..3
        v_and_b32 v16, 31, v110
        """)
        pass
    if "notouch" not in ABL and "latetouch" not in ABL:
        for u in range(PF):
            for t, isv in touch_ops(u):
                if isv: e.vmem(t, "touch")
                else: e(t)
    e.vmem(f"buffer_store_dwordx4 v[104:107], v108, s[{S_WS}:{S_WS+3}], 0 offen sc1", "clr")
    for kc in range(9):
        e(f"s_movk_i32 s60, {128 * kc}")
        for q in range(4):
            e(f"s_add_u32 m0, s64, {kc * 4096 + q * 1024}")
            e("s_nop 0")
            e.vmem(f"buffer_load_dwordx4 v{96+q}, s[{S_X}:{S_X+3}], s60 offen lds", ("x", kc))
    if "latetouch" in ABL:
        for u in range(PF):
            for t, isv in touch_ops(u):
                if isv: e.vmem(t, "touch")
                else: e(t)
    for kc in range(9):
        e.wait(vm=("x", kc))
        for q4 in range(4):
            ks = 4 * kc + q4
            e.lds(f"ds_read_b128 {ar(4 * ks)}, v{100+q4} offset:{kc * 4096}", ("xf", ks))
    e.vmem(f"buffer_atomic_or v{vFBIT}, v{vFOFF}, s[{S_DBG}:{S_DBG+3}], 0 offen", "clrbit")
    e(f"v_mov_b32 v{vOB}, v{vOB0}")
    e("s_waitcnt lgkmcnt(0)")
    stamp(e, 1)
    e("s_barrier")

def emit_dma_unit(e, u):
    for pre, loads in dma_ops(u):
        for s in pre: e(s)
        e("s_nop 0")
        for s in loads: e.vmem(s, ("u", u))

def gen_k1():
    e = Emit()
    e.l.append(kbegin("k1_kernel").rstrip("\n"))
    prologue(e)
    for u in range(4): emit_dma_unit(e, u)
    def set_work(u):
        pats = unit_patterns(u); sb = (u % 4) * SLOT
        for i, p in enumerate(pats):
            if sb: e(f"v_add_u32 v{vWK[i]}, {sb}, v{p}")
            else: e(f"v_mov_b32 v{vWK[i]}, v{p}")
    def reads(u, n):
        gn = 36 * u + n
        va, offs = frag_reads(u, n)
        b = aFR + 4 * (gn % 8)
        for t in range(2):
            if "noread" in ABL and u >= 1: e.lg.append(("f", gn)); e.lg.pop(0) if False else None; continue
            if "halfread" in ABL and u >= 1 and (n & 1): e.lg.append(("f", gn)); continue
            e.lds(f"ds_read_b64_tr_b16 {ar(b + 2*t, 2)}, v{va} offset:{offs[t]}", ("f", gn))
    e.wait(vm=("u", 0)); e("s_barrier")
    if DIAG:
        e("s_waitcnt lgkmcnt(0)"); settle(e); stamp(e, 2)
    set_work(0)
    for n in range(6): reads(0, n)

    queue = []
    def add(ops, gslot):
        for o in ops:
            queue.append((o[0], o[1], o[2] if len(o) > 2 else None, gslot))
    for p in range(4 if "noact" not in ABL else 0):
        u_u0 = 4 * p + 2
        add(silu_ops(vG[p & 1], 32), 36 * u_u0 + 3)
        u_n = 4 * p + 4
        add(h_ops(vG[p & 1], vU, 2 * p), 36 * u_n + 3)
        add(h_ops(vG[p & 1] + 16, vU + 16, 2 * p + 1), 36 * u_n + 3)
    add(silu_ops(vG[0], 16), 36 * 17 + 3)
    add(h_ops(vG[0], vUS, 8), 36 * 18 + 3)
    add(epi_ops(8), 36 * 23 + 3)
    for q in range(3):
        add(epi_ops(2 * q), 36 * (24 + q) + 3)
        add(epi_ops(2 * q + 1), 36 * (24 + q) + 3)
    deadlines = {}
    for p in range(3): deadlines[36 * (4 * p + 6)] = ("hst", 2 * p + 1)
    deadlines[36 * 18 + 32] = ("hst", 8)
    deadlines[36 * 18] = ("hst", 7)

    def drain_until(tag):
        while any(o[2] == tag for o in queue):
            t, c, tg, nb = queue.pop(0)
            if tg: e.vmem(t, tg)
            else: e(t)

    for u in range(NUNIT):
        dm = {}
        if u >= 1 and u + 3 < NUNIT and not ("nodma" in ABL and u + 3 < 18):
            g = dma_ops(u + 3)
            dm[1] = [(s, False) for s in g[0][0]]
            for q, sl in enumerate((4, 7, 10, 13)): dm[sl] = [(g[0][1][q], True)]
            dm[16] = [(s, False) for s in g[1][0]]
            for q, sl in enumerate((19, 22, 25, 28)): dm[sl] = [(g[1][1][q], True)]
            dm[30] = [(s, False) for s in g[2][0]]
            dm[31] = [(g[2][1][0], True)]
        for n in range(36):
            gs = 36 * u + n
            if gs in deadlines: drain_until(deadlines[gs])
            cost = 0
            if n % 3 == 0:
                if n == 33 and u + 1 < NUNIT:
                    tags = [("u", u + 1)]
                    if "nodma" in ABL and 4 <= u + 1 < 18: tags = [("u", 3)]
                    if u == 19: tags.append(("hst", 8))
                    nvm = e.vm_count(tags)
                    if DIAG and "waitstamp" in ABL and 4 <= u <= 24:
                        e("s_waitcnt lgkmcnt(0)"); settle(e)
                        e(f"s_memtime s[88:89]"); e("s_waitcnt lgkmcnt(0)")
                        e(f"s_waitcnt vmcnt({min(nvm,63)})")
                        e(f"s_memtime s[90:91]"); e("s_waitcnt lgkmcnt(0)")
                        e("s_barrier")
                        e(f"s_memtime s[92:93]"); e("s_waitcnt lgkmcnt(0)")
                        e("s_sub_u32 s90, s90, s88\ns_sub_u32 s92, s92, s88\ns_lshl_b32 s92, s92, 16\ns_or_b32 s90, s90, s92")
                        e(f"v_writelane_b32 v15, s90, {38 + u}")
                    e(f"s_waitcnt vmcnt({min(nvm,63)}) lgkmcnt(0)")
                    settle(e)
                    e("s_barrier")
                    stamp(e, 4 + u)
                    set_work(u + 1)
                    if u == 19:
                        e(f"v_mov_b32 v{vFBIT}, 1")
                        e.vmem(f"buffer_store_dword v{vFBIT}, v{vOB}, s[{S_WS}:{S_WS+3}], 0 offen sc1", "flag")
                else:
                    e.wait(lg=[("f", gs), ("f", gs + 1), ("f", gs + 2)])
                cost += 1
            if u == 10 and n == 6:
                e.wait(vm="pollc")
                e(f"v_readfirstlane_b32 s62, v{vPOLL}")
                e("s_nop 3")
                e(f"s_bitcmp1_b32 s62, s{sFbitP}")
                e("s_cbranch_scc0 K1_spinc")
                e.l.append("K1_spinc_done:")
            if u == 21 and n == 6:
                e.wait(vm="poll")
                e(f"v_readfirstlane_b32 s62, v{vPOLL}")
                e("s_nop 3")
                e(f"s_cmp_eq_u32 s62, 1")
                e("s_cbranch_scc0 K1_spin")
                e.l.append("K1_spin_done:")
            e(mfma(u, n))
            if n <= 29: reads(u, n + 6); cost += 2
            elif n >= 33 and u + 1 < NUNIT:
                reads(u + 1, 2 * (n - 33)); reads(u + 1, 2 * (n - 33) + 1); cost += 4
            for s, isv in dm.get(n, []):
                if isv: e.vmem(s, ("u", u + 3))
                else: e(s)
                cost += 1
            if n == TOUCH_SLOT and u + PF < NUNIT and "notouch" not in ABL:
                for t, isv in touch_ops(u + PF):
                    if isv: e.vmem(t, "touch")
                    else: e(t)
                    cost += 1
            if u == 20 and n == 24:
                e.vmem(f"buffer_load_dword v{vPOLL}, v{vZERO}, s[{S_WS}:{S_WS+3}], s{sOBp} offen sc1", "poll"); cost += 1
            if u == 8 and n == 24:
                e.vmem(f"buffer_load_dword v{vPOLL}, v{vZERO}, s[{S_DBG}:{S_DBG+3}], s{sFoffP} offen sc1", "pollc"); cost += 1
            if u == 21 and 6 <= n < 24:
                k = n - 6
                if k % 4 == 0: e(f"s_add_u32 s63, s{sHXp}, {k * 1024}"); cost += 1
                e.vmem(f"buffer_load_dwordx4 {ar(4 * k)}, v{vL16}, s[{S_WS}:{S_WS+3}], s63 offen offset:{(k % 4) * 1024} sc1", "hp"); cost += 1
            if u == 22 and n == 17:
                pass
            if n == 32: continue
            if u == 22 and n == 16:
                e.wait(vm="hp")
            while queue and queue[0][3] <= gs and cost + queue[0][1] <= 5:
                t, c, tg, nb = queue.pop(0)
                if tg: e.vmem(t, tg)
                else: e(t)
                cost += c
    e("s_nop 7"); e("s_nop 7")
    while queue:
        t, c, tg, nb = queue.pop(0)
        if tg: e.vmem(t, tg)
        else: e(t)
    for t in epi_ops(6) + epi_ops(7):
        e(t[0])
    if DIAG:
        e("s_waitcnt lgkmcnt(0)"); settle(e); stamp(e, 40); e("s_waitcnt lgkmcnt(0)"); settle(e)
    e("s_waitcnt vmcnt(0)")
    if DIAG:
        stamp(e, 41); e("s_waitcnt lgkmcnt(0)"); settle(e)
        e(f"s_lshl_b32 s60, s2, 2\ns_add_u32 s60, s60, s{sW}\ns_lshl_b32 s60, s60, 8\ns_add_u32 s60, s60, {WS_DIAG}")
        e(f"v_lshrrev_b32 v14, 2, v{vL16}")
        e(f"buffer_store_dword v15, v14, s[{S_WS}:{S_WS+3}], s60 offen")
        e("s_waitcnt vmcnt(0)")
    e.l.append("K1_end:")
    e("s_endpgm")
    for nm, srd_, so, test in (("K1_spin", S_WS, sOBp, "s_cmp_eq_u32 s62, 1"), ("K1_spinc", S_DBG, sFoffP, f"s_bitcmp1_b32 s62, s{sFbitP}")):
        e.l.append(nm + ":")
        e(f"""
        s_mov_b32 s63, 0
        {nm}_loop:
        s_sleep 4
        buffer_load_dword v{vPOLL}, v{vZERO}, s[{srd_}:{srd_+3}], s{so} offen sc1
        s_waitcnt vmcnt(0)
        v_readfirstlane_b32 s62, v{vPOLL}
        s_nop 3
        {test}
        s_cbranch_scc1 {nm}_done
        s_add_u32 s63, s63, 1
        s_cmp_lt_u32 s63, 0x40000
        s_cbranch_scc1 {nm}_loop
        s_branch {nm}_done
        """)
    return e.text() + kdesc("k1_kernel", 256, 180, 96)

if __name__ == "__main__":
    print(gen_k1())
```

```python
from common import *

ROWW = 9216; ROWD = 1152; SLOT = 36864
LDS_BYTES = 163840
XB0 = 2 * SLOT; XBW = 20480
FOLD = 4 * SLOT
NUNIT = 28
U_T1 = 22; U_S = 23
DIAG = False
ABL = set()
WS_DIAG = 80 << 20
PF = 6
S_WG, S_WU, S_WD, S_X, S_WS, S_DBG, S_T, S_CD, S_GW, S_SD = 8, 12, 16, 20, 24, 28, 32, 36, 40, 44
sW, sI, sJ, sODD = 48, 49, 50, 51
sGA, sGL, sSA, sSL = 52, 53, 54, 55
sDAo, sDLo, sDAp, sDLp = 56, 57, 58, 59
sUA, sUB, sUL = 60, 61, 62
sM0A, sM0L = 63, 64
sT0 = 65
sHXo, sHXp, sPARTp, sPARTs = 68, 69, 70, 71
sFoffP, sFbitP, sOBp = 72, 73, 74
sTG, sTGs, sTDo, sTDp, sTS = 75, 76, 77, 78, 79
sTrow, sCS, sCcol = 80, 81, 82
sA, sB, sC, sD, sE, sF = 84, 85, 86, 87, 88, 89
sSG = 90
sEA, sEB = 94, 95
vTD = 0; vL16 = 1; vWK = (2, 3)
vPGp = (4, 5); vPGs = 6; vPDp = (7, 8); vPDs = 9
vPOLL = 10; vZERO = 11; vOB = 12; vMISC = 13; vTG = 14; vDIAG = 15
vTMP = 16
vH = 24
vG = (96, 128); vU = 160; vUS = 192
DACC = [128, 144, 160, 176, 208, 224, 96, 112, 192]
vTACC = 192
vDGp, vDGs, vDDp, vDDs = 240, 244, 248, 252
aFR = 144; aHP = 176; aDUM = 248
PS = 8 * 18 * 2048
def vr(b, n=4): return f"v[{b}:{b+n-1}]"
def ar(b, n=4): return f"a[{b}:{b+n-1}]"
def SRD(s): return f"s[{s}:{s+3}]"

def unit_desc(u):
    if u < 4: return dict(kind="GUp", mat="GU"[u & 1], p=0, kh=u >> 1)
    if u < 16:
        p, r = divmod(u, 4)
        return dict(kind="GUp", mat="G" if r < 2 else "U", p=p, kh=r & 1)
    if u == 16: return dict(kind="GUs", mat="G")
    if u == 17: return dict(kind="GUs", mat="U")
    if u < 22: return dict(kind="Dp", ps=1, q=u - 18)
    if u == U_T1: return dict(kind="T")
    if u == U_S: return dict(kind="S")
    return dict(kind="Dp", ps=2, q=u - 24)

vTD_T = 16
vTR = 16

def dma_groups(u, slot=None):
    d = unit_desc(u); sb = (u % 4) * SLOT if slot is None else slot * SLOT
    k = d["kind"]
    if k == "T":
        g = []
        g.append(([f"s_lshl_b32 s{sT0}, s{sW}, 7", f"s_add_u32 s{sT0}, s{sT0}, s{sTrow}", f"s_add_u32 m0, s{sM0A}, {sb}"],
                  [f"buffer_load_dwordx4 v{vTD_T+q}, {SRD(S_T)}, s{sT0} offen{' offset:%d' % (1024*q) if q else ''} lds" for q in range(4)]))
        g.append(([f"s_add_u32 s{sT0+1}, s{sT0}, 512", f"s_add_u32 m0, s{sM0A}, {sb + 16384}"],
                  [f"buffer_load_dwordx4 v{vTD_T+q}, {SRD(S_T)}, s{sT0+1} offen{' offset:%d' % (1024*q) if q else ''} lds" for q in range(4)]))
        g.append(([f"s_add_u32 s{sT0+2}, s{sTrow}, 1024", f"s_add_u32 m0, s{sM0L}, {sb}"],
                  [f"buffer_load_dwordx4 v{vTD_T+4}, {SRD(S_T)}, s{sT0+2} offen lds"]))
        return g
    if k == "GUp":
        srd_ = S_WG if d["mat"] == "G" else S_WU
        c = 288 * d["kh"] * ROWW + 128 * d["p"]
        A, B, L = (sGA, c), (sGA, c + 128 * ROWW), (sGL, c); vo = vDGp
    elif k == "GUs":
        srd_ = S_WG if d["mat"] == "G" else S_WU
        A, B, L = (sSA, 0), (sSA, 256 * ROWW), (sSL, 0); vo = vDGs
    elif k == "Dp":
        srd_ = S_WD
        a, l = (sDAo, sDLo) if d["ps"] == 1 else (sDAp, sDLp)
        c = 128 * d["q"]
        A, B, L = (a, c), (a, c + 128 * ROWD), (l, c); vo = vDDp
    else:
        srd_ = S_WD
        A, B, L = (sUA, 0), (sUB, 0), (sUL, 0); vo = vDDs
    groups = []
    for gi, (base, c) in enumerate((A, B, L)):
        st = sT0 + gi
        pre = [f"s_add_u32 s{st}, s{base}, {c}"]
        pre.append(f"s_add_u32 m0, s{sM0A}, {sb + 16384 * gi}" if gi < 2 else f"s_add_u32 m0, s{sM0L}, {sb}")
        loads = [f"buffer_load_dwordx4 v{vo + q}, {SRD(srd_)}, s{st} offen{' offset:%d' % (1024*q) if q else ''} lds" for q in range(4 if gi < 2 else 1)]
        groups.append((pre, loads))
    return groups

def touch_ops(u):
    d = unit_desc(u); k = d["kind"]; ops = []
    def t(srd_, vo, base, c):
        ops.append((f"s_add_u32 s{sF}, s{base}, {c}", False))
        ops.append((f"buffer_load_dword a{aDUM}, v{vo}, {SRD(srd_)}, s{sF} offen", True))
    if k == "GUp": t(S_WG if d["mat"] == "G" else S_WU, vTG, sTG, 288 * d["kh"] * ROWW + 128 * d["p"])
    elif k == "GUs":
        srd_ = S_WG if d["mat"] == "G" else S_WU
        t(srd_, vTG, sTGs, 0); t(srd_, vTG, sTGs, 288 * ROWW)
    elif k == "Dp": t(S_WD, vTD, sTDo if d["ps"] == 1 else sTDp, 128 * d["q"])
    elif k == "S": t(S_WD, vTD, sTS, 0); t(S_WD, vTD, sTS, 288 * ROWD)
    return ops

def frag_reads(u, n):
    d = unit_desc(u); k = d["kind"]
    tr = "ds_read_b64_tr_b16"
    if k == "GUp":
        ks, hf = n >> 1, n & 1
        return [(0, 2, tr, vWK[hf], 2048 * ks), (2, 2, tr, vWK[hf], 2048 * ks + 512)]
    if k == "GUs": return [(0, 2, tr, vWK[0], 1024 * n), (2, 2, tr, vWK[0], 1024 * n + 256)]
    if k == "Dp":
        ks, hf = n >> 1, n & 1
        return [(0, 2, tr, vWK[hf], 2048 * ks), (2, 2, tr, vWK[hf], 2048 * ks + 1024)]
    if k == "T":
        return [(0, 4, "ds_read_b128", vTR + (n & 3), 4096 * (n >> 2))]
    ks = n % 18; par = n // 18
    R = (256 * par + 16 * ks) if ks < 16 else (512 + 32 * par + 16 * (ks - 16))
    return [(0, 2, tr, vWK[0], 64 * R), (2, 2, tr, vWK[0], 64 * R + 512)]

def unit_patterns(u):
    k = unit_desc(u)["kind"]
    return {"GUp": vPGp, "GUs": (vPGs,), "Dp": vPDp, "S": (vPDs,), "T": ()}[k]

def mfma(u, n):
    d = unit_desc(u); k = d["kind"]; gn = 36 * u + n
    A = ar(aFR + 4 * (gn % 8))
    if k == "GUp":
        ks, hf = n >> 1, n & 1; kk = 18 * d["kh"] + ks
        acc = (vG[d["p"] & 1] if d["mat"] == "G" else vU) + 16 * hf
        B = ar(4 * kk); first = kk == 0
    elif k == "GUs":
        acc = vG[0] if d["mat"] == "G" else vUS
        B = ar(4 * n); first = n == 0
    elif k == "Dp":
        ks, hf = n >> 1, n & 1; acc = DACC[2 * d["q"] + hf]
        if d["ps"] == 1: B = vr(vH + 4 * ks); first = ks == 0
        else: B = ar(aHP + 4 * ks); first = False
    elif k == "T":
        acc = vTACC; first = n == 0
        return f"v_mfma_f32_32x32x16_bf16 {vr(acc,16)}, {ar(4*n)}, {A}, {'0' if first else vr(acc,16)}"
    else:
        acc = DACC[8]; B = vr(vH + 4 * n) if n < 18 else ar(aHP + 4 * (n - 18)); first = n == 0
    return f"v_mfma_f32_32x32x16_bf16 {vr(acc,16)}, {A}, {B}, {'0' if first else vr(acc,16)}"

NLOG2E = "0xbfb8aa3b"
def silu_ops(g0, n):
    ops = []
    for e in range(0, n, 2):
        ta = vTMP + (e % 8); tb = ta + 1; a, b = g0 + e, g0 + e + 1
        ops += [(f"v_mul_f32 v{ta}, {NLOG2E}, v{a}", 1), (f"v_mul_f32 v{tb}, {NLOG2E}, v{b}", 1),
                (f"v_exp_f32 v{ta}, v{ta}", 2), (f"v_exp_f32 v{tb}, v{tb}", 2),
                (f"v_add_f32 v{ta}, 1.0, v{ta}", 1), (f"v_add_f32 v{tb}, 1.0, v{tb}", 1),
                (f"v_rcp_f32 v{ta}, v{ta}", 2), (f"v_rcp_f32 v{tb}, v{tb}", 2),
                (f"v_mul_f32 v{a}, v{a}, v{ta}", 1), (f"v_mul_f32 v{b}, v{b}, v{tb}", 1)]
    return ops
def h_ops(g0, u0, tile):
    ops = []; H = vH + 8 * tile
    for q in range(8):
        a, b = g0 + 2 * q, g0 + 2 * q + 1
        ops += [(f"v_mul_f32 v{a}, v{a}, v{u0 + 2*q}", 1), (f"v_mul_f32 v{b}, v{b}, v{u0 + 2*q + 1}", 1),
                (f"v_cvt_pk_bf16_f32 v{H + q}, v{a}, v{b}", 1, ("h", tile) if q == 7 else None)]
    return ops
def h_store(tile, half):
    off = tile * 2048 + half * 1024
    return [f"s_add_u32 s{sA}, s{sHXo}, {off & ~4095}",
            f"buffer_store_dwordx4 {vr(vH + 8*tile + 4*half)}, v{vL16}, {SRD(S_WS)}, s{sA} offen offset:{off & 4095} sc1"]
vPST = vMISC
def epi_ops(tile):
    T = DACC[tile]
    return [(f"v_cvt_pk_bf16_f32 v{T + q}, v{T + 2*q}, v{T + 2*q + 1}", 1, ("e", tile) if q == 7 else None) for q in range(8)]
def p_store(tile, half):
    T = DACC[tile]
    if tile < 8: base, off = sPARTp, tile * 2048 + half * 1024
    else: base, off = sPARTs, half * 1024
    fl = "" if "plainst" in ABL else " sc1"
    return [f"s_add_u32 s{sB}, s{base}, {off & ~4095}",
            f"buffer_store_dwordx4 {vr(T + 4*half)}, v{vPST}, {SRD(S_WS)}, s{sB} offen offset:{off & 4095}{fl}"]

def stamp(e, idx):
    if not DIAG: return
    e(f"{'s_memtime' if DIAG == 2 else 's_memrealtime'} s[{96 + 2*(idx % 2)}:{97 + 2*(idx % 2)}]")
    e.pending_stamp = idx
def settle(e):
    if not DIAG: return
    idx = getattr(e, "pending_stamp", None)
    if idx is None: return
    e(f"v_writelane_b32 v{vDIAG}, s{96 + 2*(idx % 2)}, {idx}")
    e.pending_stamp = None

def rowcalc(e, dst, vslot, sgrp, t0=16, t1=17):
    e(f"""
    s_lshl_b32 s{sA}, s{sI}, 5
    v_add_u32 v{t0}, s{sA}, v{vslot}          ; s
    s_cmp_eq_u32 s{sgrp}, 0
    s_cselect_b32 s{sA}, 0, 1024
    s_cmp_eq_u32 s{sgrp}, 3
    s_cselect_b32 s{sA}, 2048, s{sA}         ; base
    s_and_b32 s{sB}, s{sgrp}, 1
    v_sub_u32 v{t1}, s{sA}, v{t0}
    v_add_u32 v{dst}, s{sA}, v{t0}
    s_cmp_eq_u32 s{sB}, 1
    s_cselect_b64 vcc, -1, 0
    s_lshl_b32 s{sC}, s{sgrp}, 10
    s_sub_u32 s{sC}, s{sC}, 1536
    v_cndmask_b32 v{dst}, v{dst}, v{t1}, vcc
    v_mov_b32 v{t1}, s{sC}
    s_cmp_ge_u32 s{sgrp}, 2
    s_cselect_b32 s{sB}, 0, -1
    v_cmp_eq_u32 vcc, s{sB}, v{t0}
    s_nop 1
    v_cndmask_b32 v{dst}, v{dst}, v{t1}, vcc
    """)

def T_dma_addr(e, rowbase_in_tile=0):
    ops = []
    ops += [f"v_lshrrev_b32 v21, 7, v{vL16}",
            f"v_bfe_u32 v22, v{vL16}, 4, 3"]
    for q in range(4):
        ops += [f"v_add_u32 v23, {8*q}, v21", f"v_bfe_u32 v20, v23, 1, 3", f"v_xor_b32 v20, v20, v22",
                f"v_mul_u32_u24 v23, 1152, v23", f"v_lshl_add_u32 v{16+q}, v20, 4, v23"]
        if q: ops.append(f"v_subrev_u32 v{16+q}, {1024*q}, v{16+q}")
    ops += [f"s_lshl_b32 s{sE}, s{sW}, 3", f"v_add_u32 v23, s{sE}, v21", f"v_bfe_u32 v20, v23, 1, 3", f"v_xor_b32 v20, v20, v22",
            f"v_mul_u32_u24 v23, 1152, v23", f"v_lshl_add_u32 v20, v20, 4, v23"]
    return ops
def T_read_addr(slotbase):
    ops = [f"v_bfe_u32 v20, v{vL16}, 4, 5",
           f"v_lshrrev_b32 v21, 9, v{vL16}",
           f"v_lshrrev_b32 v22, 3, v20", f"v_lshlrev_b32 v22, 10, v22", f"v_and_b32 v23, 7, v20",
           f"v_lshl_add_u32 v22, v23, 7, v22", f"v_add_u32 v22, {slotbase}, v22",
           f"v_bfe_u32 v23, v20, 1, 3"]
    for q4 in range(4):
        ops += [f"v_add_u32 v20, {2*q4}, v21", f"v_xor_b32 v20, v20, v23", f"v_lshl_add_u32 v{16+q4}, v20, 4, v22"]
    return ops

def prologue(e):
    e(f"""
    s_cmp_ge_u32 s2, 256
    s_cbranch_scc1 K1_end
    {("s_memtime s[100:101]" if DIAG == 2 else "s_memrealtime s[100:101]") if DIAG else ""}
    s_load_dwordx2 s[{S_X}:{S_X+1}], s[0:1], {KA_AX}
    s_load_dwordx2 s[{S_WG}:{S_WG+1}], s[0:1], {KA_WG}
    s_load_dwordx2 s[{S_WU}:{S_WU+1}], s[0:1], {KA_WU}
    s_load_dwordx2 s[{S_WD}:{S_WD+1}], s[0:1], {KA_WD}
    s_load_dwordx2 s[{S_WS}:{S_WS+1}], s[0:1], {KA_WS}
    s_load_dwordx2 s[{S_DBG}:{S_DBG+1}], s[0:1], {KA_DBG}
    s_load_dwordx2 s[{S_CD}:{S_CD+1}], s[0:1], {KA_CD}
    s_load_dwordx2 s[{S_SD}:{S_SD+1}], s[0:1], {KA_SD}
    s_load_dwordx2 s[{S_GW}:{S_GW+1}], s[0:1], {KA_GW}
    v_lshrrev_b32 v2, 6, v0
    v_and_b32 v0, 63, v0
    v_readfirstlane_b32 s{sW}, v2
    v_lshlrev_b32 v{vL16}, 4, v0
    s_and_b32 s{sA}, s2, 1
    s_lshl_b32 s{sA}, s{sA}, 3
    s_lshr_b32 s{sB}, s2, 3
    s_and_b32 s{sC}, s{sB}, 7
    s_add_u32 s{sI}, s{sA}, s{sC}
    s_and_b32 s{sA}, s2, 6
    s_lshl_b32 s{sA}, s{sA}, 1
    s_lshr_b32 s{sB}, s{sB}, 3
    s_add_u32 s{sJ}, s{sA}, s{sB}
    s_and_b32 s{sODD}, s{sJ}, 1
    """)
    e(f"""
    s_lshr_b32 s{sD}, s2, 6
    v_lshrrev_b32 v18, 3, v0
    s_lshl_b32 s{sE}, s{sW}, 3
    v_add_u32 v18, s{sE}, v18
    """)
    rowcalc(e, 19, 18, sD)
    e(f"""
    v_mul_u32_u24 v19, 1152, v19
    v_and_b32 v18, 7, v0
    v_lshl_add_u32 v104, v18, 7, v19
    v_add_u32 v105, 1024, v19
    v_mov_b32 v20, 0x7ff00000
    v_cmp_eq_u32 vcc, 0, v18
    s_nop 1
    v_cndmask_b32 v105, v20, v105, vcc
    """)
    e("v_lshrrev_b32 v21, 3, v0\nv_and_b32 v22, 7, v0")
    for q in range(4):
        e(f"v_add_u32 v18, {8*q}, v21")
        rowcalc(e, 19, 18, sW)
        e(f"""
        v_mul_u32_u24 v19, 1152, v19
        v_bfe_u32 v18, v18, 1, 3
        v_xor_b32 v18, v18, v22
        v_lshl_add_u32 v{96+q}, v18, 4, v19
        """)
    e(f"""
    s_lshr_b32 s{sA}, s2, 3
    s_and_b32 s{sA}, s{sA}, 7
    s_mul_i32 s{sA}, s{sA}, 36
    s_mul_i32 s{sB}, s{sW}, 9
    s_add_u32 s{sA}, s{sA}, s{sB}
    v_add_u32 v16, s{sA}, v0
    s_mov_b32 s{sA}, {ROWW}
    v_mul_lo_u32 v17, v16, s{sA}
    v_mul_u32_u24 v18, {ROWD}, v16
    v_mov_b32 v19, 0x7ff00000
    v_cmp_gt_u32 vcc, 9, v0
    s_mul_i32 s{sA}, s{sJ}, 288            ; F0
    s_lshl_b32 s{sB}, s{sODD}, 5
    v_cndmask_b32 v{vTG}, v19, v17, vcc
    v_cndmask_b32 v106, v19, v18, vcc
    s_add_u32 s83, s{sA}, s{sB}            ; pairbase
    s_lshl_b32 s{sTG}, s83, 1
    s_mul_i32 s{sB}, s{sW}, {32 * ROWW}
    s_add_u32 s{sGA}, s{sB}, s{sTG}
    s_mul_i32 s{sB}, s{sW}, {8 * ROWW}
    s_add_u32 s{sB}, s{sB}, {256 * ROWW}
    s_add_u32 s{sGL}, s{sB}, s{sTG}
    s_lshl_b32 s{sM0A}, s{sW}, 12
    s_lshl_b32 s{sM0L}, s{sW}, 10
    s_add_u32 s{sM0L}, s{sM0L}, 32768
    v_lshrrev_b32 v16, 3, v0             ; r8
    v_bfe_u32 v17, v0, 2, 1
    v_bfe_u32 v18, v0, 4, 1
    v_xor_b32 v17, v17, v18
    v_lshlrev_b32 v17, 6, v17
    v_and_b32 v18, 3, v0
    v_lshl_add_u32 v107, v18, 4, v17
    s_mov_b32 s{sA}, {ROWW}
    v_mul_lo_u32 v17, v16, s{sA}
    v_add_u32 v{vDGp}, v17, v107
    """)
    for q in range(1, 4): e(f"v_add_u32 v{vDGp+q}, {q * (8 * ROWW - 1024)}, v{vDGp}")
    e(f"s_mul_i32 s{sF}, s{sW}, {XBW}\ns_add_u32 s83, s{sF}, {XB0}")
    e("s_waitcnt lgkmcnt(0)")
    if DIAG: e(f"v_mov_b32 v{vDIAG}, 0\nv_writelane_b32 v{vDIAG}, s100, 0")
    for s_, nb in ((S_X, 2048 * ROWD), (S_WG, 576 * ROWW), (S_WU, 576 * ROWW)): srd(e, s_, None, nb)
    if "notouch" not in ABL:
        e.vmem(f"buffer_load_dword a{aDUM}, v104, {SRD(S_X)}, 0 offen", "touch")
        e.vmem(f"buffer_load_dword a{aDUM}, v105, {SRD(S_X)}, 0 offen", "touch")
        for u in range(2):
            for t, isv in touch_ops(u): (e.vmem(t, "touch") if isv else e(t))
    def xdma(kc):
        e(f"s_movk_i32 s{sA}, {128 * kc}")
        for q in range(4):
            e(f"s_add_u32 m0, s83, {(kc % 5) * 4096 + q * 1024}\ns_nop 0")
            e.vmem(f"buffer_load_dwordx4 v{96+q}, {SRD(S_X)}, s{sA} offen lds", ("x", kc))
    for kc in range(5): xdma(kc)
    for u in range(2):
        for pre, loads in dma_groups(u):
            for s in pre: e(s)
            e("s_nop 0")
            for s in loads: e.vmem(s, ("u", u))
    for s_, nb in ((S_WD, 4608 * ROWD), (S_WS, WS_BYTES), (S_DBG, 256), (S_CD, 576 * ROWD), (S_SD, 576 * ROWD), (S_GW, 1152)): srd(e, s_, None, nb)
    e(f"""
    s_mul_i32 s{sA}, s{sJ}, 288          ; F0
    s_lshl_b32 s{sB}, s{sODD}, 5
    s_add_u32 s{sB}, s{sA}, s{sB}
    s_xor_b32 s{sC}, s{sODD}, 1
    s_lshl_b32 s{sC}, s{sC}, 8
    s_add_u32 s{sC}, s{sA}, s{sC}
    s_xor_b32 s{sD}, s{sJ}, 1
    s_mul_i32 s{sD}, s{sD}, 288
    s_lshl_b32 s{sTGs}, s{sC}, 1
    s_mul_i32 s{sE}, s{sW}, {64 * ROWW}
    s_add_u32 s{sSA}, s{sE}, s{sTGs}
    s_mul_i32 s{sE}, s{sW}, {16 * ROWW}
    s_add_u32 s{sE}, s{sE}, {512 * ROWW}
    s_add_u32 s{sSL}, s{sE}, s{sTGs}
    s_mul_i32 s90, s{sODD}, 640
    s_mul_i32 s91, s{sODD}, 576
    s_xor_b32 s92, s{sODD}, 1
    s_lshl_b32 s93, s92, 9
    s_add_u32 s91, s91, s93
    s_mul_i32 s{sE}, s{sA}, {ROWD}
    s_add_u32 s{sTDo}, s{sE}, s90
    s_mul_i32 s{sE}, s{sD}, {ROWD}
    s_add_u32 s{sTDp}, s{sE}, s90
    s_and_b32 s{sE}, s{sJ}, 14
    s_mul_i32 s{sE}, s{sE}, {288 * ROWD}
    s_add_u32 s{sTS}, s{sE}, s91
    s_lshl_b32 s93, s92, 5
    s_add_u32 s93, s{sD}, s93
    s_lshl_b32 s94, s{sODD}, 8
    s_add_u32 s94, s{sD}, s94
    s_lshl_b32 s{sE}, s{sW}, 5
    s_add_u32 s{sF}, s{sB}, s{sE}
    s_mul_i32 s{sF}, s{sF}, {ROWD}
    s_add_u32 s{sDAo}, s{sF}, s90
    s_add_u32 s{sF}, s93, s{sE}
    s_mul_i32 s{sF}, s{sF}, {ROWD}
    s_add_u32 s{sDAp}, s{sF}, s90
    s_lshl_b32 s{sE}, s{sW}, 3
    s_add_u32 s{sF}, s{sC}, s{sE}
    s_mul_i32 s{sF}, s{sF}, {ROWD}
    s_add_u32 s{sDLo}, s{sF}, s90
    s_add_u32 s{sF}, s94, s{sE}
    s_mul_i32 s{sF}, s{sF}, {ROWD}
    s_add_u32 s{sDLp}, s{sF}, s90
    s_lshl_b32 s{sE}, s{sW}, 6
    s_add_u32 s{sF}, s{sB}, s{sE}
    s_mul_i32 s{sF}, s{sF}, {ROWD}
    s_add_u32 s{sUA}, s{sF}, s91
    s_add_u32 s{sF}, s93, s{sE}
    s_mul_i32 s{sF}, s{sF}, {ROWD}
    s_add_u32 s{sUB}, s{sF}, s91
    s_cmp_lt_u32 s{sW}, 2
    s_cselect_b32 s{sF}, s{sC}, s94
    s_and_b32 s{sE}, s{sW}, 1
    s_lshl_b32 s{sE}, s{sE}, 4
    s_add_u32 s{sF}, s{sF}, s{sE}
    s_mul_i32 s{sF}, s{sF}, {ROWD}
    s_add_u32 s{sUL}, s{sF}, s91
    s_lshl_b32 s{sA}, s{sI}, 4
    s_add_u32 s{sA}, s{sA}, s{sJ}
    s_mul_i32 s{sB}, s{sW}, 18432
    s_mul_i32 s{sC}, s{sA}, 73728
    s_add_u32 s{sC}, s{sC}, s{sB}
    s_add_u32 s{sHXo}, s{sC}, {WS_HX}
    s_xor_b32 s{sD}, s{sA}, 1
    s_mul_i32 s{sC}, s{sD}, 73728
    s_add_u32 s{sC}, s{sC}, s{sB}
    s_add_u32 s{sHXp}, s{sC}, {WS_HX}
    s_lshr_b32 s{sB}, s{sI}, 1
    s_mul_i32 s{sB}, s{sB}, {8 * PS}
    s_mul_i32 s{sC}, s{sW}, {2 * PS}
    s_add_u32 s{sB}, s{sB}, s{sC}
    s_lshr_b32 s{sC}, s{sJ}, 1
    s_mul_i32 s{sC}, s{sC}, {18 * 2048}
    s_add_u32 s{sB}, s{sB}, s{sC}
    s_add_u32 s{sB}, s{sB}, {WS_PART}
    s_mul_i32 s{sC}, s{sODD}, {10 * 2048}
    s_add_u32 s{sPARTp}, s{sB}, s{sC}
    s_add_u32 s{sC}, s{sODD}, 8
    s_lshl_b32 s{sC}, s{sC}, 11
    s_add_u32 s{sPARTs}, s{sB}, s{sC}
    ; flags
    s_and_b32 s{sFoffP}, s{sD}, 63
    s_lshl_b32 s{sFoffP}, s{sFoffP}, 2
    s_lshr_b32 s{sFbitP}, s{sD}, 6
    s_lshl_b32 s{sB}, s{sD}, 7
    s_lshl_b32 s{sC}, s{sW}, 2
    s_add_u32 s{sB}, s{sB}, s{sC}
    s_add_u32 s{sOBp}, s{sB}, {WS_FLAG}
    s_and_b32 s{sB}, s{sA}, 63
    s_lshl_b32 s{sB}, s{sB}, 2
    s_lshr_b32 s{sC}, s{sA}, 6
    s_lshl_b32 s{sC}, 1, s{sC}
    v_mov_b32 v{vMISC}, s{sC}
    v_mov_b32 v{vPOLL}, s{sB}
    v_mov_b32 v{vZERO}, 0
    v_mov_b32 v16, 0x7ffffff0
    s_lshl_b32 s{sB}, s{sA}, 7
    s_add_u32 s{sB}, s{sB}, {WS_FLAG}
    s_lshl_b32 s{sC}, s{sW}, 2
    s_add_u32 s{sC}, s{sC}, s{sB}
    v_mov_b32 v{vOB}, s{sC}
    v_mov_b32 v17, s{sB}
    v_cmp_eq_u32 vcc, 0, v0
    s_lshl_b32 s{sC}, s{sW}, 6
    v_add_u32 v18, s{sC}, v0
    v_cndmask_b32 v{vOB}, v16, v{vOB}, vcc
    v_cmp_eq_u32 vcc, 0, v18
    v_mov_b32 v112, 0
    v_mov_b32 v113, 0
    v_cndmask_b32 v{vPOLL}, v16, v{vPOLL}, vcc
    v_cndmask_b32 v110, v16, v17, vcc
    v_mov_b32 v114, 0
    v_mov_b32 v115, 0
    s_cmp_ge_u32 s{sJ}, 9
    s_cselect_b32 s{sCS}, 1, 0
    s_cselect_b32 s{S_T}, s{S_SD}, s{S_CD}
    s_cselect_b32 s{S_T+1}, s{S_SD+1}, s{S_CD+1}
    s_mov_b32 s{S_T+2}, {576 * ROWD}
    s_mov_b32 s{S_T+3}, 0x20000
    s_lshl_b32 s{sB}, s{sCS}, 3
    s_sub_u32 s{sCcol}, s{sJ}, s{sB}
    s_mul_i32 s{sTrow}, s{sCcol}, {32 * ROWD}
    """)
    e.vmem(f"buffer_store_dwordx4 v[112:115], v110, {SRD(S_WS)}, 0 offen sc1", "clr")
    if "notouch" not in ABL:
        for u in range(2, PF):
            for t, isv in touch_ops(u): (e.vmem(t, "touch") if isv else e(t))
    e(f"""
    v_lshrrev_b32 v16, 5, v0             ; h
    v_bfe_u32 v17, v0, 4, 1              ; fb
    v_bfe_u32 v18, v0, 2, 2              ; r
    v_and_b32 v19, 3, v0                 ; c4
    v_lshlrev_b32 v20, 5, v17
    v_lshl_add_u32 v20, v19, 3, v20      ; 32 fb + 8 c4
    v_lshrrev_b32 v21, 1, v18
    v_lshlrev_b32 v21, 6, v21            ; 64*sw
    v_xor_b32 v22, 64, v21
    v_lshl_add_u32 v23, v16, 3, v18      ; 8h + r
    v_lshlrev_b32 v2, 7, v23
    v_add3_u32 v{vPGp[0]}, v2, v21, v20
    v_add3_u32 v{vPGp[1]}, v2, v22, v20
    v_lshl_add_u32 v{vPGs}, v23, 6, v20
    v_lshl_add_u32 v23, v16, 2, v18      ; 4h + r
    v_lshlrev_b32 v2, 7, v23
    v_add3_u32 v{vPDp[0]}, v2, v21, v20
    v_add3_u32 v{vPDp[1]}, v2, v22, v20
    v_lshl_add_u32 v{vPDs}, v23, 6, v20
    v_lshrrev_b32 v16, 3, v0             ; r8
    v_mul_u32_u24 v17, {ROWD}, v16
    v_add_u32 v{vDDp}, v17, v107
    v_lshrrev_b32 v16, 2, v0             ; r16
    v_lshlrev_b32 v17, 4, v19
    s_mov_b32 s{sA}, {ROWW}
    v_mul_lo_u32 v18, v16, s{sA}
    v_add_u32 v{vDGs}, v18, v17
    v_mul_u32_u24 v18, {ROWD}, v16
    v_add_u32 v{vDDs}, v18, v17
    """)
    for q in range(1, 4):
        e(f"v_add_u32 v{vDDp+q}, {q * (8 * ROWD - 1024)}, v{vDDp}")
        e(f"v_add_u32 v{vDGs+q}, {q * (16 * ROWW - 1024)}, v{vDGs}")
        e(f"v_add_u32 v{vDDs+q}, {q * (16 * ROWD - 1024)}, v{vDDs}")
    e(f"""
    v_and_b32 v16, 31, v0
    v_lshrrev_b32 v17, 5, v0
    v_lshrrev_b32 v18, 3, v16
    v_lshlrev_b32 v18, 10, v18
    v_and_b32 v19, 7, v16
    v_lshl_add_u32 v18, v19, 7, v18
    v_add_u32 v18, s83, v18
    v_bfe_u32 v19, v16, 1, 3
    """)
    for q4 in range(4):
        e(f"v_add_u32 v20, {2*q4}, v17\nv_xor_b32 v20, v20, v19\nv_lshl_add_u32 v{100+q4}, v20, 4, v18")
    e(f"v_mov_b32 v{vTD}, v106")
    for kc in range(5):
        e.wait(vm=("x", kc))
        for q4 in range(4):
            e.lds(f"ds_read_b128 {ar(4 * (4*kc + q4))}, v{100+q4} offset:{kc * 4096}", ("xf", 4*kc + q4))
    e("s_waitcnt lgkmcnt(0)")
    stamp(e, 1)
    for q in range(4): e(f"v_mov_b32 v{16+q}, v{96+q}\nv_mov_b32 v{20+q}, v{100+q}")
    for kc in range(5, 9):
        e(f"s_movk_i32 s{sA}, {128 * kc}")
        for q in range(4):
            e(f"s_add_u32 m0, s83, {(kc % 5) * 4096 + q * 1024}\ns_nop 0")
            e.vmem(f"buffer_load_dwordx4 v{16+q}, {SRD(S_X)}, s{sA} offen lds", ("x", kc))

vR = 24; vO = 56; vP = 64; vM = 68; vFA = 72; vFB = 73; vFC = 74; vFD = 75
def fold_write_ops(acc=vTACC):
    ops = [f"s_lshl_b32 s{sE}, s{sW}, 12", f"s_add_u32 s{sE}, s{sE}, {FOLD}", f"v_add_u32 v21, s{sE}, v{vL16}"]
    w = [f"ds_write_b128 v21, {vr(acc + 4*z)} offset:{1024*z}" for z in range(4)]
    return ops, w
def fold_setup_ops():
    ops = [f"s_lshr_b32 s{sE}, s{sW}, 1", f"s_lshl_b32 s{sE}, s{sE}, 11", f"s_add_u32 s{sE}, s{sE}, {FOLD}",
           f"v_add_u32 v{vFB}, s{sE}, v{vL16}",
           f"s_and_b32 s{sE}, s{sW}, 1", f"s_lshl_b32 s{sF}, s{sCS}, 1", f"s_or_b32 s{sE}, s{sE}, s{sF}"]
    masks = [0b1100, 0b1010, 0b0110, 0b0000]
    neg = {0: (2, 3), 1: (1, 3), 2: (1, 2), 3: ()}
    for g in range(4):
        m = sum(1 << i for i in neg[g])
        ops += [f"s_lshr_b32 s{sF}, {m}, s{sE}", f"s_bitcmp1_b32 s{sF}, 0", f"s_cselect_b32 s{sSG+g}, 0xbf800000, 1.0"]
    ops += [f"s_cmp_eq_u32 s{sE}, 0", f"s_cselect_b32 s{sEA}, 1.0, 0", f"s_cselect_b32 s{sEB}, 1.0, 0",
            f"s_cmp_eq_u32 s{sE}, 3", f"s_cselect_b32 s{sEA}, 0xbf800000, s{sEA}", f"s_cselect_b32 s{sEB}, 1.0, s{sEB}"]
    return ops
def fold_reads():
    return [(f"ds_read_b128 {vr(vR + 8*g + 4*z)}, v{vFB} offset:{4096*g + 1024*z}", ("fr", g, z)) for g in range(4) for z in range(2)]
def fold_math(signs=None):
    if signs is None: signs = [f"s{sSG+g}" for g in range(4)]
    ops = []
    for r in range(8):
        R = [vR + 8*g + r for g in range(4)]
        if r == 0:
            ops += [f"v_mul_f32 v{vFD}, {signs[2]}, v{R[2]}", f"v_fma_f32 v{vFD}, {signs[3]}, v{R[3]}, v{vFD}",
                    f"v_mul_f32 v{vFD}, v{vFC}, v{vFD}",
                    f"v_fma_f32 v{vO}, {signs[0]}, v{R[0]}, v{vFD}", f"v_fma_f32 v{vO}, {signs[1]}, v{R[1]}, v{vO}"]
        else:
            ops += [f"v_mul_f32 v{vO+r}, {signs[0]}, v{R[0]}"] + [f"v_fma_f32 v{vO+r}, {signs[g]}, v{R[g]}, v{vO+r}" for g in range(1, 4)]
    for q in range(4): ops.append(f"v_cvt_pk_bf16_f32 v{vP+q}, v{vO+2*q}, v{vO+2*q+1}")
    ops += ["s_nop 1", f"v_permlane32_swap_b32 v{vP}, v{vP+2}", f"v_permlane32_swap_b32 v{vP+1}, v{vP+3}"]
    return ops
def fold_mask_ops():
    return [f"s_lshr_b32 s{sE}, s{sW}, 1", f"s_or_b32 s{sE}, s{sE}, s{sI}", f"s_cmp_eq_u32 s{sE}, 0", f"s_cselect_b32 s{sE}, 512, 0",
            f"v_cmp_gt_u32 vcc, s{sE}, v{vL16}", f"v_mov_b32 v{vFC}, 1.0", "s_nop 0", f"v_cndmask_b32 v{vFC}, v{vFC}, v{vZERO}, vcc"]
def z_addr_ops():
    return [f"s_and_b32 s{sE}, s{sW}, 1", f"s_lshl_b32 s{sE}, s{sE}, 1", f"s_add_u32 s{sE}, s{sE}, s{sCS}",
            f"s_mul_i32 s{sC}, s{sE}, {18*33*1024}", f"s_lshl_b32 s{sE}, s{sI}, 1", f"s_lshr_b32 s{sF}, s{sW}, 1", f"s_add_u32 s{sE}, s{sE}, s{sF}",
            f"s_lshl_b32 s{sE}, s{sE}, 10", f"s_add_u32 s{sC}, s{sC}, s{sE}", f"s_add_u32 s{sC}, s{sC}, {WS_Z}",
            f"s_mul_i32 s{sE}, s{sCcol}, {33*1024}", f"v_add_u32 v{vFA}, s{sE}, v{vL16}",
            f"v_bfe_u32 v{vM}, v{vL16}, 4, 5", f"s_lshl_b32 s{sE}, s{sCcol}, 5", f"v_add_u32 v{vM}, s{sE}, v{vM}",
            f"v_sub_u32 v{vM+1}, 576, v{vM}", f"v_lshrrev_b32 v{vM+2}, 5, v{vM+1}", f"v_mul_u32_u24 v{vM+2}, {33*1024}, v{vM+2}",
            f"v_and_b32 v{vM+1}, 31, v{vM+1}", f"v_lshlrev_b32 v{vM+1}, 4, v{vM+1}", f"v_and_b32 v{vM+3}, 512, v{vL16}",
            f"v_add3_u32 v{vFB}, v{vM+1}, v{vM+2}, v{vM+3}",
            f"v_cmp_eq_u32 vcc, 0, v{vM}", f"v_mov_b32 v{vM+1}, 0x7ff00000", "s_nop 0", f"v_cndmask_b32 v{vFB}, v{vFB}, v{vM+1}, vcc",
            f"s_cmp_eq_u32 s{sCS}, 1", f"s_cselect_b32 s{sD}, 0x80008000, 0"]
def z_store_ops():
    ops = [(f"buffer_store_dwordx4 {vr(vP)}, v{vFA}, {SRD(S_WS)}, s{sC} offen", "vm")]
    ops += [(f"v_xor_b32 v{vM+q}, s{sD}, v{vP+q}", None) for q in range(4)]
    ops += [(f"buffer_store_dwordx4 {vr(vM)}, v{vFB}, {SRD(S_WS)}, s{sC} offen", "vm")]
    return ops
def z512_ops(lbl):
    return f"""
    s_lshr_b32 s{sE}, s{sW}, 1
    s_or_b32 s{sE}, s{sE}, s{sI}
    s_cmp_eq_u32 s{sE}, 0
    s_cbranch_scc0 {lbl}
    v_mul_f32 v{vO}, s{sEA}, v{vR + 16}
    v_fma_f32 v{vO}, s{sEB}, v{vR + 24}, v{vO}
    v_cmp_gt_u32 vcc, 512, v{vL16}
    v_mov_b32 v{vO+1}, 0
    s_nop 0
    v_cndmask_b32 v{vO}, v{vO+1}, v{vO}, vcc
    v_cvt_pk_bf16_f32 v{vO+4}, v{vO}, v{vO+1}
    v_mov_b32 v{vO+5}, 0
    v_mov_b32 v{vO+6}, 0
    v_mov_b32 v{vO+7}, 0
    s_add_u32 s{sE}, s{sC}, {32 * 1024}
    buffer_store_dwordx4 {vr(vO+4)}, v{vFA}, {SRD(S_WS)}, s{sE} offen
    s_nop 1
    v_xor_b32 v{vO+4}, s{sD}, v{vO+4}
    buffer_store_dwordx4 {vr(vO+4)}, v{vFB}, {SRD(S_WS)}, s{sE} offen
    {lbl}:
    """

def gen_main(e):
    def set_work(u):
        pats = unit_patterns(u); sb = (u % 4) * SLOT
        for i, p in enumerate(pats):
            e(f"v_add_u32 v{vWK[i]}, {sb}, v{p}" if sb else f"v_mov_b32 v{vWK[i]}, v{p}")
    def reads(u, n):
        gn = 36 * u + n; b = aFR + 4 * (gn % 8); c = 0
        for (do, nr, ins, va, off) in frag_reads(u, n):
            e.lds(f"{ins} {ar(b + do, nr)}, v{va} offset:{off}", ("f", gn)); c += 1
        return c
    e.wait(vm=("u", 0)); e("s_barrier")
    if DIAG: e("s_waitcnt lgkmcnt(0)"); settle(e); stamp(e, 2)
    set_work(0)
    for n in range(6): reads(0, n)

    queue = []
    def add(ops, gslot):
        for o in ops:
            if isinstance(o, str): o = (o, 1)
            queue.append((o[0], o[1], o[2] if len(o) > 2 else None, gslot))
    done = set()
    def pop():
        t, c, tg, nb = queue.pop(0); e(t)
        if tg: done.add(tg)
        return c
    def drain_until(tag):
        while tag not in done: pop()
    G = lambda u, n: 36 * u + n
    add(silu_ops(vG[0], 32), G(3, 3)); add(h_ops(vG[0], vU, 0), G(4, 3)); add(h_ops(vG[0] + 16, vU + 16, 1), G(4, 3))
    for p in range(1, 4):
        add(silu_ops(vG[p & 1], 32), G(4*p + 2, 3))
        add(h_ops(vG[p & 1], vU, 2*p), G(4*p + 4, 3)); add(h_ops(vG[p & 1] + 16, vU + 16, 2*p + 1), G(4*p + 4, 3))
    add(silu_ops(vG[0], 16), G(17, 3)); add(h_ops(vG[0], vUS, 8), G(18, 3))
    deadlines = {G(6, 0): ("h", 1), G(10, 0): ("h", 3), G(14, 0): ("h", 5), G(18, 0): ("h", 7), G(18, 32): ("h", 8)}
    post = {}
    def P(u, n, text, tag=None): post.setdefault((u, n), []).append((text, tag))
    pre = {}
    def PRE(u, n, fn): pre.setdefault((u, n), []).append(fn)
    def sched_dma(u, tgt, slots):
        g = dma_groups(tgt); i = 0
        for pre_, loads in g:
            for s_ in pre_: P(u, slots[i], s_)
            i += 1
            for s_ in loads: P(u, slots[i], s_, ("u", tgt)); i += 1
    STD = [1, 2, 4, 6, 8, 10, 11, 13, 15, 17, 19, 20]
    sched_dma(1, 2, [6, 7, 8, 9, 10, 11, 12, 13, 14, 15, 16, 17]); sched_dma(1, 3, [18, 19, 20, 21, 22, 23, 24, 25, 26, 27, 28, 29])
    sched_dma(2, 4, [1, 2, 3, 4, 5, 7, 8, 9, 10, 11, 13, 14]); sched_dma(2, 5, [16, 17, 18, 19, 20, 22, 23, 24, 25, 26, 28, 29])
    for u in range(3, NUNIT - 3):
        if u + 3 == U_T1:
            for k_, s_ in enumerate(T_dma_addr(None)): P(u, k_ // 3, s_)
            sched_dma(u, u + 3, [11, 12, 13, 14, 15, 17, 18, 19, 20, 21, 23, 24])
        else:
            sched_dma(u, u + 3, STD)
    if "notouch" not in ABL:
        for u in range(0, NUNIT - PF):
            for t, isv in touch_ops(u + PF): P(u, 22 if u not in (1, 2) else 30, t, "touch" if isv else None)
    def xb_wait(): e.wait(vm=("x", 8))
    PRE(1, 0, xb_wait)
    for k_ in range(16):
        kc = 5 + k_ // 4; q4 = k_ % 4
        P(1, k_ // 4, f"ds_read_b128 {ar(4 * (4*kc + q4))}, v{20+q4} offset:{(kc % 5) * 4096}", ("lds", ("xf", 4*kc + q4)))
    def xb_barrier(): e.wait(lg=("xf", 35)); e("s_barrier")
    PRE(1, 5, xb_barrier)
    P(2, 34, f"buffer_atomic_or v{vMISC}, v{vPOLL}, {SRD(S_DBG)}, 0 offen", "clrbit")
    P(8, 24, f"buffer_load_dword v{vPOLL}, v{vZERO}, {SRD(S_DBG)}, s{sFoffP} offen sc1", "pollc")
    def chk_c():
        e.wait(vm="pollc"); e(f"v_readfirstlane_b32 s{sE}, v{vPOLL}\ns_nop 3\ns_bitcmp1_b32 s{sE}, s{sFbitP}\ns_cbranch_scc0 K1_spinc\nK1_spinc_done:")
    PRE(11, 6, chk_c)
    hs = [(t, h) for t in range(9) for h in range(2)]
    hplan = [(6, 25), (7, 25), (8, 25), (9, 25), (10, 25), (11, 25), (12, 25), (13, 25), (14, 25), (15, 25), (16, 25), (17, 25),
             (18, 23), (18, 29), (19, 27), (19, 32), (20, 23), (20, 29)]
    for (t, h), (u, n) in zip(hs, hplan):
        a, b = h_store(t, h); P(u, n, a); P(u, n, b, ("hst", t))
        need = ("h", t)
        PRE(u, n, (lambda need=need: drain_until(need)))
    def flag():
        e.wait(vm=("hst", 8)); e(f"v_mov_b32 v{vMISC}, 1")
        e.vmem(f"buffer_store_dword v{vMISC}, v{vOB}, {SRD(S_WS)}, 0 offen sc1", "flag")
    PRE(21, 16, flag)
    P(22, 4, f"buffer_load_dword v{vPOLL}, v{vZERO}, {SRD(S_WS)}, s{sOBp} offen sc1", "poll")
    def chk():
        e.wait(vm="poll"); e(f"v_readfirstlane_b32 s{sE}, v{vPOLL}\ns_nop 3\ns_cmp_eq_u32 s{sE}, 1\ns_cbranch_scc0 K1_spin\nK1_spin_done:")
    PRE(22, 23, chk)
    for k_ in range(18):
        u, n = 22, 23 + k_ // 2
        if k_ % 4 == 0: P(u, n, f"s_add_u32 s{sD}, s{sHXp}, {k_ * 1024}")
        P(u, n, f"buffer_load_dwordx4 {ar(aHP + 4*k_)}, v{vL16}, {SRD(S_WS)}, s{sD} offen offset:{(k_ % 4) * 1024} sc1", "hp")
    PRE(U_S, 17, lambda: e.wait(vm="hp"))
    for k_, s_ in enumerate(T_read_addr((U_T1 % 4) * SLOT)): P(21, 18 + k_ // 2, s_)
    pst = [f"v_bfe_u32 v20, v{vL16}, 4, 1", f"v_mul_u32_u24 v20, {PS}, v20" if PS < (1 << 24) else None,
           f"v_bfe_u32 v21, v{vL16}, 5, 4", f"s_and_b32 s{sE}, s{sI}, 1", f"s_lshl_b32 s{sE}, s{sE}, 4", f"v_add_u32 v21, s{sE}, v21",
           f"v_lshlrev_b32 v21, 4, v21", f"v_and_b32 v22, 512, v{vL16}", f"v_add3_u32 v{vPST}, v20, v21, v22"]
    for k_, s_ in enumerate(pst): P(22, 8 + k_, s_)
    a_, w_ = fold_write_ops()
    def t_write():
        for s_ in a_: e(s_)
        e("s_nop 7")
        for s_ in w_: e.lds(s_, "fw")
    PRE(U_S, 0, t_write)
    fo = []
    fo += fold_setup_ops() + fold_mask_ops()
    add(fo, G(24, 0))
    queue.append(("s_nop 0", 1, "fsetup", G(24, 0)))
    PRE(24, 9, lambda: drain_until("fsetup"))
    frs = fold_reads()
    for k_, (s_, tg) in enumerate(frs): P(24, 9 + k_, s_, ("lds", tg))
    PRE(24, 19, lambda: e.wait(lg=("fr", 3, 1)))
    add(z_addr_ops(), G(24, 17)); add(fold_math(), G(24, 19))
    zs = z_store_ops()
    queue.append(("s_nop 0", 1, "zready", G(24, 19)))
    def z_out():
        drain_until("zready")
        for s_, k_ in zs: (e.vmem(s_, "zst") if k_ else e(s_))
        e(z512_ops("K1_noz512"))
    PRE(25, 2, z_out)
    PRE(25, 6, lambda: appendix_dma(e))
    add(epi_ops(8), G(25, 4))
    for q in range(3): add(epi_ops(2*q), G(25 + q, 4)); add(epi_ops(2*q + 1), G(25 + q, 4))
    pplan = {8: [(25, 12), (25, 17)], 0: [(25, 22), (25, 27)], 1: [(25, 32), (26, 6)], 2: [(26, 12), (26, 18)], 3: [(26, 24), (26, 30)],
             4: [(27, 8), (27, 14)], 5: [(27, 20), (27, 26)]}
    for t, pl in pplan.items():
        for h, (u, n) in enumerate(pl):
            a, b = p_store(t, h); P(u, n, a); P(u, n, b, ("pst", t))
            PRE(u, n, (lambda t=t: drain_until(("e", t))))

    for u in range(NUNIT):
        for n in range(36):
            gs = G(u, n)
            if gs in deadlines: drain_until(deadlines[gs])
            cost = 0
            for fn in pre.get((u, n), []): fn()
            if n % 3 == 0:
                if n == 33 and u + 1 < NUNIT:
                    nvm = e.vm_count([("u", u + 1)])
                    e(f"s_waitcnt vmcnt({min(nvm, 63)}) lgkmcnt(0)")
                    settle(e); e("s_barrier"); stamp(e, 4 + u); set_work(u + 1)
                else:
                    e.wait(lg=[("f", gs), ("f", gs + 1), ("f", gs + 2)])
                cost += 1
            e(mfma(u, n))
            if n <= 29: cost += reads(u, n + 6)
            elif n >= 33 and u + 1 < NUNIT:
                cost += reads(u + 1, 2*(n - 33)); cost += reads(u + 1, 2*(n - 33) + 1)
            for s_, tg in post.get((u, n), []):
                if s_ is None: continue
                if isinstance(tg, tuple) and tg[0] == "lds": e.lds(s_, tg[1])
                elif tg is not None: e.vmem(s_, tg)
                else: e(s_)
                cost += 1
            if n == 32: continue
            while queue and queue[0][3] <= gs and cost + queue[0][1] <= 5: cost += pop()
    e("s_nop 7\ns_nop 7")
    while queue: pop()
    for t in (6, 7):
        for o in epi_ops(t): e(o[0])
        for h in range(2):
            a, b = p_store(t, h); e(a); e.vmem(b, ("pst", t))

APX_SLOT = 0
def appendix_dma(e):
    sb = APX_SLOT * SLOT
    e(f"s_cmp_gt_u32 s{sJ}, 2\ns_cbranch_scc1 K1_apx_nodma")
    for s_ in T_dma_addr(None): e(s_)
    e(f"""
    s_cmp_eq_u32 s{sJ}, 2
    s_cselect_b32 s{S_T}, s{S_GW}, s{S_SD}
    s_cselect_b32 s{S_T+1}, s{S_GW+1}, s{S_SD+1}
    s_mov_b32 s{sF}, {576 * ROWD}
    s_cselect_b32 s{S_T+2}, 1152, s{sF}
    s_cmp_eq_u32 s{sJ}, 0
    s_cselect_b32 s{sCcol}, 8, 0
    s_mov_b32 s{sCS}, 1
    s_mul_i32 s{sTrow}, s{sCcol}, {32 * ROWD}
    v_add_u32 v21, {288 * ROWD}, v{vL16}
    """)
    u = U_T1
    for gi, (pre_, loads) in enumerate(dma_groups(u, slot=APX_SLOT)):
        for s_ in pre_: e(s_)
        e("s_nop 0")
        for q, s_ in enumerate(loads):
            special = (gi < 2 and q == 0) or gi == 2
            if not special: e(s_); continue
            lbl = f"K1_apx_n{gi}"
            e(f"s_cmp_eq_u32 s{sJ}, 1\ns_cbranch_scc0 {lbl}")
            if gi == 2: e(f"s_cmp_eq_u32 s{sW}, 0\ns_cbranch_scc0 {lbl}")
            st = sT0 + gi
            e(f"s_mov_b64 exec, 0xff\nbuffer_load_dwordx4 v21, {SRD(S_CD)}, s83 offen lds" if False else "")
            e(f"s_mov_b64 exec, 0xff")
            e(f"buffer_load_dwordx4 v21, {SRD(S_CD)}, s{st} offen lds")
            e(f"s_not_b64 exec, exec")
            e(s_)
            e(f"s_mov_b64 exec, -1\ns_branch {lbl}_d\n{lbl}:")
            e(s_)
            e(f"{lbl}_d:")
    e("K1_apx_nodma:")

def appendix(e):
    sb = APX_SLOT * SLOT
    e(f"s_cmp_gt_u32 s{sJ}, 2\ns_cbranch_scc1 K1_fin")
    for s_ in T_read_addr(sb): e(s_)
    e("s_waitcnt vmcnt(0) lgkmcnt(0)\ns_barrier")
    def tile(swap, lbl):
        for n in range(4): e(f"ds_read_b128 {ar(aFR + 4*n)}, v{vTR + (n & 3)} offset:{4096 * (n >> 2)}")
        for n in range(36):
            if n + 4 < 36: e(f"ds_read_b128 {ar(aFR + 4*((n + 4) % 8))}, v{vTR + ((n + 4) & 3)} offset:{4096 * ((n + 4) >> 2)}")
            e(f"s_waitcnt lgkmcnt({min(4, 35 - n)})")
            F = ar(aFR + 4 * (n % 8)); X = ar(4 * n); C = "0" if n == 0 else vr(vTACC, 16)
            e(f"v_mfma_f32_32x32x16_bf16 {vr(vTACC,16)}, {F if swap else X}, {X if swap else F}, {C}")
        e("s_nop 7\ns_nop 7")
    e(f"s_cmp_eq_u32 s{sJ}, 2\ns_cbranch_scc1 K1_gate")
    tile(False, "t")
    a_, w_ = fold_write_ops()
    for s_ in a_ + w_: e(s_)
    e("s_waitcnt lgkmcnt(0)\ns_barrier")
    for s_ in fold_setup_ops() + fold_mask_ops(): e(s_)
    for s_, tg in fold_reads(): e(s_)
    vS = 76; vE = 80
    e(f"s_and_b32 s{sE}, s{sW}, 1")
    neg = {0: (), 1: (1,), 2: (1,), 3: ()}
    e(f"""
    v_bfe_u32 v84, v{vL16}, 4, 5
    s_cmp_eq_u32 s{sJ}, 1
    s_cselect_b32 s{sF}, 0, -1
    v_cmp_eq_u32 vcc, s{sF}, v84
    s_mov_b64 s[98:99], vcc
    """ if False else f"""
    v_bfe_u32 v84, v{vL16}, 4, 5
    s_cmp_eq_u32 s{sJ}, 1
    s_cselect_b32 s{sF}, 0, -1
    v_cmp_eq_u32 vcc, s{sF}, v84
    """)
    for g in range(4):
        if g in (1, 2):
            e(f"s_cmp_eq_u32 s{sE}, 1\ns_cselect_b32 s{sF}, 0xbf800000, 1.0")
        else:
            e(f"s_mov_b32 s{sF}, 1.0")
        e(f"v_mov_b32 v{vS+g}, s{sSG+g}\nv_mov_b32 v85, s{sF}\nv_cndmask_b32 v{vS+g}, v{vS+g}, v85, vcc")
    e(f"s_cmp_eq_u32 s{sE}, 0\ns_cselect_b32 s{sF}, 1.0, 0\nv_mov_b32 v85, s{sF}")
    e(f"v_mov_b32 v{vE}, s{sEA}\nv_mov_b32 v{vE+1}, s{sEB}\nv_cndmask_b32 v{vE}, v{vE}, v85, vcc\nv_cndmask_b32 v{vE+1}, v{vE+1}, v85, vcc")
    e(f"v_mov_b32 v86, 0\nv_mov_b32 v87, -1\nv_cndmask_b32 v86, v86, v87, vcc")
    e("s_waitcnt lgkmcnt(0)")
    for s_ in fold_math([f"v{vS+g}" for g in range(4)]): e(s_)
    for s_ in z_addr_ops(): e(s_)
    e(f"""
    v_and_b32 v88, 512, v{vL16}
    v_add_u32 v88, {9 * 33 * 1024}, v88
    v_mov_b32 v89, 0x7ff00000
    v_cmp_eq_u32 vcc, -1, v86
    s_nop 1
    v_cndmask_b32 v88, v89, v88, vcc
    s_sub_u32 s{sF}, s{sC}, {18 * 33 * 1024}  ; same (p, ks) in the cosine matrix
    """)
    e(f"buffer_store_dwordx4 {vr(vP)}, v88, {SRD(S_WS)}, s{sF} offen")
    for q in range(4): e(f"v_cndmask_b32 v{vO+q}, v{vP+q}, v{vZERO}, vcc")
    for q in range(4): e(f"v_cndmask_b32 v{vO+4+q}, v{vZERO}, v{vZERO}, vcc")
    e(f"buffer_store_dwordx4 {vr(vO)}, v{vFA}, {SRD(S_WS)}, s{sC} offen")
    e(f"buffer_store_dwordx4 {vr(vO+4)}, v88, {SRD(S_WS)}, s{sC} offen")
    for q in range(4): e(f"v_xor_b32 v{vM+q}, s{sD}, v{vP+q}")
    e(f"buffer_store_dwordx4 {vr(vM)}, v{vFB}, {SRD(S_WS)}, s{sC} offen")
    e(f"""
    s_lshr_b32 s{sE}, s{sW}, 1
    s_or_b32 s{sE}, s{sE}, s{sI}
    s_cmp_eq_u32 s{sE}, 0
    s_cbranch_scc0 K1_fin
    v_mul_f32 v{vO}, v{vE}, v{vR + 16}
    v_fma_f32 v{vO}, v{vE+1}, v{vR + 24}, v{vO}
    v_cmp_gt_u32 vcc, 512, v{vL16}
    v_mov_b32 v{vO+1}, 0
    s_nop 0
    v_cndmask_b32 v{vO}, v{vO+1}, v{vO}, vcc
    v_cvt_pk_bf16_f32 v{vO+4}, v{vO}, v{vO+1}
    v_mov_b32 v{vO+5}, 0
    v_mov_b32 v{vO+6}, 0
    v_mov_b32 v{vO+7}, 0
    s_add_u32 s{sE}, s{sC}, {32 * 1024}
    s_add_u32 s{sF}, s{sF}, {32 * 1024}
    v_cmp_eq_u32 vcc, -1, v86
    s_nop 1
    v_cndmask_b32 v{vM}, v{vO+4}, v{vZERO}, vcc
    v_mov_b32 v{vM+1}, 0
    v_mov_b32 v{vM+2}, 0
    v_mov_b32 v{vM+3}, 0
    buffer_store_dwordx4 {vr(vO+4)}, v88, {SRD(S_WS)}, s{sF} offen
    buffer_store_dwordx4 {vr(vM)}, v{vFA}, {SRD(S_WS)}, s{sE} offen
    v_mov_b32 v{vR}, 0
    v_mov_b32 v{vR+1}, 0
    v_mov_b32 v{vR+2}, 0
    v_mov_b32 v{vR+3}, 0
    buffer_store_dwordx4 {vr(vR)}, v88, {SRD(S_WS)}, s{sE} offen
    s_nop 1
    v_xor_b32 v{vO+4}, s{sD}, v{vO+4}
    s_nop 0
    buffer_store_dwordx4 {vr(vO+4)}, v{vFB}, {SRD(S_WS)}, s{sE} offen
    s_branch K1_fin
    K1_gate:
    """)
    tile(True, "g")
    e(f"v_bfe_u32 v18, v{vL16}, 4, 5")
    rowcalc(e, 19, 18, sW)
    e(f"""
    v_lshlrev_b32 v19, 2, v19
    v_mov_b32 v20, 0x7ff00000
    v_cmp_gt_u32 vcc, 512, v{vL16}
    v_mul_f32 v21, {NLOG2E}, v{vTACC}
    v_exp_f32 v21, v21
    v_cndmask_b32 v19, v20, v19, vcc
    v_add_f32 v21, 1.0, v21
    v_rcp_f32 v21, v21
    s_mov_b32 s{sE}, {WS_G}
    s_nop 0
    buffer_store_dword v21, v19, {SRD(S_WS)}, s{sE} offen
    """)

def gen_k1(name="k1_kernel"):
    e = Emit()
    e.l.append(kbegin(name).rstrip("\n"))
    prologue(e)
    gen_main(e)
    if DIAG: e("s_waitcnt lgkmcnt(0)"); settle(e); stamp(e, 40); e("s_waitcnt lgkmcnt(0)"); settle(e)
    appendix(e)
    e("K1_fin:")
    e("s_waitcnt vmcnt(0)")
    if DIAG:
        stamp(e, 41); e("s_waitcnt lgkmcnt(0)"); settle(e)
        e(f"s_lshl_b32 s{sA}, s2, 2\ns_add_u32 s{sA}, s{sA}, s{sW}\ns_lshl_b32 s{sA}, s{sA}, 8\ns_add_u32 s{sA}, s{sA}, {WS_DIAG}")
        e(f"v_lshrrev_b32 v14, 2, v{vL16}")
        e(f"buffer_store_dword v{vDIAG}, v14, {SRD(S_WS)}, s{sA} offen")
        e("s_waitcnt vmcnt(0)")
    e("K1_end:")
    e("s_endpgm")
    for nm, srd_, so, test in (("K1_spin", S_WS, sOBp, f"s_cmp_eq_u32 s{sE}, 1"), ("K1_spinc", S_DBG, sFoffP, f"s_bitcmp1_b32 s{sE}, s{sFbitP}")):
        e(f"""
        {nm}:
        s_mov_b32 s{sD}, 0
        {nm}_loop:
        s_sleep 4
        buffer_load_dword v{vPOLL}, v{vZERO}, {SRD(srd_)}, s{so} offen sc1
        s_waitcnt vmcnt(0)
        v_readfirstlane_b32 s{sE}, v{vPOLL}
        s_nop 3
        {test}
        s_cbranch_scc1 {nm}_done
        s_add_u32 s{sD}, s{sD}, 1
        s_cmp_lt_u32 s{sD}, 0x40000
        s_cbranch_scc1 {nm}_loop
        s_branch {nm}_done
        """)
    return e.text() + kdesc(name, 256, 252, 102)
if __name__ == "__main__":
    print(gen_k1())
```

```python
from common import *
S_CS, S_SS, S_WS, S_OUT = 8, 12, 16, 20
sW, sB, sG = 32, 33, 34
NW = 6
LDS_BYTES = 2 * 36864
def vr(b, n=4): return f"v[{b}:{b+n-1}]"

def gen_k2(name="k2_kernel"):
    e = Emit()
    e.l.append(kbegin(name).rstrip("\n"))
    e(f"""
    s_cmp_ge_u32 s2, 192
    s_cbranch_scc1 K2_end
    s_load_dwordx2 s[{S_CS}:{S_CS+1}], s[0:1], {KA_CS}
    s_load_dwordx2 s[{S_SS}:{S_SS+1}], s[0:1], {KA_SS}
    s_load_dwordx2 s[{S_WS}:{S_WS+1}], s[0:1], {KA_WS}
    s_load_dwordx2 s[{S_OUT}:{S_OUT+1}], s[0:1], {KA_OUT}
    v_lshrrev_b32 v2, 6, v0
    v_and_b32 v0, 63, v0
    v_readfirstlane_b32 s{sW}, v2
    ; id -> b = id / 3 (m-block 0..63 : i = b>>2, w1 = b&3), eg = id % 3
    s_mul_hi_u32 s{sB}, s2, {-(-(1 << 32) // 3)}
    s_mul_i32 s40, s{sB}, 3
    s_sub_u32 s{sG}, s2, s40
    s_lshr_b32 s41, s{sB}, 3             ; beta
    s_bfe_u32 s42, s{sB}, 0x20001        ; g
    s_and_b32 s44, s{sB}, 1              ; p
    s_lshl_b32 s43, s41, 6
    s_add_u32 s43, s43, s44              ; 64 beta + p
    s_mul_i32 s46, s{sG}, 6
    s_add_u32 s46, s46, s{sW}
    """)
    def rowcalc(dst, mreg):
        e(f"""
        v_lshl_add_u32 v8, v{mreg}, 1, s43          ; s
        s_cmp_eq_u32 s42, 0
        s_cselect_b32 s60, 0, 1024
        s_cmp_eq_u32 s42, 3
        s_cselect_b32 s60, 2048, s60
        s_and_b32 s61, s42, 1
        v_sub_u32 v9, s60, v8
        v_add_u32 v{dst}, s60, v8
        s_cmp_eq_u32 s61, 1
        s_cselect_b64 vcc, -1, 0
        s_lshl_b32 s62, s42, 10
        s_sub_u32 s62, s62, 1536
        v_cndmask_b32 v{dst}, v{dst}, v9, vcc
        v_mov_b32 v9, s62
        s_cmp_ge_u32 s42, 2
        s_cselect_b32 s61, 0, -1
        v_cmp_eq_u32 vcc, s61, v8
        s_nop 1
        v_cndmask_b32 v{dst}, v{dst}, v9, vcc
        """)
    e("v_lshrrev_b32 v3, 3, v0\nv_and_b32 v4, 7, v0")
    for q in range(4):
        e(f"v_add_u32 v5, {8*q}, v3")
        rowcalc(10 + q, 5)
        e(f"""
        v_lshlrev_b32 v{10+q}, 12, v{10+q}
        v_bfe_u32 v6, v5, 1, 3
        v_xor_b32 v6, v6, v4
        v_lshl_add_u32 v{10+q}, v6, 4, v{10+q}
        """)
    e("v_and_b32 v5, 31, v0")
    rowcalc(14, 5)
    e("""
    v_lshrrev_b32 v6, 5, v0
    v_lshrrev_b32 v7, 3, v5
    v_lshlrev_b32 v7, 10, v7
    v_and_b32 v8, 7, v5
    v_lshl_add_u32 v7, v8, 7, v7
    v_bfe_u32 v8, v5, 1, 3
    """)
    for q4 in range(4):
        e(f"""
        v_add_u32 v9, {2*q4}, v6
        v_xor_b32 v9, v9, v8
        v_lshl_add_u32 v{16+q4}, v9, 4, v7
        """)
    e("v_lshlrev_b32 v1, 4, v0")
    e("s_waitcnt lgkmcnt(0)")
    for s_, nb in ((S_CS, 2048 * 4096), (S_SS, 2048 * 4096), (S_WS, WS_BYTES), (S_OUT, 2048 * 1152)):
        srd(e, s_, None, nb)
    PS = 8 * 18 * 2048
    e(f"""
    s_mul_i32 s49, s{sB}, {PS}
    s_lshl_b32 s50, s46, 11
    s_add_u32 s49, s49, s50
    s_add_u32 s49, s49, {WS_PART}
    """)
    vP = 64
    for jp in range(8):
        e.vmem(f"buffer_load_dwordx4 {vr(vP + 8*jp)}, v1, s[{S_WS}:{S_WS+3}], s49 offen", "part")
        e.vmem(f"buffer_load_dwordx4 {vr(vP + 8*jp + 4)}, v1, s[{S_WS}:{S_WS+3}], s49 offen offset:1024", "part")
        if jp < 7: e(f"s_add_u32 s49, s49, {18 * 2048}")
    e(f"v_lshlrev_b32 v15, 2, v14\ns_mov_b32 s51, {WS_G}")
    e.vmem(f"buffer_load_dword v20, v15, s[{S_WS}:{S_WS+3}], s51 offen", "g")
    e(f"s_mul_i32 s52, s{sW}, 3")
    for gi in range(3):
        e(f"""
        s_add_u32 s53, s52, {gi}
        s_cmp_ge_u32 s53, 9
        s_cselect_b32 s54, 9, 0
        s_sub_u32 s54, s53, s54              ; kc
        s_lshl_b32 s55, s54, 7
        s_lshl_b32 s56, s53, 12
        s_cmp_ge_u32 s53, 9
        s_cbranch_scc1 K2_ss{gi}
        """)
        for q in range(4):
            e(f"s_add_u32 m0, s56, {1024*q}\ns_nop 0")
            e(f"buffer_load_dwordx4 v{10+q}, s[{S_CS}:{S_CS+3}], s55 offen lds")
        e(f"s_branch K2_dn{gi}\nK2_ss{gi}:")
        for q in range(4):
            e(f"s_add_u32 m0, s56, {1024*q}\ns_nop 0")
            e(f"buffer_load_dwordx4 v{10+q}, s[{S_SS}:{S_SS+3}], s55 offen lds")
        e(f"K2_dn{gi}:")
        for q in range(4): e.vm.append("m")
    e(f"""
    s_lshl_b32 s57, s44, 1
    s_mul_i32 s57, s57, 18
    s_add_u32 s57, s57, s46
    s_mul_i32 s57, s57, {33*1024}
    s_add_u32 s57, s57, {WS_Z}
    """)
    vZ = 128
    acc = 32
    def zload(cs, ks, slot):
        off = cs * 18 * 33 * 1024 + ks * 1024
        e(f"s_add_u32 s58, s57, {off & ~4095}")
        e.vmem(f"buffer_load_dwordx4 {vr(vZ + 4*slot)}, v1, s[{S_WS}:{S_WS+3}], s58 offen offset:{off & 4095}", ("z", cs, ks))
    seq = [(cs, ks) for cs in range(2) for ks in range(33)]
    NBUF = 30
    for n in range(NBUF): zload(*seq[n], n % NBUF)
    e.wait(vm="m"); e("s_barrier")
    fb = 24
    def bread(n):
        cs, ks = seq[n]
        off = cs * 36864 + (ks >> 2) * 4096
        d = fb + 4 * (n & 1)
        if off > 65535:
            e(f"v_add_u32 v21, {off & ~0x7fff}, v{16 + (ks & 3)}")
            e.lds(f"ds_read_b128 {vr(d)}, v21 offset:{off & 0x7fff}", ("b", n))
        else:
            e.lds(f"ds_read_b128 {vr(d)}, v{16 + (ks & 3)} offset:{off}", ("b", n))
    bread(0)
    for n in range(len(seq)):
        if n + 1 < len(seq): bread(n + 1)
        e.wait(vm=("z", *seq[n]), lg=("b", n))
        e(f"v_mfma_f32_32x32x16_bf16 {vr(acc,16)}, {vr(vZ + 4*(n % NBUF))}, {vr(fb + 4*(n & 1))}, {'0' if n == 0 else vr(acc,16)}")
        if n + NBUF < len(seq): zload(*seq[n + NBUF], n % NBUF)
    e.wait(vm=["part", "g"])
    bs = 48
    for jp in range(8):
        for q in range(8):
            src = vP + 8 * jp + q
            if jp == 0:
                e(f"v_lshlrev_b32 v{bs + 2*q}, 16, v{src}")
                e(f"v_and_b32 v{bs + 2*q + 1}, 0xffff0000, v{src}")
            else:
                e(f"v_lshlrev_b32 v22, 16, v{src}")
                e(f"v_and_b32 v23, 0xffff0000, v{src}")
                e(f"v_add_f32 v{bs + 2*q}, v{bs + 2*q}, v22")
                e(f"v_add_f32 v{bs + 2*q + 1}, v{bs + 2*q + 1}, v23")
    e("s_nop 7")
    for r in range(16):
        e(f"v_sub_f32 v{acc + r}, v{acc + r}, v{bs + r}")
        e(f"v_fma_f32 v{acc + r}, v20, v{acc + r}, v{bs + r}")
    for q in range(8):
        e(f"v_cvt_pk_bf16_f32 v{64 + q}, v{acc + 2*q}, v{acc + 2*q + 1}")
    e("s_nop 1")
    for z in range(2):
        e(f"v_permlane32_swap_b32 v{64 + 4*z}, v{66 + 4*z}")
        e(f"v_permlane32_swap_b32 v{65 + 4*z}, v{67 + 4*z}")
    e(f"""
    s_movk_i32 s58, 1152
    v_mul_lo_u32 v15, v14, s58
    v_lshrrev_b32 v6, 5, v0
    v_lshl_add_u32 v15, v6, 4, v15
    s_lshl_b32 s59, s46, 6
    buffer_store_dwordx4 {vr(64)}, v15, s[{S_OUT}:{S_OUT+3}], s59 offen
    buffer_store_dwordx4 {vr(68)}, v15, s[{S_OUT}:{S_OUT+3}], s59 offen offset:32
    K2_end:
    s_endpgm
    """)
    return e.text() + kdesc(name, 256, 0, 72)
if __name__ == "__main__":
    print(gen_k2())
```

```python
import sys, os
sys.path.insert(0, os.path.dirname(os.path.abspath(__file__)))
from common import *
import k1, ka, k2, k1v2
def header(launches):
    s = ""
    for (k, g, b, lds) in launches:
        s += f"; @launch kernel={k} grid=({g},1,1) block=({b},1,1) lds={lds}\n"
    s += '.amdgcn_target "amdgcn-amd-amdhsa--gfx950"\n.text\n'
    return s
def build_k1_only():
    return header([("k1_kernel", 256, 256, k1.LDS_BYTES)]) + k1.gen_k1()
def build_k1_diag():
    k1.DIAG = True
    return build_k1_only()
def build_k1_diag2():
    k1.DIAG = 2
    return build_k1_only()
TOP = open(os.path.join(os.path.dirname(os.path.abspath(__file__)), "top_comment.txt")).read()
def build_v1():
    return TOP + header([("ka_kernel", 170, 256, ka.LDS_BYTES), ("k1_kernel", 256, 256, k1.LDS_BYTES), ("k2_kernel", 192, 384, k2.LDS_BYTES)]) + ka.gen_ka() + k1.gen_k1() + k2.gen_k2()
def build_v2():
    return TOP + header([("k1_kernel", 256, 256, k1v2.LDS_BYTES), ("k2_kernel", 192, 384, k2.LDS_BYTES)]) + k1v2.gen_k1() + k2.gen_k2()
def build_k1v2(name):
    k1v2.DIAG = 1
    k1v2.ABL = set(name.split("+")) - {"base"}
    for a in k1v2.ABL:
        if a.startswith("pf"): k1v2.PF = int(a[2:])
    return header([("k1_kernel", 256, 256, k1v2.LDS_BYTES)]) + k1v2.gen_k1()
def build_abl(name):
    k1.DIAG = 1
    k1.ABL = set(name.split("+")) - {"base"}
    for a in k1.ABL:
        if a.startswith("pf"): k1.PF = int(a[2:])
    return build_k1_only()
if __name__ == "__main__":
    what = sys.argv[1]; out = sys.argv[2]
    if what.startswith("k1v2:"): open(out, "w").write(build_k1v2(what[5:]))
    elif what.startswith("abl:"): open(out, "w").write(build_abl(what[4:]))
    else: open(out, "w").write(globals()["build_" + what]())
```

```python
from common import *

ROWW = 9216; ROWD = 1152; SLOT = 36864
LDS_BYTES = 163840
XB0 = 2 * SLOT; XBW = 20480
FOLD = 4 * SLOT
NUNIT = 28
U_T1 = 22; U_S = 23
DIAG = False
VERBOSE = False
ABL = set()
WS_DIAG = 80 << 20
PF = 6
S_WG, S_WU, S_WD, S_X, S_WS, S_DBG, S_T, S_CD, S_GW, S_SD = 8, 12, 16, 20, 24, 28, 32, 36, 40, 44
sW, sI, sJ, sODD = 48, 49, 50, 51
sGA, sGL, sSA, sSL = 52, 53, 54, 55
sDAo, sDLo, sDAp, sDLp = 56, 57, 58, 59
sUA, sUB, sUL = 60, 61, 62
sM0A, sM0L = 63, 64
sT0 = 65
sHXo, sHXp, sPARTp, sPARTs = 68, 69, 70, 71
sFoffP, sFbitP, sOBp = 72, 73, 74
sTG, sTGs, sTDo, sTDp, sTS = 75, 76, 77, 78, 79
sTrow, sCS, sCcol = 80, 81, 82
sA, sB, sC, sD, sE, sF = 84, 85, 86, 87, 88, 89
sSG = 90
sEA, sEB = 94, 95
sXS = 3
sXB2, sXB3 = 83, 95
sXB, sTCH, sHST, sPST = 4, 5, 6, 7
vTD = 0; vL16 = 1; vWK = (2, 3)
vPGp = (4, 5); vPGs = 6; vPDp = (7, 8); vPDs = 9
vPOLL = 10; vZERO = 11; vOB = 12; vMISC = 13; vTG = 14; vDIAG = 15
vTMP = 16
vH = 24
vG = (96, 128); vU = 160; vUS = 192
DACC = [128, 144, 160, 176, 208, 224, 96, 112, 192]
vTACC = 192
vDGp, vDGs, vDDp, vDDs = 240, 244, 248, 252
aFR = 144; aHP = 176; aDUM = 248
PS = 8 * 18 * 2048
def vr(b, n=4): return f"v[{b}:{b+n-1}]"
def ar(b, n=4): return f"a[{b}:{b+n-1}]"
def SRD(s): return f"s[{s}:{s+3}]"

def unit_desc(u):
    if u < 4: return dict(kind="GUp", mat="GU"[u & 1], p=0, kh=u >> 1)
    if u < 16:
        p, r = divmod(u, 4)
        return dict(kind="GUp", mat="G" if r < 2 else "U", p=p, kh=r & 1)
    if u == 16: return dict(kind="GUs", mat="G")
    if u == 17: return dict(kind="GUs", mat="U")
    if u < 22: return dict(kind="Dp", ps=1, q=u - 18)
    if u == U_T1: return dict(kind="T")
    if u == U_S: return dict(kind="S")
    if u == NUNIT: return dict(kind="T")
    return dict(kind="Dp", ps=2, q=u - 24)

vTD_T = 16
vTR = 16

def dma_groups(u, slot=None):
    d = unit_desc(u); sb = (u % 4) * SLOT if slot is None else slot * SLOT
    k = d["kind"]
    if k == "T":
        g = []
        g.append(([f"s_lshl_b32 s{sT0}, s{sW}, 7", f"s_add_u32 s{sT0}, s{sT0}, s{sTrow}", f"s_add_u32 m0, s{sM0A}, {sb}"],
                  [f"buffer_load_dwordx4 v{vTD_T+q}, {SRD(S_T)}, s{sT0} offen{' offset:%d' % (1024*q) if q else ''} lds" for q in range(4)]))
        g.append(([f"s_add_u32 s{sT0+1}, s{sT0}, 512", f"s_add_u32 m0, s{sM0A}, {sb + 16384}"],
                  [f"buffer_load_dwordx4 v{vTD_T+q}, {SRD(S_T)}, s{sT0+1} offen{' offset:%d' % (1024*q) if q else ''} lds" for q in range(4)]))
        g.append(([f"s_add_u32 s{sT0+2}, s{sTrow}, 1024", f"s_add_u32 m0, s{sM0L}, {sb}"],
                  [f"buffer_load_dwordx4 v{vTD_T+4}, {SRD(S_T)}, s{sT0+2} offen lds"]))
        return g
    if k == "GUp":
        srd_ = S_WG if d["mat"] == "G" else S_WU
        c = 288 * d["kh"] * ROWW + 128 * d["p"]
        A, B, L = (sGA, c), (sGA, c + 128 * ROWW), (sGL, c); vo = vDGp
    elif k == "GUs":
        srd_ = S_WG if d["mat"] == "G" else S_WU
        A, B, L = (sSA, 0), (sSA, 256 * ROWW), (sSL, 0); vo = vDGs
    elif k == "Dp":
        srd_ = S_WD
        a, l = (sDAo, sDLo) if d["ps"] == 1 else (sDAp, sDLp)
        c = 128 * d["q"]
        A, B, L = (a, c), (a, c + 128 * ROWD), (l, c); vo = vDDp
    else:
        srd_ = S_WD
        A, B, L = (sUA, 0), (sUB, 0), (sUL, 0); vo = vDDs
    groups = []
    for gi, (base, c) in enumerate((A, B, L)):
        st = sT0 + gi
        pre = [f"s_add_u32 s{st}, s{base}, {c}"]
        pre.append(f"s_add_u32 m0, s{sM0A}, {sb + 16384 * gi}" if gi < 2 else f"s_add_u32 m0, s{sM0L}, {sb}")
        loads = [f"buffer_load_dwordx4 v{vo + q}, {SRD(srd_)}, s{st} offen{' offset:%d' % (1024*q) if q else ''} lds" for q in range(4 if gi < 2 else 1)]
        groups.append((pre, loads))
    return groups

def touch_ops(u):
    d = unit_desc(u); k = d["kind"]; ops = []
    def t(srd_, vo, base, c):
        ops.append((f"s_add_u32 s{sTCH}, s{base}, {c}", False))
        ops.append((f"buffer_load_dword a{aDUM}, v{vo}, {SRD(srd_)}, s{sTCH} offen", True))
    if k == "GUp": t(S_WG if d["mat"] == "G" else S_WU, vTG, sTG, 288 * d["kh"] * ROWW + 128 * d["p"])
    elif k == "GUs":
        srd_ = S_WG if d["mat"] == "G" else S_WU
        t(srd_, vTG, sTGs, 0); t(srd_, vTG, sTGs, 288 * ROWW)
    elif k == "Dp": t(S_WD, vTD, sTDo if d["ps"] == 1 else sTDp, 128 * d["q"])
    elif k == "S": t(S_WD, vTD, sTS, 0); t(S_WD, vTD, sTS, 288 * ROWD)
    return ops

def frag_reads(u, n):
    d = unit_desc(u); k = d["kind"]
    tr = "ds_read_b64_tr_b16"
    if k == "GUp":
        ks, hf = n >> 1, n & 1
        return [(0, 2, tr, vWK[hf], 2048 * ks), (2, 2, tr, vWK[hf], 2048 * ks + 512)]
    if k == "GUs": return [(0, 2, tr, vWK[0], 1024 * n), (2, 2, tr, vWK[0], 1024 * n + 256)]
    if k == "Dp":
        ks, hf = n >> 1, n & 1
        return [(0, 2, tr, vWK[hf], 2048 * ks), (2, 2, tr, vWK[hf], 2048 * ks + 1024)]
    if k == "T":
        return [(0, 4, "ds_read_b128", vTR + (n & 3), 4096 * (n >> 2))]
    ks = n % 18; par = n // 18
    R = (256 * par + 16 * ks) if ks < 16 else (512 + 32 * par + 16 * (ks - 16))
    return [(0, 2, tr, vWK[0], 64 * R), (2, 2, tr, vWK[0], 64 * R + 512)]

def unit_patterns(u):
    k = unit_desc(u)["kind"]
    return {"GUp": vPGp, "GUs": (vPGs,), "Dp": vPDp, "S": (vPDs,), "T": ()}[k]

def mfma(u, n):
    d = unit_desc(u); k = d["kind"]; gn = 36 * u + n
    A = ar(aFR + 4 * (gn % 8))
    if k == "GUp":
        ks, hf = n >> 1, n & 1; kk = 18 * d["kh"] + ks
        acc = (vG[d["p"] & 1] if d["mat"] == "G" else vU) + 16 * hf
        B = ar(4 * kk); first = kk == 0
    elif k == "GUs":
        acc = vG[0] if d["mat"] == "G" else vUS
        B = ar(4 * n); first = n == 0
    elif k == "Dp":
        ks, hf = n >> 1, n & 1; acc = DACC[2 * d["q"] + hf]
        if d["ps"] == 1: B = vr(vH + 4 * ks); first = ks == 0
        else: B = ar(aHP + 4 * ks); first = False
    elif k == "T":
        acc = vTACC; first = n == 0
        return f"v_mfma_f32_32x32x16_bf16 {vr(acc,16)}, {ar(4*n)}, {A}, {'0' if first else vr(acc,16)}"
    else:
        acc = DACC[8]; B = vr(vH + 4 * n) if n < 18 else ar(aHP + 4 * (n - 18)); first = n == 0
    return f"v_mfma_f32_32x32x16_bf16 {vr(acc,16)}, {A}, {B}, {'0' if first else vr(acc,16)}"

NLOG2E = "0xbfb8aa3b"
class Op:
    __slots__ = ("text", "cost", "deps", "nb", "tag", "at")
    def __init__(self, text, cost=1, deps=(), nb=0, tag=None):
        self.text, self.cost, self.deps, self.nb, self.tag, self.at = text, cost, list(deps), nb, tag, None
sPKC, sPK1 = 90, 92
_tmp_last = {}
def silu_chain(g0, n, nb):
    ops = []; last = {}
    pk = "pk" in ABL
    for e in range(0, n, 2):
        ta = vTMP + (e % 8); a = g0 + e
        prev = [(_tmp_last[t], 1) for t in (ta, ta + 1) if t in _tmp_last]
        if pk:
            m1 = Op(f"v_pk_mul_f32 v[{ta}:{ta+1}], v[{a}:{a+1}], s[{sPKC}:{sPKC+1}]", 1, prev, nb)
            e0 = Op(f"v_exp_f32 v{ta}, v{ta}", 2, [(m1, 1)], nb); e1 = Op(f"v_exp_f32 v{ta+1}, v{ta+1}", 2, [(m1, 1)], nb)
            ad = Op(f"v_pk_add_f32 v[{ta}:{ta+1}], v[{ta}:{ta+1}], s[{sPK1}:{sPK1+1}]", 1, [(e0, 2), (e1, 2)], nb)
            r0 = Op(f"v_rcp_f32 v{ta}, v{ta}", 2, [(ad, 1)], nb); r1 = Op(f"v_rcp_f32 v{ta+1}, v{ta+1}", 2, [(ad, 1)], nb)
            m2 = Op(f"v_pk_mul_f32 v[{a}:{a+1}], v[{a}:{a+1}], v[{ta}:{ta+1}]", 1, [(r0, 2), (r1, 2)], nb)
            ops += [m1, e0, e1, ad, r0, r1, m2]
            _tmp_last[ta] = m2; _tmp_last[ta + 1] = m2; last[e] = m2; last[e + 1] = m2
        else:
            for z in range(2):
                t = ta + z; g = a + z
                m1 = Op(f"v_mul_f32 v{t}, {NLOG2E}, v{g}", 1, [(_tmp_last[t], 1)] if t in _tmp_last else [], nb)
                ex = Op(f"v_exp_f32 v{t}, v{t}", 2, [(m1, 1)], nb)
                ad = Op(f"v_add_f32 v{t}, 1.0, v{t}", 1, [(ex, 2)], nb)
                rc = Op(f"v_rcp_f32 v{t}, v{t}", 2, [(ad, 1)], nb)
                m2 = Op(f"v_mul_f32 v{g}, v{g}, v{t}", 1, [(rc, 2)], nb)
                ops += [m1, ex, ad, rc, m2]
                _tmp_last[t] = m2; last[e + z] = m2
    return ops, last
def h_chain(g0, u0, tile, last, eoff, nb):
    ops = []; H = vH + 8 * tile; prevc = None
    for q in range(8):
        a = g0 + 2 * q
        if "pk" in ABL:
            h0 = Op(f"v_pk_mul_f32 v[{a}:{a+1}], v[{a}:{a+1}], v[{u0+2*q}:{u0+2*q+1}]", 1, [(last[eoff + 2*q], 1)], nb)
            hs = [h0]
        else:
            hs = [Op(f"v_mul_f32 v{a+z}, v{a+z}, v{u0+2*q+z}", 1, [(last[eoff + 2*q + z], 1)], nb) for z in range(2)]
        c = Op(f"v_cvt_pk_bf16_f32 v{H + q}, v{a}, v{a+1}", 1, [(h, 1) for h in hs] + ([(prevc, 1)] if prevc else []), nb,
               ("h", tile) if q == 7 else None)
        prevc = c
        ops += hs + [c]
    return ops
def h_store(tile, half):
    off = tile * 2048 + half * 1024
    return [f"s_add_u32 s{sHST}, s{sHXo}, {off & ~4095}",
            f"buffer_store_dwordx4 {vr(vH + 8*tile + 4*half)}, v{vL16}, {SRD(S_WS)}, s{sHST} offen offset:{off & 4095} sc1"]
vPST = vMISC
def epi_ops(tile):
    T = DACC[tile]
    return [(f"v_cvt_pk_bf16_f32 v{T + q}, v{T + 2*q}, v{T + 2*q + 1}", 1, ("e", tile) if q == 7 else None) for q in range(8)]
def p_store(tile, half):
    T = DACC[tile]
    if tile < 8: base, off = sPARTp, tile * 2048 + half * 1024
    else: base, off = sPARTs, half * 1024
    fl = "" if "plainst" in ABL else " sc1"
    return [f"s_add_u32 s{sPST}, s{base}, {off & ~4095}",
            f"buffer_store_dwordx4 {vr(T + 4*half)}, v{vPST}, {SRD(S_WS)}, s{sPST} offen offset:{off & 4095}{fl}"]

def stamp(e, idx):
    if not DIAG: return
    e(f"{'s_memtime' if DIAG == 2 else 's_memrealtime'} s[{96 + 2*(idx % 2)}:{97 + 2*(idx % 2)}]")
    e.pending_stamp = idx
def settle(e):
    if not DIAG: return
    idx = getattr(e, "pending_stamp", None)
    if idx is None: return
    e(f"v_writelane_b32 v{vDIAG}, s{96 + 2*(idx % 2)}, {idx}")
    e.pending_stamp = None

def pstamp(e, idx):
    if not DIAG: return
    e("s_memrealtime s[96:97]\ns_waitcnt lgkmcnt(0)")
    e(f"v_writelane_b32 v{vDIAG}, s96, {idx}")
def rowcalc(e, dst, vslot, sgrp, t0=16, t1=17):
    e(f"""
    s_lshl_b32 s{sA}, s{sI}, 5
    v_add_u32 v{t0}, s{sA}, v{vslot}          ; s
    s_cmp_eq_u32 s{sgrp}, 0
    s_cselect_b32 s{sA}, 0, 1024
    s_cmp_eq_u32 s{sgrp}, 3
    s_cselect_b32 s{sA}, 2048, s{sA}         ; base
    s_and_b32 s{sB}, s{sgrp}, 1
    v_sub_u32 v{t1}, s{sA}, v{t0}
    v_add_u32 v{dst}, s{sA}, v{t0}
    s_cmp_eq_u32 s{sB}, 1
    s_cselect_b64 vcc, -1, 0
    s_lshl_b32 s{sC}, s{sgrp}, 10
    s_sub_u32 s{sC}, s{sC}, 1536
    v_cndmask_b32 v{dst}, v{dst}, v{t1}, vcc
    v_mov_b32 v{t1}, s{sC}
    s_cmp_ge_u32 s{sgrp}, 2
    s_cselect_b32 s{sB}, 0, -1
    v_cmp_eq_u32 vcc, s{sB}, v{t0}
    s_nop 1
    v_cndmask_b32 v{dst}, v{dst}, v{t1}, vcc
    """)

def T_dma_addr(e, rowbase_in_tile=0):
    ops = []
    ops += [f"v_lshrrev_b32 v21, 7, v{vL16}",
            f"v_bfe_u32 v22, v{vL16}, 4, 3"]
    for q in range(4):
        ops += [f"v_add_u32 v23, {8*q}, v21", f"v_bfe_u32 v20, v23, 1, 3", f"v_xor_b32 v20, v20, v22",
                f"v_mul_u32_u24 v23, 1152, v23", f"v_lshl_add_u32 v{16+q}, v20, 4, v23"]
        if q: ops.append(f"v_subrev_u32 v{16+q}, {1024*q}, v{16+q}")
    ops += [f"s_lshl_b32 s{sE}, s{sW}, 3", f"v_add_u32 v23, s{sE}, v21", f"v_bfe_u32 v20, v23, 1, 3", f"v_xor_b32 v20, v20, v22",
            f"v_mul_u32_u24 v23, 1152, v23", f"v_lshl_add_u32 v20, v20, 4, v23"]
    return ops
def T_read_addr(slotbase):
    ops = [f"v_bfe_u32 v20, v{vL16}, 4, 5",
           f"v_lshrrev_b32 v21, 9, v{vL16}",
           f"v_lshrrev_b32 v22, 3, v20", f"v_lshlrev_b32 v22, 10, v22", f"v_and_b32 v23, 7, v20",
           f"v_lshl_add_u32 v22, v23, 7, v22", f"v_add_u32 v22, {slotbase}, v22",
           f"v_bfe_u32 v23, v20, 1, 3"]
    for q4 in range(4):
        ops += [f"v_add_u32 v20, {2*q4}, v21", f"v_xor_b32 v20, v20, v23", f"v_lshl_add_u32 v{16+q4}, v20, 4, v22"]
    return ops

def prologue(e):
    e(f"""
    s_cmp_ge_u32 s2, 256
    s_cbranch_scc1 K1_end
    {("s_memtime s[100:101]" if DIAG == 2 else "s_memrealtime s[100:101]") if DIAG else ""}
    s_load_dwordx2 s[{S_X}:{S_X+1}], s[0:1], {KA_AX}
    s_load_dwordx2 s[{S_WG}:{S_WG+1}], s[0:1], {KA_WG}
    s_load_dwordx2 s[{S_WU}:{S_WU+1}], s[0:1], {KA_WU}
    s_load_dwordx2 s[{S_WD}:{S_WD+1}], s[0:1], {KA_WD}
    s_load_dwordx2 s[{S_WS}:{S_WS+1}], s[0:1], {KA_WS}
    s_load_dwordx2 s[{S_DBG}:{S_DBG+1}], s[0:1], {KA_DBG}
    s_load_dwordx2 s[{S_CD}:{S_CD+1}], s[0:1], {KA_CD}
    s_load_dwordx2 s[{S_SD}:{S_SD+1}], s[0:1], {KA_SD}
    s_load_dwordx2 s[{S_GW}:{S_GW+1}], s[0:1], {KA_GW}
    v_lshrrev_b32 v2, 6, v0
    v_and_b32 v0, 63, v0
    v_readfirstlane_b32 s{sW}, v2
    v_lshlrev_b32 v{vL16}, 4, v0
    s_and_b32 s{sA}, s2, 1
    s_lshl_b32 s{sA}, s{sA}, 3
    s_lshr_b32 s{sB}, s2, 3
    s_and_b32 s{sC}, s{sB}, 7
    s_add_u32 s{sI}, s{sA}, s{sC}
    s_and_b32 s{sA}, s2, 6
    s_lshl_b32 s{sA}, s{sA}, 1
    s_lshr_b32 s{sB}, s{sB}, 3
    s_add_u32 s{sJ}, s{sA}, s{sB}
    s_and_b32 s{sODD}, s{sJ}, 1
    """)
    e("v_lshrrev_b32 v21, 3, v0\nv_and_b32 v22, 7, v0")
    for q in range(4):
        e(f"v_add_u32 v18, {8*q}, v21")
        rowcalc(e, 19, 18, sW)
        e(f"""
        v_mul_u32_u24 v19, 1152, v19
        v_bfe_u32 v18, v18, 1, 3
        v_xor_b32 v18, v18, v22
        v_lshl_add_u32 v{96+q}, v18, 4, v19
        """)
    e(f"""
    s_mul_i32 s{sA}, s{sJ}, 288            ; F0
    s_lshl_b32 s{sB}, s{sODD}, 5
    s_add_u32 s{sA}, s{sA}, s{sB}          ; pairbase
    s_lshl_b32 s{sTG}, s{sA}, 1
    s_mul_i32 s{sB}, s{sW}, {32 * ROWW}
    s_add_u32 s{sGA}, s{sB}, s{sTG}
    s_mul_i32 s{sB}, s{sW}, {8 * ROWW}
    s_add_u32 s{sB}, s{sB}, {256 * ROWW}
    s_add_u32 s{sGL}, s{sB}, s{sTG}
    s_lshl_b32 s{sM0A}, s{sW}, 12
    s_lshl_b32 s{sM0L}, s{sW}, 10
    s_add_u32 s{sM0L}, s{sM0L}, 32768
    ; GU pair dma voffsets
    v_bfe_u32 v17, v0, 2, 1
    v_bfe_u32 v18, v0, 4, 1
    v_xor_b32 v17, v17, v18
    v_lshlrev_b32 v17, 6, v17
    v_and_b32 v18, 3, v0
    v_lshl_add_u32 v17, v18, 4, v17      ; colb
    s_mov_b32 s{sA}, {ROWW}
    v_mul_lo_u32 v18, v21, s{sA}
    v_add_u32 v{vDGp}, v18, v17
    """)
    for q in range(1, 4): e(f"v_add_u32 v{vDGp+q}, {q * (8 * ROWW - 1024)}, v{vDGp}")
    e(f"s_mul_i32 s{sXS}, s{sW}, {XBW}\ns_add_u32 s{sXS}, s{sXS}, {XB0}")
    e(f"""
    s_lshr_b32 s{sA}, s2, 3
    s_and_b32 s{sA}, s{sA}, 7
    s_mul_i32 s{sA}, s{sA}, 36
    s_mul_i32 s{sB}, s{sW}, 9
    s_add_u32 s{sA}, s{sA}, s{sB}
    v_add_u32 v16, s{sA}, v0
    s_mov_b32 s{sA}, {ROWW}
    v_mul_lo_u32 v17, v16, s{sA}
    v_mov_b32 v18, 0x7ff00000
    v_cmp_gt_u32 vcc, 9, v0
    s_nop 1
    v_cndmask_b32 v{vTG}, v18, v17, vcc
    """)
    e("s_waitcnt lgkmcnt(0)")
    if DIAG: e(f"v_mov_b32 v{vDIAG}, 0\nv_writelane_b32 v{vDIAG}, s100, 0")
    pstamp(e, 50)
    for s_, nb in ((S_X, 2048 * ROWD), (S_WG, 576 * ROWW), (S_WU, 576 * ROWW)): srd(e, s_, None, nb)
    def xdma_rot(pos):
        e(f"s_lshr_b32 s{sB}, s2, 6\ns_add_u32 s{sB}, s{sB}, {pos}\ns_cmp_ge_u32 s{sB}, 5\ns_cselect_b32 s{sC}, 5, 0\ns_sub_u32 s{sB}, s{sB}, s{sC}")
        e(f"s_lshl_b32 s{sA}, s{sB}, 7\ns_lshl_b32 s{sB}, s{sB}, 12\ns_add_u32 s{sB}, s{sB}, s{sXS}")
        for q in range(4):
            e(f"s_add_u32 m0, s{sB}, {q * 1024}\ns_nop 0")
            e.vmem(f"buffer_load_dwordx4 v{96+q}, {SRD(S_X)}, s{sA} offen lds", ("x", "A"))
    def udma(u):
        for pre, loads in dma_groups(u):
            for s in pre: e(s)
            e("s_nop 0")
            for s in loads: e.vmem(s, ("u", u))
    NET = next((int(a[2:]) for a in ABL if a.startswith("et")), 0)
    if "notouch" not in ABL:
        for u in range(NET):
            for t, isv in touch_ops(u): (e.vmem(t, "touch") if isv else e(t))
    for pos in range(5): xdma_rot(pos)
    udma(0); udma(1)
    pstamp(e, 51)
    e(f"""
    v_lshrrev_b32 v16, 5, v0             ; h
    v_bfe_u32 v17, v0, 4, 1              ; fb
    v_bfe_u32 v18, v0, 2, 2              ; r
    v_and_b32 v19, 3, v0                 ; c4
    v_lshlrev_b32 v20, 5, v17
    v_lshl_add_u32 v20, v19, 3, v20      ; 32 fb + 8 c4
    v_lshrrev_b32 v21, 1, v18
    v_lshlrev_b32 v21, 6, v21            ; 64*sw
    v_xor_b32 v22, 64, v21
    v_lshl_add_u32 v23, v16, 3, v18      ; 8h + r
    v_lshlrev_b32 v2, 7, v23
    v_add3_u32 v{vPGp[0]}, v2, v21, v20
    v_add3_u32 v{vPGp[1]}, v2, v22, v20
    v_and_b32 v16, 31, v0
    v_lshrrev_b32 v17, 5, v0
    v_lshrrev_b32 v18, 3, v16
    v_lshlrev_b32 v18, 10, v18
    v_and_b32 v19, 7, v16
    v_lshl_add_u32 v18, v19, 7, v18
    v_add_u32 v18, s{sXS}, v18
    v_bfe_u32 v19, v16, 1, 3
    """)
    for q4 in range(4):
        e(f"v_add_u32 v20, {2*q4}, v17\nv_xor_b32 v20, v20, v19\nv_lshl_add_u32 v{100+q4}, v20, 4, v18")
    pstamp(e, 52)
    e.wait(vm=("x", "A"))
    pstamp(e, 53)
    for kc in range(5):
        for q4 in range(4):
            e.lds(f"ds_read_b128 {ar(4 * (4*kc + q4))}, v{100+q4} offset:{kc * 4096}", ("xf", 4*kc + q4))
    for q in range(4): e(f"v_mov_b32 v{16+q}, v{96+q}\nv_mov_b32 v{20+q}, v{100+q}")
    e.wait(lg=("xf", 19))
    e(f"s_lshl_b32 s{sXB2}, s{sW}, 13\ns_add_u32 s{sXB2}, s{sXB2}, {3 * SLOT}\ns_lshl_b32 s{sXB3}, s{sW}, 12\ns_add_u32 s{sXB3}, s{sXB3}, {FOLD}")
    e(f"s_sub_u32 s{sA}, s{sXB2}, s{sXS}")
    for q in range(4): e(f"v_add_u32 v{20+q}, s{sA}, v{20+q}")
    stamp(e, 1)

def late_setup():
    L = []
    def a(txt):
        for x in txt.split("\n"):
            x = x.split(";")[0].strip()
            if x: L.append(x)
    for s_, nb in ((S_WD, 4608 * ROWD), (S_WS, WS_BYTES), (S_DBG, 256), (S_CD, 576 * ROWD), (S_SD, 576 * ROWD), (S_GW, 1152)):
        a(f"s_and_b32 s{s_+1}, s{s_+1}, 0xffff\ns_mov_b32 s{s_+2}, {nb}\ns_mov_b32 s{s_+3}, 0x20000")
    a(f"""
    s_lshr_b32 s{sA}, s2, 3
    s_and_b32 s{sA}, s{sA}, 7
    s_mul_i32 s{sA}, s{sA}, 36
    s_mul_i32 s{sB}, s{sW}, 9
    s_add_u32 s{sA}, s{sA}, s{sB}
    v_add_u32 v192, s{sA}, v0
    s_mov_b32 s{sA}, {ROWW}
    v_mul_lo_u32 v193, v192, s{sA}
    v_mul_u32_u24 v194, {ROWD}, v192
    v_mov_b32 v195, 0x7ff00000
    v_cmp_gt_u32 vcc, 9, v0
    s_nop 1
    v_cndmask_b32 v{vTG}, v195, v193, vcc
    v_cndmask_b32 v206, v195, v194, vcc
    """)
    L.append(("s_nop 0", "tg_ready"))
    a(f"""
    s_lshl_b32 s{sA}, s{sI}, 4
    s_add_u32 s{sA}, s{sA}, s{sJ}
    s_xor_b32 s{sD}, s{sA}, 1
    s_and_b32 s{sFoffP}, s{sD}, 63
    s_lshl_b32 s{sFoffP}, s{sFoffP}, 2
    s_lshr_b32 s{sFbitP}, s{sD}, 6
    s_lshl_b32 s{sB}, s{sD}, 7
    s_lshl_b32 s{sC}, s{sW}, 2
    s_add_u32 s{sB}, s{sB}, s{sC}
    s_add_u32 s{sOBp}, s{sB}, {WS_FLAG}
    s_and_b32 s{sB}, s{sA}, 63
    s_lshl_b32 s{sB}, s{sB}, 2
    s_lshr_b32 s{sC}, s{sA}, 6
    s_lshl_b32 s{sC}, 1, s{sC}
    v_mov_b32 v{vMISC}, s{sC}
    v_mov_b32 v{vPOLL}, s{sB}
    v_mov_b32 v{vZERO}, 0
    v_mov_b32 v192, 0x7ffffff0
    s_lshl_b32 s{sB}, s{sA}, 7
    s_add_u32 s{sB}, s{sB}, {WS_FLAG}
    s_lshl_b32 s{sC}, s{sW}, 2
    s_add_u32 s{sC}, s{sC}, s{sB}
    v_mov_b32 v{vOB}, s{sC}
    v_mov_b32 v193, s{sB}
    v_cmp_eq_u32 vcc, 0, v0
    s_lshl_b32 s{sC}, s{sW}, 6
    v_add_u32 v194, s{sC}, v0
    v_cndmask_b32 v{vOB}, v192, v{vOB}, vcc
    v_cmp_eq_u32 vcc, 0, v194
    v_mov_b32 v200, 0
    v_mov_b32 v201, 0
    v_cndmask_b32 v{vPOLL}, v192, v{vPOLL}, vcc
    v_cndmask_b32 v204, v192, v193, vcc
    v_mov_b32 v202, 0
    v_mov_b32 v203, 0
    """)
    L.append(("s_nop 0", "clr_ready"))
    a(f"""
    s_mul_i32 s{sB}, s{sW}, 18432
    s_mul_i32 s{sC}, s{sA}, 73728
    s_add_u32 s{sC}, s{sC}, s{sB}
    s_add_u32 s{sHXo}, s{sC}, {WS_HX}
    s_mul_i32 s{sC}, s{sD}, 73728
    s_add_u32 s{sC}, s{sC}, s{sB}
    s_add_u32 s{sHXp}, s{sC}, {WS_HX}
    s_lshr_b32 s{sB}, s{sI}, 1
    s_mul_i32 s{sB}, s{sB}, {8 * PS}
    s_mul_i32 s{sC}, s{sW}, {2 * PS}
    s_add_u32 s{sB}, s{sB}, s{sC}
    s_lshr_b32 s{sC}, s{sJ}, 1
    s_mul_i32 s{sC}, s{sC}, {18 * 2048}
    s_add_u32 s{sB}, s{sB}, s{sC}
    s_add_u32 s{sB}, s{sB}, {WS_PART}
    s_mul_i32 s{sC}, s{sODD}, {10 * 2048}
    s_add_u32 s{sPARTp}, s{sB}, s{sC}
    s_add_u32 s{sC}, s{sODD}, 8
    s_lshl_b32 s{sC}, s{sC}, 11
    s_add_u32 s{sPARTs}, s{sB}, s{sC}
    s_mul_i32 s{sA}, s{sJ}, 288
    s_lshl_b32 s{sB}, s{sODD}, 5
    s_add_u32 s{sB}, s{sA}, s{sB}
    s_xor_b32 s{sC}, s{sODD}, 1
    s_lshl_b32 s{sC}, s{sC}, 8
    s_add_u32 s{sC}, s{sA}, s{sC}
    s_xor_b32 s{sD}, s{sJ}, 1
    s_mul_i32 s{sD}, s{sD}, 288
    s_lshl_b32 s{sTGs}, s{sC}, 1
    s_mul_i32 s{sE}, s{sW}, {64 * ROWW}
    s_add_u32 s{sSA}, s{sE}, s{sTGs}
    s_mul_i32 s{sE}, s{sW}, {16 * ROWW}
    s_add_u32 s{sE}, s{sE}, {512 * ROWW}
    s_add_u32 s{sSL}, s{sE}, s{sTGs}
    s_mul_i32 s90, s{sODD}, 640
    s_mul_i32 s91, s{sODD}, 576
    s_xor_b32 s92, s{sODD}, 1
    s_lshl_b32 s93, s92, 9
    s_add_u32 s91, s91, s93
    s_mul_i32 s{sE}, s{sA}, {ROWD}
    s_add_u32 s{sTDo}, s{sE}, s90
    s_mul_i32 s{sE}, s{sD}, {ROWD}
    s_add_u32 s{sTDp}, s{sE}, s90
    s_and_b32 s{sE}, s{sJ}, 14
    s_mul_i32 s{sE}, s{sE}, {288 * ROWD}
    s_add_u32 s{sTS}, s{sE}, s91
    s_lshl_b32 s93, s92, 5
    s_add_u32 s93, s{sD}, s93
    s_lshl_b32 s94, s{sODD}, 8
    s_add_u32 s94, s{sD}, s94
    s_lshl_b32 s{sE}, s{sW}, 5
    s_add_u32 s{sF}, s{sB}, s{sE}
    s_mul_i32 s{sF}, s{sF}, {ROWD}
    s_add_u32 s{sDAo}, s{sF}, s90
    s_add_u32 s{sF}, s93, s{sE}
    s_mul_i32 s{sF}, s{sF}, {ROWD}
    s_add_u32 s{sDAp}, s{sF}, s90
    s_lshl_b32 s{sE}, s{sW}, 3
    s_add_u32 s{sF}, s{sC}, s{sE}
    s_mul_i32 s{sF}, s{sF}, {ROWD}
    s_add_u32 s{sDLo}, s{sF}, s90
    s_add_u32 s{sF}, s94, s{sE}
    s_mul_i32 s{sF}, s{sF}, {ROWD}
    s_add_u32 s{sDLp}, s{sF}, s90
    s_lshl_b32 s{sE}, s{sW}, 6
    s_add_u32 s{sF}, s{sB}, s{sE}
    s_mul_i32 s{sF}, s{sF}, {ROWD}
    s_add_u32 s{sUA}, s{sF}, s91
    s_add_u32 s{sF}, s93, s{sE}
    s_mul_i32 s{sF}, s{sF}, {ROWD}
    s_add_u32 s{sUB}, s{sF}, s91
    s_cmp_lt_u32 s{sW}, 2
    s_cselect_b32 s{sF}, s{sC}, s94
    s_and_b32 s{sE}, s{sW}, 1
    s_lshl_b32 s{sE}, s{sE}, 4
    s_add_u32 s{sF}, s{sF}, s{sE}
    s_mul_i32 s{sF}, s{sF}, {ROWD}
    s_add_u32 s{sUL}, s{sF}, s91
    s_cmp_ge_u32 s{sJ}, 9
    s_cselect_b32 s{sCS}, 1, 0
    s_cselect_b32 s{S_T}, s{S_SD}, s{S_CD}
    s_cselect_b32 s{S_T+1}, s{S_SD+1}, s{S_CD+1}
    s_mov_b32 s{S_T+2}, {576 * ROWD}
    s_mov_b32 s{S_T+3}, 0x20000
    s_lshl_b32 s{sB}, s{sCS}, 3
    s_sub_u32 s{sCcol}, s{sJ}, s{sB}
    s_mul_i32 s{sTrow}, s{sCcol}, {32 * ROWD}
    v_lshrrev_b32 v192, 5, v0
    v_bfe_u32 v193, v0, 4, 1
    v_bfe_u32 v194, v0, 2, 2
    v_and_b32 v195, 3, v0
    v_lshlrev_b32 v196, 5, v193
    v_lshl_add_u32 v196, v195, 3, v196
    v_lshrrev_b32 v197, 1, v194
    v_lshlrev_b32 v197, 6, v197
    v_xor_b32 v198, 64, v197
    v_lshl_add_u32 v199, v192, 3, v194
    v_lshl_add_u32 v{vPGs}, v199, 6, v196
    v_lshl_add_u32 v199, v192, 2, v194
    v_lshlrev_b32 v205, 7, v199
    v_add3_u32 v{vPDp[0]}, v205, v197, v196
    v_add3_u32 v{vPDp[1]}, v205, v198, v196
    v_lshl_add_u32 v{vPDs}, v199, 6, v196
    v_bfe_u32 v192, v0, 2, 1
    v_bfe_u32 v193, v0, 4, 1
    v_xor_b32 v192, v192, v193
    v_lshlrev_b32 v192, 6, v192
    v_lshl_add_u32 v192, v195, 4, v192
    v_lshrrev_b32 v193, 3, v0
    v_mul_u32_u24 v193, {ROWD}, v193
    v_add_u32 v{vDDp}, v193, v192
    v_lshrrev_b32 v192, 2, v0
    v_lshlrev_b32 v193, 4, v195
    s_mov_b32 s{sA}, {ROWW}
    v_mul_lo_u32 v194, v192, s{sA}
    v_add_u32 v{vDGs}, v194, v193
    v_mul_u32_u24 v194, {ROWD}, v192
    v_add_u32 v{vDDs}, v194, v193
    """)
    for q in range(1, 4):
        a(f"v_add_u32 v{vDDp+q}, {q * (8 * ROWD - 1024)}, v{vDDp}")
        a(f"v_add_u32 v{vDGs+q}, {q * (16 * ROWW - 1024)}, v{vDGs}")
        a(f"v_add_u32 v{vDDs+q}, {q * (16 * ROWD - 1024)}, v{vDDs}")
    a(f"v_mov_b32 v{vTD}, v206")
    L.append(("s_nop 0", "late_done"))
    return [(x, 1) if isinstance(x, str) else (x[0], 1, x[1]) for x in L]

vR = 24; vO = 56; vP = 64; vM = 68; vFA = 72; vFB = 73; vFC = 74; vFD = 75
def fold_write_ops(acc=vTACC):
    ops = [f"s_lshl_b32 s{sE}, s{sW}, 12", f"s_add_u32 s{sE}, s{sE}, {FOLD}", f"v_add_u32 v21, s{sE}, v{vL16}"]
    w = [f"ds_write_b128 v21, {vr(acc + 4*z)} offset:{1024*z}" for z in range(4)]
    return ops, w
def fold_setup_ops():
    ops = [f"s_lshr_b32 s{sE}, s{sW}, 1", f"s_lshl_b32 s{sE}, s{sE}, 11", f"s_add_u32 s{sE}, s{sE}, {FOLD}",
           f"v_add_u32 v{vFB}, s{sE}, v{vL16}",
           f"s_and_b32 s{sE}, s{sW}, 1", f"s_lshl_b32 s{sF}, s{sCS}, 1", f"s_or_b32 s{sE}, s{sE}, s{sF}"]
    masks = [0b1100, 0b1010, 0b0110, 0b0000]
    neg = {0: (2, 3), 1: (1, 3), 2: (1, 2), 3: ()}
    for g in range(4):
        m = sum(1 << i for i in neg[g])
        ops += [f"s_lshr_b32 s{sF}, {m}, s{sE}", f"s_bitcmp1_b32 s{sF}, 0", f"s_cselect_b32 s{sSG+g}, 0xbf800000, 1.0"]
    ops += [f"s_cmp_eq_u32 s{sE}, 0", f"s_cselect_b32 s{sEA}, 1.0, 0", f"s_cselect_b32 s{sEB}, 1.0, 0",
            f"s_cmp_eq_u32 s{sE}, 3", f"s_cselect_b32 s{sEA}, 0xbf800000, s{sEA}", f"s_cselect_b32 s{sEB}, 1.0, s{sEB}"]
    return ops
def fold_reads():
    return [(f"ds_read_b128 {vr(vR + 8*g + 4*z)}, v{vFB} offset:{4096*g + 1024*z}", ("fr", g, z)) for g in range(4) for z in range(2)]
def fold_math(signs=None):
    if signs is None: signs = [f"s{sSG+g}" for g in range(4)]
    ops = []
    for r in range(8):
        R = [vR + 8*g + r for g in range(4)]
        if r == 0:
            ops += [f"v_mul_f32 v{vFD}, {signs[2]}, v{R[2]}", f"v_fma_f32 v{vFD}, {signs[3]}, v{R[3]}, v{vFD}",
                    f"v_mul_f32 v{vFD}, v{vFC}, v{vFD}",
                    f"v_fma_f32 v{vO}, {signs[0]}, v{R[0]}, v{vFD}", f"v_fma_f32 v{vO}, {signs[1]}, v{R[1]}, v{vO}"]
        else:
            ops += [f"v_mul_f32 v{vO+r}, {signs[0]}, v{R[0]}"] + [f"v_fma_f32 v{vO+r}, {signs[g]}, v{R[g]}, v{vO+r}" for g in range(1, 4)]
    for q in range(4): ops.append(f"v_cvt_pk_bf16_f32 v{vP+q}, v{vO+2*q}, v{vO+2*q+1}")
    ops += ["s_nop 1", f"v_permlane32_swap_b32 v{vP}, v{vP+2}", f"v_permlane32_swap_b32 v{vP+1}, v{vP+3}"]
    return ops
def fold_mask_ops():
    return [f"s_lshr_b32 s{sE}, s{sW}, 1", f"s_or_b32 s{sE}, s{sE}, s{sI}", f"s_cmp_eq_u32 s{sE}, 0", f"s_cselect_b32 s{sE}, 512, 0",
            f"v_cmp_gt_u32 vcc, s{sE}, v{vL16}", f"v_mov_b32 v{vFC}, 1.0", "s_nop 0", f"v_cndmask_b32 v{vFC}, v{vFC}, v{vZERO}, vcc"]
def z_addr_ops():
    return [f"s_and_b32 s{sE}, s{sW}, 1", f"s_lshl_b32 s{sE}, s{sE}, 1", f"s_add_u32 s{sE}, s{sE}, s{sCS}",
            f"s_mul_i32 s{sC}, s{sE}, {18*33*1024}", f"s_lshl_b32 s{sE}, s{sI}, 1", f"s_lshr_b32 s{sF}, s{sW}, 1", f"s_add_u32 s{sE}, s{sE}, s{sF}",
            f"s_lshl_b32 s{sE}, s{sE}, 10", f"s_add_u32 s{sC}, s{sC}, s{sE}", f"s_add_u32 s{sC}, s{sC}, {WS_Z}",
            f"s_mul_i32 s{sE}, s{sCcol}, {33*1024}", f"v_add_u32 v{vFA}, s{sE}, v{vL16}",
            f"v_bfe_u32 v{vM}, v{vL16}, 4, 5", f"s_lshl_b32 s{sE}, s{sCcol}, 5", f"v_add_u32 v{vM}, s{sE}, v{vM}",
            f"v_sub_u32 v{vM+1}, 576, v{vM}", f"v_lshrrev_b32 v{vM+2}, 5, v{vM+1}", f"v_mul_u32_u24 v{vM+2}, {33*1024}, v{vM+2}",
            f"v_and_b32 v{vM+1}, 31, v{vM+1}", f"v_lshlrev_b32 v{vM+1}, 4, v{vM+1}", f"v_and_b32 v{vM+3}, 512, v{vL16}",
            f"v_add3_u32 v{vFB}, v{vM+1}, v{vM+2}, v{vM+3}",
            f"v_cmp_eq_u32 vcc, 0, v{vM}", f"v_mov_b32 v{vM+1}, 0x7ff00000", "s_nop 0", f"v_cndmask_b32 v{vFB}, v{vFB}, v{vM+1}, vcc",
            f"s_cmp_eq_u32 s{sCS}, 1", f"s_cselect_b32 s{sD}, 0x80008000, 0"]
def z_store_ops():
    ops = [(f"buffer_store_dwordx4 {vr(vP)}, v{vFA}, {SRD(S_WS)}, s{sC} offen", "vm")]
    ops += [(f"v_xor_b32 v{vM+q}, s{sD}, v{vP+q}", None) for q in range(4)]
    ops += [(f"buffer_store_dwordx4 {vr(vM)}, v{vFB}, {SRD(S_WS)}, s{sC} offen", "vm")]
    return ops
def z512_ops(lbl):
    return f"""
    s_lshr_b32 s{sE}, s{sW}, 1
    s_or_b32 s{sE}, s{sE}, s{sI}
    s_cmp_eq_u32 s{sE}, 0
    s_cbranch_scc0 {lbl}
    v_mul_f32 v{vO}, s{sEA}, v{vR + 16}
    v_fma_f32 v{vO}, s{sEB}, v{vR + 24}, v{vO}
    v_cmp_gt_u32 vcc, 512, v{vL16}
    v_mov_b32 v{vO+1}, 0
    s_nop 0
    v_cndmask_b32 v{vO}, v{vO+1}, v{vO}, vcc
    v_cvt_pk_bf16_f32 v{vO+4}, v{vO}, v{vO+1}
    v_mov_b32 v{vO+5}, 0
    v_mov_b32 v{vO+6}, 0
    v_mov_b32 v{vO+7}, 0
    s_add_u32 s{sE}, s{sC}, {32 * 1024}
    buffer_store_dwordx4 {vr(vO+4)}, v{vFA}, {SRD(S_WS)}, s{sE} offen
    s_nop 1
    v_xor_b32 v{vO+4}, s{sD}, v{vO+4}
    buffer_store_dwordx4 {vr(vO+4)}, v{vFB}, {SRD(S_WS)}, s{sE} offen
    {lbl}:
    """

def gen_main(e):
    def set_work(u):
        pats = unit_patterns(u); sb = (u % 4) * SLOT
        for i, p in enumerate(pats):
            e(f"v_add_u32 v{vWK[i]}, {sb}, v{p}" if sb else f"v_mov_b32 v{vWK[i]}, v{p}")
    def reads(u, n):
        gn = 36 * u + n; b = aFR + 4 * (gn % 8); c = 0
        for (do, nr, ins, va, off) in frag_reads(u, n):
            e.lds(f"{ins} {ar(b + do, nr)}, v{va} offset:{off}", ("f", gn)); c += 1
        return c
    if "pk" in ABL: e(f"s_mov_b32 s{sPKC}, {NLOG2E}\ns_mov_b32 s{sPKC+1}, {NLOG2E}\ns_mov_b32 s{sPK1}, 1.0\ns_mov_b32 s{sPK1+1}, 1.0")
    e.wait(vm=("u", 0)); e("s_barrier")
    if DIAG: e("s_waitcnt lgkmcnt(0)"); settle(e); stamp(e, 2)
    set_work(0)
    for n in range(6): reads(0, n)

    queue = []
    def add(ops, gslot):
        prev = None
        merged = []
        for o in ops:
            if not isinstance(o, Op):
                if isinstance(o, str): o = (o, 1)
                if o[0].startswith("s_cselect") and merged and not isinstance(merged[-1], Op):
                    p_ = merged[-1]
                    assert p_[0].split("\n")[0].startswith(("s_cmp", "s_bitcmp")), p_
                    merged[-1] = (p_[0] + "\n" + o[0], p_[1] + 1) + tuple(p_[2:]); continue
            merged.append(o)
        for o in merged:
            if isinstance(o, Op): queue.append(o); continue
            op = Op(o[0], o[1], [(prev, 1)] if prev else [], gslot, o[2] if len(o) > 2 else None)
            queue.append(op); prev = op
    done = set()
    def ready(o):
        n = len(e.l)
        return all(d.at is not None and n - d.at >= dist for d, dist in o.deps)
    def emit(o):
        queue.remove(o); o.at = len(e.l); e(o.text)
        if o.tag: done.add(o.tag)
        return o.cost
    def fill(gs, room):
        used = 0
        while True:
            for o in queue[:40]:
                if o.nb <= gs and (o.cost <= room - used or (o.cost > 2 and used == 0)) and ready(o):
                    used += emit(o); break
            else: return used
    def force(o):
        for d, dist in o.deps:
            if d.at is None: force(d)
        while not ready(o): e("s_nop 0")
        emit(o)
    def drain_until(tag):
        while tag not in done:
            tgt = next(o for o in queue if o.tag == tag)
            force(tgt)
    def pop(): force(queue[0])
    G = lambda u, n: 36 * u + n
    P_early = []
    add(late_setup(), G(0, 0))
    def xb_dma(u_, kc, slots):
        base = (f"s{sXB2}", (kc - 5) * 4096) if kc < 7 else (f"s{sXB3}", 0)
        P_early.append((u_, slots[0] - 1, f"s_movk_i32 s{sXB}, {128 * kc}", None))
        for q in range(4):
            P_early.append((u_, slots[q] - 1, f"s_add_u32 m0, {base[0]}, {base[1] + q * 1024}", None))
            P_early.append((u_, slots[q], f"buffer_load_dwordx4 v{16+q}, {SRD(S_X)}, s{sXB} offen lds", ("x", kc)))
    xb_dma(0, 5, [1, 2, 3, 4]); xb_dma(0, 6, [5, 6, 7, 8]); xb_dma(0, 7, [9, 10, 11, 12]); xb_dma(1, 8, [7, 8, 9, 10])
    _tmp_last.clear()
    for p in range(4):
        ops, last = silu_chain(vG[p & 1], 32, G(3, 3) if p == 0 else G(4*p + 2, 3)); add(ops, 0)
        add(h_chain(vG[p & 1], vU, 2*p, last, 0, G(4*p + 4, 3)), 0)
        add(h_chain(vG[p & 1] + 16, vU + 16, 2*p + 1, last, 16, G(4*p + 4, 3)), 0)
    ops, last = silu_chain(vG[0], 16, G(17, 3)); add(ops, 0); add(h_chain(vG[0], vUS, 8, last, 0, G(18, 3)), 0)
    deadlines = {G(6, 0): [("h", 0), ("h", 1)], G(10, 0): [("h", 2), ("h", 3)], G(14, 0): [("h", 4), ("h", 5)], G(18, 0): [("h", 6), ("h", 7)], G(18, 32): [("h", 8)]}
    post = {}
    def P(u, n, text, tag=None): post.setdefault((u, n), []).append((text, tag))
    for (u_, n_, t_, g_) in P_early: P(u_, n_, t_, g_)
    pre = {}
    def PRE(u, n, fn): pre.setdefault((u, n), []).append(fn)
    PRE(1, 6, lambda: drain_until("clr_ready"))
    P(1, 30, f"buffer_store_dwordx4 v[200:203], v204, {SRD(S_WS)}, 0 offen sc1", "clr")
    PRE(0, 33, lambda: drain_until("tg_ready"))
    PRE(3, 0, lambda: drain_until("late_done"))
    def sched_dma(u, tgt, slots):
        g = dma_groups(tgt); i = 0
        for pre_, loads in g:
            for s_ in pre_: P(u, slots[i], s_)
            i += 1
            for s_ in loads: P(u, slots[i], s_, ("u", tgt)); i += 1
    STD = [1, 2, 4, 6, 8, 10, 11, 13, 15, 17, 19, 20]
    TWO_A = [1, 2, 3, 4, 5, 7, 8, 9, 10, 11, 13, 14]; TWO_B = [16, 17, 19, 21, 23, 25, 26, 27, 28, 29, 30, 31]
    sched_dma(0, 2, [13, 14, 15, 16, 17, 19, 20, 21, 22, 23, 25, 26])
    sched_dma(1, 4, [12, 13, 15, 17, 19, 21, 22, 24, 26, 27, 28, 29])
    sched_dma(2, 3, [0, 1, 2, 3, 4, 5, 6, 7, 9, 10, 11, 12]); sched_dma(2, 5, TWO_B)
    first_std = 3
    for u in range(first_std, NUNIT - 3):
        if u + 3 == U_T1:
            for k_, s_ in enumerate(T_dma_addr(None)): P(u, k_ // 3, s_)
            sched_dma(u, u + 3, [11, 12, 13, 14, 15, 17, 18, 19, 20, 21, 23, 24])
        else:
            sched_dma(u, u + 3, STD)
    if "notouch" not in ABL:
        NET = next((int(a[2:]) for a in ABL if a.startswith("et")), 0)
        for k_, u in enumerate(range(max(NET, 2), PF)):
            for t, isv in touch_ops(u): P(0, 34 if k_ < 2 else 35, t, "touch" if isv else None)
        for u in range(0, NUNIT - PF):
            for t, isv in touch_ops(u + PF): P(u if u else 1, 22 if u not in (0, 1, 2) else (31 if u == 0 else 32), t, "touch" if isv else None)
    PRE(1, 0, lambda: e.wait(vm=("x", 7)))
    for k_ in range(8):
        kc = 5 + k_ // 4; q4 = k_ % 4
        P(1, k_ // 4, f"ds_read_b128 {ar(4 * (4*kc + q4))}, v{20+q4} offset:{(kc - 5) * 4096}", ("lds", ("xf", 4*kc + q4)))
    P(1, 2, f"s_sub_u32 s{sXB}, s{sXB3}, s{sXB2}")
    for q4 in range(4): P(1, 2, f"v_add_u32 v{20+q4}, s{sXB}, v{20+q4}")
    for q4 in range(4): P(1, 3, f"ds_read_b128 {ar(4 * (28 + q4))}, v{20+q4}", ("lds", ("xf", 28 + q4)))
    PRE(1, 6, lambda: e.wait(lg=("xf", 31)))
    PRE(2, 8, lambda: e.wait(vm=("x", 8)))
    for q4 in range(4): P(2, 8, f"ds_read_b128 {ar(4 * (32 + q4))}, v{20+q4}", ("lds", ("xf", 32 + q4)))
    P(4, 34, f"buffer_atomic_or v{vMISC}, v{vPOLL}, {SRD(S_DBG)}, 0 offen", "clrbit")
    P(8, 24, f"buffer_load_dword v{vPOLL}, v{vZERO}, {SRD(S_DBG)}, s{sFoffP} offen sc1", "pollc")
    def chk_c():
        e.wait(vm="pollc"); e(f"v_readfirstlane_b32 s{sE}, v{vPOLL}\ns_nop 3\ns_bitcmp1_b32 s{sE}, s{sFbitP}\ns_cbranch_scc0 K1_spinc\nK1_spinc_done:")
    PRE(11, 6, chk_c)
    if "notouch" not in ABL:
        tt = [f"s_lshr_b32 s{sE}, s2, 3", f"s_and_b32 s{sE}, s{sE}, 7", f"s_mul_i32 s{sE}, s{sE}, 36", f"s_mul_i32 s{sC}, s{sW}, 9",
              f"s_add_u32 s{sE}, s{sE}, s{sC}", f"s_lshl_b32 s{sE}, s{sE}, 7", f"v_lshlrev_b32 v{vMISC}, 3, v{vL16}",
              f"v_add_u32 v{vMISC}, s{sE}, v{vMISC}", f"v_cmp_gt_u32 vcc, 144, v{vL16}", f"v_mov_b32 v{vPOLL}, 0x7ff00000", "s_nop 0",
              f"v_cndmask_b32 v{vMISC}, v{vPOLL}, v{vMISC}, vcc"]
        for k_, s_ in enumerate(tt): P(12, 26 + k_ // 2, s_)
        P(13, 23, f"buffer_load_dword a{aDUM}, v{vMISC}, {SRD(S_T)}, s{sTrow} offen", "touch")
    hs = [(t, h) for t in range(9) for h in range(2)]
    hplan = [(6, 25), (7, 25), (8, 25), (9, 25), (10, 25), (11, 25), (12, 25), (13, 25), (14, 25), (14, 31), (15, 25), (15, 31),
             (17, 23), (17, 29), (17, 34), (18, 23), (18, 33), (19, 4)]
    for (t, h), (u, n) in zip(hs, hplan):
        a, b = h_store(t, h); P(u, n, a); P(u, n, b, ("hst", t))
        need = ("h", t)
        PRE(u, n, (lambda need=need: drain_until(need)))
    def mkflag(tag, val):
        def f():
            e.wait(vm=tag); e(f"v_mov_b32 v{vMISC}, {val}")
            e.vmem(f"buffer_store_dword v{vMISC}, v{vOB}, {SRD(S_WS)}, 0 offen sc1", ("flag", val))
        return f
    PRE(19, 9, mkflag(("hst", 7), 1)); PRE(20, 0, mkflag(("hst", 8), 2))
    def mkchk(tag, val, lbl):
        def f():
            e.wait(vm=tag)
            e(f"v_readfirstlane_b32 s{sE}, v{vPOLL}\ns_nop 3\ns_cmp_ge_u32 s{sE}, {val}\ns_cbranch_scc0 {lbl}\n{lbl}_done:")
        return f
    P(20, 22, f"buffer_load_dword v{vPOLL}, v{vZERO}, {SRD(S_WS)}, s{sOBp} offen sc1", "poll1")
    PRE(21, 12, mkchk("poll1", 1, "K1_spin"))
    P(22, 0, f"buffer_load_dword v{vPOLL}, v{vZERO}, {SRD(S_WS)}, s{sOBp} offen sc1", "poll2")
    PRE(22, 33, mkchk("poll2", 2, "K1_spin2"))
    hpl = [(21, 21 + 2*k_) for k_ in range(8)] + [(22, 21 + 2*k_) for k_ in range(8)] + [(23, 1), (23, 3)]
    for k_, (u, n) in enumerate(hpl):
        P(u, min(n, 35), f"s_add_u32 s{sD}, s{sHXp}, {(k_ * 1024) & ~4095}")
        P(u, min(n, 35), f"buffer_load_dwordx4 {ar(aHP + 4*k_)}, v{vL16}, {SRD(S_WS)}, s{sD} offen offset:{(k_ * 1024) & 4095} sc1", ("hp", k_))
    PRE(U_S, 17, lambda: e.wait(vm=("hp", 7)))
    PRE(U_S, 25, lambda: e.wait(vm=("hp", 15)))
    PRE(U_S, 33, lambda: e.wait(vm=("hp", 17)))
    for k_, s_ in enumerate(T_read_addr((U_T1 % 4) * SLOT)): P(21, 8 + k_ // 2, s_)
    pst = [f"v_bfe_u32 v20, v{vL16}, 4, 1", f"v_mul_u32_u24 v20, {PS}, v20" if PS < (1 << 24) else None,
           f"v_bfe_u32 v21, v{vL16}, 5, 4", f"s_and_b32 s{sE}, s{sI}, 1", f"s_lshl_b32 s{sE}, s{sE}, 4", f"v_add_u32 v21, s{sE}, v21",
           f"v_lshlrev_b32 v21, 4, v21", f"v_and_b32 v22, 512, v{vL16}", f"v_add3_u32 v{vPST}, v20, v21, v22"]
    for k_, s_ in enumerate(pst): P(22, 8 + k_, s_)
    if DIAG and "probe" in ABL:
        def mk(idx):
            def f():
                e(f"s_memrealtime s[96:97]\ns_waitcnt lgkmcnt(0)\nv_writelane_b32 v{vDIAG}, s96, {idx}")
            return f
        pts = [(19, 33), (20, 0), (20, 1), (21, 0), (21, 30), (21, 33), (22, 0), (22, 21), (22, 22), (22, 33), (23, 0), (23, 17), (23, 18)]
        for k_, (u_, n_) in enumerate(pts):
            pre.setdefault((u_, n_), []).insert(0, mk(44 + k_))
    a_, w_ = fold_write_ops()
    def t_write():
        for s_ in a_: e(s_)
        e("s_nop 7")
        for s_ in w_: e.lds(s_, "fw")
    PRE(U_S, 0, t_write)
    fo = []
    fo += fold_setup_ops() + fold_mask_ops()
    add(fo, G(24, 0))
    add([("s_nop 0", 1, "fsetup")], G(24, 0)); queue[-1].deps = [(queue[-2], 1)]
    PRE(24, 9, lambda: drain_until("fsetup"))
    frs = fold_reads()
    for k_, (s_, tg) in enumerate(frs): P(24, 9 + k_, s_, ("lds", tg))
    PRE(24, 19, lambda: e.wait(lg=("fr", 3, 1)))
    add(z_addr_ops(), G(24, 17)); za_last = queue[-1]; add(fold_math(), G(24, 19))
    zs = z_store_ops()
    add([("s_nop 0", 1, "zready")], G(24, 19)); queue[-1].deps = [(queue[-2], 1), (za_last, 1)]
    def z_out():
        drain_until("zready")
        for s_, k_ in zs: (e.vmem(s_, "zst") if k_ else e(s_))
        e(z512_ops("K1_noz512"))
    PRE(25, 2, z_out)
    apx = {}
    def apx_dma():
        appendix_dma(e); apx["vmidx"] = len(e.vm)
    PRE(25, 6, apx_dma)
    for k_, s_ in enumerate(T_read_addr(APX_SLOT * SLOT)): P(26, 1 + k_ // 2, s_)
    add(epi_ops(8), G(25, 4))
    for q in range(3): add(epi_ops(2*q), G(25 + q, 4)); add(epi_ops(2*q + 1), G(25 + q, 4))
    pplan = {8: [(25, 12), (25, 17)], 0: [(25, 22), (25, 27)], 1: [(25, 32), (26, 6)], 2: [(26, 12), (26, 18)], 3: [(26, 24), (26, 30)],
             4: [(27, 8), (27, 14)], 5: [(27, 20), (27, 26)]}
    for t, pl in pplan.items():
        for h, (u, n) in enumerate(pl):
            a, b = p_store(t, h); P(u, n, a); P(u, n, b, ("pst", t))
            PRE(u, n, (lambda t=t: drain_until(("e", t))))

    def slot(u, n, last_path=None):
        gs = G(u, n)
        if gs in deadlines:
            n0 = len(e.l)
            for tg_ in deadlines[gs]: drain_until(tg_)
            if VERBOSE: print("deadline", u, n, "forced", len(e.l) - n0)
        cost = 0
        for fn in pre.get((u, n), []): fn()
        nxt = u + 1 < NUNIT or last_path == "A"
        if n % 3 == 0:
            if n == 33 and nxt:
                nvm = e.vm_count([("u", u + 1)]) if u + 1 < NUNIT else len(e.vm) - apx["vmidx"]
                e(f"s_waitcnt vmcnt({min(nvm, 63)}) lgkmcnt(0)")
                settle(e); e("s_barrier"); stamp(e, 4 + u)
                if u + 1 < NUNIT: set_work(u + 1)
            else:
                e.wait(lg=[("f", gs), ("f", gs + 1), ("f", gs + 2)])
            cost += 1
        e(mfma(u, n))
        if n <= 29: cost += reads(u, n + 6)
        elif n >= 33 and nxt:
            cost += reads(u + 1, 2*(n - 33)); cost += reads(u + 1, 2*(n - 33) + 1)
        for s_, tg in post.get((u, n), []):
            if s_ is None: continue
            if isinstance(tg, tuple) and tg[0] == "lds": e.lds(s_, tg[1])
            elif tg is not None: e.vmem(s_, tg)
            else: e(s_)
            cost += 1
        if n == 32: return
        fill(gs, 5 - cost)
    for u in range(NUNIT):
        for n in range(36):
            if u == NUNIT - 1 and n == 33: break
            slot(u, n)
    e(f"s_cmp_gt_u32 s{sJ}, 2\ns_cbranch_scc1 K1_tailN")
    sv_vm, sv_lg, sv_pend = list(e.vm), list(e.lg), getattr(e, "pending_stamp", None)
    assert not queue, [o.text for o in queue]
    for n in (33, 34, 35): slot(NUNIT - 1, n, "A")
    add(epi_ops(6), G(NUNIT, 3)); add(epi_ops(7), G(NUNIT, 3))
    for t, pl in {6: [(NUNIT, 10), (NUNIT, 16)], 7: [(NUNIT, 22), (NUNIT, 28)]}.items():
        for h, (u, n) in enumerate(pl):
            a, b = p_store(t, h); P(u, n, a); P(u, n, b, ("pst", t))
            PRE(u, n, (lambda t=t: drain_until(("e", t))))
    for n in range(36):
        gs = G(NUNIT, n)
        cost = 0
        for fn in pre.get((NUNIT, n), []): fn()
        if n % 3 == 0: e.wait(lg=[("f", gs), ("f", gs + 1), ("f", gs + 2)]); cost += 1
        e(mfma(NUNIT, n))
        if n <= 29: cost += reads(NUNIT, n + 6)
        for s_, tg in post.get((NUNIT, n), []):
            (e.vmem(s_, tg) if tg is not None else e(s_)); cost += 1
        fill(gs, 5 - cost)
    appendix_post(e)
    e("s_branch K1_fin")
    e("K1_tailN:")
    e.vm, e.lg = sv_vm, sv_lg; e.pending_stamp = sv_pend
    for n in (33, 34, 35): slot(NUNIT - 1, n, "N")
    e("s_nop 7\ns_nop 7")
    for t in (6, 7):
        for o in epi_ops(t): e(o[0])
        for h in range(2):
            a, b = p_store(t, h); e(a); e.vmem(b, ("pst", t))

APX_SLOT = 0
def appendix_dma(e):
    sb = APX_SLOT * SLOT
    e(f"s_cmp_gt_u32 s{sJ}, 2\ns_cbranch_scc1 K1_apx_nodma")
    for s_ in T_dma_addr(None): e(s_)
    e(f"""
    s_cmp_eq_u32 s{sJ}, 2
    s_cselect_b32 s{S_T}, s{S_GW}, s{S_SD}
    s_cselect_b32 s{S_T+1}, s{S_GW+1}, s{S_SD+1}
    s_mov_b32 s{sF}, {576 * ROWD}
    s_cselect_b32 s{S_T+2}, 1152, s{sF}
    s_cmp_eq_u32 s{sJ}, 0
    s_cselect_b32 s{sCcol}, 8, 0
    s_mov_b32 s{sCS}, 1
    s_mul_i32 s{sTrow}, s{sCcol}, {32 * ROWD}
    v_add_u32 v21, {288 * ROWD}, v{vL16}
    """)
    u = U_T1
    for gi, (pre_, loads) in enumerate(dma_groups(u, slot=APX_SLOT)):
        for s_ in pre_: e(s_)
        e("s_nop 0")
        for q, s_ in enumerate(loads):
            special = (gi < 2 and q == 0) or gi == 2
            if not special: e(s_); continue
            lbl = f"K1_apx_n{gi}"
            e(f"s_cmp_eq_u32 s{sJ}, 1\ns_cbranch_scc0 {lbl}")
            if gi == 2: e(f"s_cmp_eq_u32 s{sW}, 0\ns_cbranch_scc0 {lbl}")
            st = sT0 + gi
            e(f"s_mov_b64 exec, 0xff\nbuffer_load_dwordx4 v21, {SRD(S_CD)}, s83 offen lds" if False else "")
            e(f"s_mov_b64 exec, 0xff")
            e(f"buffer_load_dwordx4 v21, {SRD(S_CD)}, s{st} offen lds")
            e(f"s_not_b64 exec, exec")
            e(s_)
            e(f"s_mov_b64 exec, -1\ns_branch {lbl}_d\n{lbl}:")
            e(s_)
            e(f"{lbl}_d:")
    e("K1_apx_nodma:")

def appendix_post(e):
    e("s_nop 7\ns_nop 7")
    a_, w_ = fold_write_ops()
    for s_ in a_ + w_: e(s_)
    e(f"s_cmp_eq_u32 s{sJ}, 2\ns_cbranch_scc1 K1_gate")
    e("s_waitcnt lgkmcnt(0)\ns_barrier")
    for s_ in fold_setup_ops() + fold_mask_ops(): e(s_)
    for s_, tg in fold_reads(): e(s_)
    vS = 76; vE = 80
    e(f"s_and_b32 s{sE}, s{sW}, 1")
    neg = {0: (), 1: (1,), 2: (1,), 3: ()}
    e(f"""
    v_bfe_u32 v84, v{vL16}, 4, 5
    s_cmp_eq_u32 s{sJ}, 1
    s_cselect_b32 s{sF}, 0, -1
    v_cmp_eq_u32 vcc, s{sF}, v84
    s_mov_b64 s[98:99], vcc
    """ if False else f"""
    v_bfe_u32 v84, v{vL16}, 4, 5
    s_cmp_eq_u32 s{sJ}, 1
    s_cselect_b32 s{sF}, 0, -1
    v_cmp_eq_u32 vcc, s{sF}, v84
    """)
    for g in range(4):
        if g in (1, 2):
            e(f"s_cmp_eq_u32 s{sE}, 1\ns_cselect_b32 s{sF}, 0xbf800000, 1.0")
        else:
            e(f"s_mov_b32 s{sF}, 1.0")
        e(f"v_mov_b32 v{vS+g}, s{sSG+g}\nv_mov_b32 v85, s{sF}\nv_cndmask_b32 v{vS+g}, v{vS+g}, v85, vcc")
    e(f"s_cmp_eq_u32 s{sE}, 0\ns_cselect_b32 s{sF}, 1.0, 0\nv_mov_b32 v85, s{sF}")
    e(f"v_mov_b32 v{vE}, s{sEA}\nv_mov_b32 v{vE+1}, s{sEB}\nv_cndmask_b32 v{vE}, v{vE}, v85, vcc\nv_cndmask_b32 v{vE+1}, v{vE+1}, v85, vcc")
    e(f"v_mov_b32 v86, 0\nv_mov_b32 v87, -1\nv_cndmask_b32 v86, v86, v87, vcc")
    e("s_waitcnt lgkmcnt(0)")
    for s_ in fold_math([f"v{vS+g}" for g in range(4)]): e(s_)
    for s_ in z_addr_ops(): e(s_)
    e(f"""
    v_and_b32 v88, 512, v{vL16}
    v_add_u32 v88, {9 * 33 * 1024}, v88
    v_mov_b32 v89, 0x7ff00000
    v_cmp_eq_u32 vcc, -1, v86
    s_nop 1
    v_cndmask_b32 v88, v89, v88, vcc
    s_sub_u32 s{sF}, s{sC}, {18 * 33 * 1024}  ; same (p, ks) in the cosine matrix
    """)
    e(f"buffer_store_dwordx4 {vr(vP)}, v88, {SRD(S_WS)}, s{sF} offen")
    for q in range(4): e(f"v_cndmask_b32 v{vO+q}, v{vP+q}, v{vZERO}, vcc")
    for q in range(4): e(f"v_cndmask_b32 v{vO+4+q}, v{vZERO}, v{vZERO}, vcc")
    e(f"buffer_store_dwordx4 {vr(vO)}, v{vFA}, {SRD(S_WS)}, s{sC} offen")
    e(f"buffer_store_dwordx4 {vr(vO+4)}, v88, {SRD(S_WS)}, s{sC} offen")
    for q in range(4): e(f"v_xor_b32 v{vM+q}, s{sD}, v{vP+q}")
    e(f"buffer_store_dwordx4 {vr(vM)}, v{vFB}, {SRD(S_WS)}, s{sC} offen")
    e(f"""
    s_lshr_b32 s{sE}, s{sW}, 1
    s_or_b32 s{sE}, s{sE}, s{sI}
    s_cmp_eq_u32 s{sE}, 0
    s_cbranch_scc0 K1_fin
    v_mul_f32 v{vO}, v{vE}, v{vR + 16}
    v_fma_f32 v{vO}, v{vE+1}, v{vR + 24}, v{vO}
    v_cmp_gt_u32 vcc, 512, v{vL16}
    v_mov_b32 v{vO+1}, 0
    s_nop 0
    v_cndmask_b32 v{vO}, v{vO+1}, v{vO}, vcc
    v_cvt_pk_bf16_f32 v{vO+4}, v{vO}, v{vO+1}
    v_mov_b32 v{vO+5}, 0
    v_mov_b32 v{vO+6}, 0
    v_mov_b32 v{vO+7}, 0
    s_add_u32 s{sE}, s{sC}, {32 * 1024}
    s_add_u32 s{sF}, s{sF}, {32 * 1024}
    v_cmp_eq_u32 vcc, -1, v86
    s_nop 1
    v_cndmask_b32 v{vM}, v{vO+4}, v{vZERO}, vcc
    v_mov_b32 v{vM+1}, 0
    v_mov_b32 v{vM+2}, 0
    v_mov_b32 v{vM+3}, 0
    buffer_store_dwordx4 {vr(vO+4)}, v88, {SRD(S_WS)}, s{sF} offen
    buffer_store_dwordx4 {vr(vM)}, v{vFA}, {SRD(S_WS)}, s{sE} offen
    v_mov_b32 v{vR}, 0
    v_mov_b32 v{vR+1}, 0
    v_mov_b32 v{vR+2}, 0
    v_mov_b32 v{vR+3}, 0
    buffer_store_dwordx4 {vr(vR)}, v88, {SRD(S_WS)}, s{sE} offen
    s_nop 1
    v_xor_b32 v{vO+4}, s{sD}, v{vO+4}
    s_nop 0
    buffer_store_dwordx4 {vr(vO+4)}, v{vFB}, {SRD(S_WS)}, s{sE} offen
    s_branch K1_fin
    K1_gate:
    """)
    e(f"""
    v_bfe_u32 v18, v{vL16}, 4, 5
    v_lshrrev_b32 v19, 3, v18
    v_lshlrev_b32 v19, 10, v19
    v_bfe_u32 v20, v18, 2, 1
    v_lshl_add_u32 v19, v20, 9, v19
    v_and_b32 v20, 3, v18
    v_lshl_add_u32 v19, v20, 2, v19
    s_lshl_b32 s{sE}, s{sW}, 12
    s_add_u32 s{sE}, s{sE}, {FOLD}
    v_add_u32 v19, s{sE}, v19
    s_waitcnt lgkmcnt(0)
    ds_read_b32 v22, v19
    """)
    rowcalc(e, 19, 18, sW)
    e(f"""
    v_lshlrev_b32 v19, 2, v19
    v_mov_b32 v20, 0x7ff00000
    v_cmp_gt_u32 vcc, 512, v{vL16}
    s_waitcnt lgkmcnt(0)
    v_mul_f32 v21, {NLOG2E}, v22
    v_exp_f32 v21, v21
    v_cndmask_b32 v19, v20, v19, vcc
    v_add_f32 v21, 1.0, v21
    v_rcp_f32 v21, v21
    s_mov_b32 s{sE}, {WS_G}
    s_nop 0
    buffer_store_dword v21, v19, {SRD(S_WS)}, s{sE} offen
    """)

def gen_k1(name="k1_kernel"):
    e = Emit()
    e.l.append(kbegin(name).rstrip("\n"))
    prologue(e)
    gen_main(e)
    e("K1_fin:")
    if DIAG: e("s_waitcnt lgkmcnt(0)"); settle(e); stamp(e, 40); e("s_waitcnt lgkmcnt(0)"); settle(e)
    e("s_waitcnt vmcnt(0)")
    if DIAG:
        stamp(e, 41); e("s_waitcnt lgkmcnt(0)"); settle(e)
        e(f"s_lshl_b32 s{sA}, s2, 2\ns_add_u32 s{sA}, s{sA}, s{sW}\ns_lshl_b32 s{sA}, s{sA}, 8\ns_add_u32 s{sA}, s{sA}, {WS_DIAG}")
        e(f"v_lshrrev_b32 v14, 2, v{vL16}")
        e(f"buffer_store_dword v{vDIAG}, v14, {SRD(S_WS)}, s{sA} offen")
        e("s_waitcnt vmcnt(0)")
    e("K1_end:")
    e("s_endpgm")
    for nm, srd_, so, test in (("K1_spin", S_WS, sOBp, f"s_cmp_ge_u32 s{sE}, 1"), ("K1_spin2", S_WS, sOBp, f"s_cmp_ge_u32 s{sE}, 2"), ("K1_spinc", S_DBG, sFoffP, f"s_bitcmp1_b32 s{sE}, s{sFbitP}")):
        e(f"""
        {nm}:
        s_mov_b32 s{sD}, 0
        {nm}_loop:
        s_sleep 4
        buffer_load_dword v{vPOLL}, v{vZERO}, {SRD(srd_)}, s{so} offen sc1
        s_waitcnt vmcnt(0)
        v_readfirstlane_b32 s{sE}, v{vPOLL}
        s_nop 3
        {test}
        s_cbranch_scc1 {nm}_done
        s_add_u32 s{sD}, s{sD}, 1
        s_cmp_lt_u32 s{sD}, 0x40000
        s_cbranch_scc1 {nm}_loop
        s_branch {nm}_done
        """)
    return e.text() + kdesc(name, 256, 252, 102)
if __name__ == "__main__":
    print(gen_k1())
```

```python
from common import *
S_CS, S_SS, S_WS, S_OUT = 8, 12, 16, 20
sW, sP, sFAM, sBETA, sE, sCSW, sGOUT, sS0 = 32, 33, 34, 35, 36, 37, 38, 39
NW = 6
MB = 36864
XCH = 2 * MB
R512 = XCH + 6 * 4096
LDS_BYTES = R512 + 4096
PS = 8 * 18 * 2048
DIAG = False
ABL = set()
WS_DIAG2 = 84 << 20
def vr(b, n=4): return f"v[{b}:{b+n-1}]"
def SRD(s): return f"s[{s}:{s+3}]"

def gen_k2(name="k2_kernel"):
    e = Emit()
    e.l.append(kbegin(name).rstrip("\n"))
    def st(idx):
        if DIAG: e(f"s_memrealtime s[70:71]\ns_waitcnt lgkmcnt(0)\nv_writelane_b32 v255, s70, {idx}")
    e(f"""
    s_cmp_ge_u32 s2, 192
    s_cbranch_scc1 K2_end
    s_load_dwordx2 s[{S_CS}:{S_CS+1}], s[0:1], {KA_CS}
    s_load_dwordx2 s[{S_SS}:{S_SS+1}], s[0:1], {KA_SS}
    s_load_dwordx2 s[{S_WS}:{S_WS+1}], s[0:1], {KA_WS}
    s_load_dwordx2 s[{S_OUT}:{S_OUT+1}], s[0:1], {KA_OUT}
    v_lshrrev_b32 v2, 6, v0
    v_and_b32 v0, 63, v0
    v_readfirstlane_b32 s{sW}, v2
    v_lshlrev_b32 v1, 4, v0
    s_and_b32 s{sP}, s2, 1
    s_bfe_u32 s40, s2, 0x10001           ; eh
    s_bfe_u32 s{sFAM}, s2, 0x10002
    s_lshr_b32 s41, s2, 3                ; q
    s_and_b32 s{sBETA}, s41, 7
    s_lshr_b32 s41, s41, 3               ; 0..2
    s_mul_i32 s40, s40, 3
    s_add_u32 s40, s40, s41              ; E group
    s_mul_i32 s40, s40, 3
    s_lshr_b32 s41, s{sW}, 1
    s_add_u32 s{sE}, s40, s41            ; E
    s_and_b32 s{sCSW}, s{sW}, 1          ; cs
    s_sub_u32 s41, 3, s{sFAM}
    s_cmp_eq_u32 s{sCSW}, 0
    s_cselect_b32 s{sGOUT}, s{sFAM}, s41
    s_lshl_b32 s{sS0}, s{sBETA}, 6
    s_add_u32 s{sS0}, s{sS0}, s{sP}      ; 64 beta + p
    """)
    if DIAG: e("v_mov_b32 v255, 0"); st(0)
    e("v_lshrrev_b32 v3, 3, v0\nv_and_b32 v4, 7, v0")
    e(f"s_cmp_eq_u32 s{sFAM}, 1\ns_cselect_b32 s42, 1024, 0\ns_cselect_b32 s43, -1, 1")
    for q in range(4):
        e(f"""
        v_add_u32 v5, {8*q}, v3
        v_lshl_add_u32 v6, v5, 1, s{sS0}
        v_mul_lo_u32 v6, v6, s43
        v_add_u32 v6, s42, v6
        v_lshlrev_b32 v6, 12, v6
        v_bfe_u32 v7, v5, 1, 3
        v_xor_b32 v7, v7, v4
        v_lshl_add_u32 v{10+q}, v7, 4, v6
        """)
    e("s_waitcnt lgkmcnt(0)")
    st(1)
    for s_, nb in ((S_CS, 2048 * 4096), (S_SS, 2048 * 4096), (S_WS, WS_BYTES), (S_OUT, 2048 * 1152)): srd(e, s_, None, nb)
    vZ = 120; acc = 24; accC = 40; vP = 56; fb = 16
    vROW = 15; vGT = 14
    e(f"""
    s_lshl_b32 s49, s{sBETA}, 2
    s_add_u32 s49, s49, s{sGOUT}
    s_lshl_b32 s49, s49, 1
    s_add_u32 s49, s49, s{sP}
    s_mul_i32 s49, s49, {PS}
    s_lshl_b32 s50, s{sE}, 11
    s_add_u32 s49, s49, s50
    s_add_u32 s49, s49, {WS_PART}
    """)
    if "lat" in ABL:
        e(f"s_memrealtime s[70:71]\ns_waitcnt lgkmcnt(0)\ns_mov_b32 s72, s70")
        e(f"buffer_load_dwordx4 {vr(vP)}, v1, {SRD(S_WS)}, s49 offen\ns_waitcnt vmcnt(0)")
        e(f"s_memrealtime s[70:71]\ns_waitcnt lgkmcnt(0)\ns_sub_u32 s73, s70, s72\nv_writelane_b32 v255, s73, 10\ns_mov_b32 s72, s70")
        e(f"s_lshl_b32 s57, s{sP}, 1\ns_add_u32 s57, s57, s{sCSW}\ns_mul_i32 s57, s57, 18\ns_add_u32 s57, s57, s{sE}\ns_mul_i32 s57, s57, {33*1024}\ns_add_u32 s57, s57, {WS_Z}")
        e(f"buffer_load_dwordx4 {vr(vP)}, v1, {SRD(S_WS)}, s57 offen\ns_waitcnt vmcnt(0)")
        e(f"s_memrealtime s[70:71]\ns_waitcnt lgkmcnt(0)\ns_sub_u32 s73, s70, s72\nv_writelane_b32 v255, s73, 11\ns_mov_b32 s72, s70")
        e(f"buffer_load_dwordx4 {vr(vP)}, v10, {SRD(S_CS)}, 0 offen\ns_waitcnt vmcnt(0)")
        e(f"s_memrealtime s[70:71]\ns_waitcnt lgkmcnt(0)\ns_sub_u32 s73, s70, s72\nv_writelane_b32 v255, s73, 12\ns_mov_b32 s72, s70")
        e(f"buffer_load_dwordx4 {vr(vP)}, v1, {SRD(S_WS)}, s49 offen offset:1024\ns_waitcnt vmcnt(0)")
        e(f"s_memrealtime s[70:71]\ns_waitcnt lgkmcnt(0)\ns_sub_u32 s73, s70, s72\nv_writelane_b32 v255, s73, 13\ns_mov_b32 s72, s70")
    for jp in range(8 if "nopart" not in ABL else 1):
        e.vmem(f"buffer_load_dwordx4 {vr(vP + 8*jp)}, v1, {SRD(S_WS)}, s49 offen", "part")
        e.vmem(f"buffer_load_dwordx4 {vr(vP + 8*jp + 4)}, v1, {SRD(S_WS)}, s49 offen offset:1024", "part")
        if jp < 7: e(f"s_add_u32 s49, s49, {18 * 2048}")
    e(f"""
    v_and_b32 v5, 31, v0
    v_lshl_add_u32 v8, v5, 1, s{sS0}     ; s
    s_cmp_eq_u32 s{sGOUT}, 0
    s_cselect_b32 s60, 0, 1024
    s_cmp_eq_u32 s{sGOUT}, 3
    s_cselect_b32 s60, 2048, s60
    s_and_b32 s61, s{sGOUT}, 1
    v_sub_u32 v9, s60, v8
    v_add_u32 v{vROW}, s60, v8
    s_cmp_eq_u32 s61, 1
    s_cselect_b64 vcc, -1, 0
    s_lshl_b32 s62, s{sGOUT}, 10
    s_sub_u32 s62, s62, 1536
    v_cndmask_b32 v{vROW}, v{vROW}, v9, vcc
    v_mov_b32 v9, s62
    s_cmp_ge_u32 s{sGOUT}, 2
    s_cselect_b32 s61, 0, -1
    v_cmp_eq_u32 vcc, s61, v8
    s_nop 1
    v_cndmask_b32 v{vROW}, v{vROW}, v9, vcc
    v_lshlrev_b32 v2, 2, v{vROW}
    s_mov_b32 s51, {WS_G}
    """)
    e.vmem(f"buffer_load_dword v{vGT}, v2, {SRD(S_WS)}, s51 offen", "g")
    e(f"s_mul_i32 s52, s{sW}, 3\ns_lshr_b32 s64, s2, 6")
    for gi in range(3 if "nom" not in ABL else 1):
        e(f"""
        s_add_u32 s53, s64, {gi}
        s_cmp_ge_u32 s53, 3
        s_cselect_b32 s54, 3, 0
        s_sub_u32 s53, s53, s54
        s_add_u32 s53, s52, s53
        s_cmp_ge_u32 s53, 9
        s_cselect_b32 s54, 9, 0
        s_sub_u32 s54, s53, s54
        s_lshl_b32 s55, s54, 7
        s_lshl_b32 s56, s53, 12
        s_cmp_ge_u32 s53, 9
        s_cbranch_scc1 K2_ss{gi}
        """)
        for q in range(4):
            e(f"s_add_u32 m0, s56, {1024*q}\ns_nop 0\nbuffer_load_dwordx4 v{10+q}, {SRD(S_CS)}, s55 offen lds")
        e(f"s_branch K2_dn{gi}\nK2_ss{gi}:")
        for q in range(4):
            e(f"s_add_u32 m0, s56, {1024*q}\ns_nop 0\nbuffer_load_dwordx4 v{10+q}, {SRD(S_SS)}, s55 offen lds")
        e(f"K2_dn{gi}:")
        for q in range(4): e.vm.append("m")
    e(f"""
    s_or_b32 s44, s{sBETA}, s{sP}        ; s44 == 0 -> special
    s_cmp_lg_u32 s44, 0
    s_cbranch_scc1 K2_nor512
    s_cmp_gt_u32 s{sW}, 1
    s_cbranch_scc1 K2_nor512
    v_add_u32 v9, {512 * 4096}, v1
    s_lshl_b32 s45, s{sW}, 11
    s_add_u32 s45, s45, {R512}
    s_mov_b32 m0, s45
    s_cmp_eq_u32 s{sW}, 0
    s_cbranch_scc0 K2_r512s
    buffer_load_dwordx4 v9, {SRD(S_CS)}, 0 offen lds
    buffer_load_dwordx4 v9, {SRD(S_CS)}, 0 offen offset:1024 lds
    s_branch K2_nor512
    K2_r512s:
    buffer_load_dwordx4 v9, {SRD(S_SS)}, 0 offen lds
    buffer_load_dwordx4 v9, {SRD(S_SS)}, 0 offen offset:1024 lds
    K2_nor512:
    """)
    e(f"""
    s_lshl_b32 s57, s{sP}, 1
    s_add_u32 s57, s57, s{sCSW}
    s_mul_i32 s57, s57, 18
    s_add_u32 s57, s57, s{sE}
    s_mul_i32 s57, s57, {33*1024}
    s_add_u32 s57, s57, {WS_Z}
    """)
    def zload(n):
        if n == 32: e(f"s_add_u32 s58, s57, {32 * 1024}")
        elif n % 4 == 0:
            e(f"s_add_u32 s58, s{sBETA}, {n // 4}\ns_and_b32 s58, s58, 7\ns_lshl_b32 s58, s58, 12\ns_add_u32 s58, s58, s57")
        if "noz" in ABL and n > 0: e.vm.append(("z", n)); return
        e.vmem(f"buffer_load_dwordx4 {vr(vZ + 4*n)}, v1, {SRD(S_WS)}, s58 offen offset:{(n % 4) * 1024 if n < 32 else 0}", ("z", n))
    ZPRE = 10
    for n in range(ZPRE): zload(n)
    e("""
    v_lshrrev_b32 v6, 5, v0
    v_lshrrev_b32 v7, 3, v5
    v_lshlrev_b32 v7, 10, v7
    v_and_b32 v8, 7, v5
    v_lshl_add_u32 v7, v8, 7, v7
    v_bfe_u32 v8, v5, 1, 3
    """)
    e(f"s_mul_i32 s59, s{sCSW}, {MB}\nv_add_u32 v7, s59, v7")
    for q4 in range(4):
        e(f"v_add_u32 v9, {2*q4}, v6\nv_xor_b32 v9, v9, v8\nv_lshl_add_u32 v{10+q4}, v9, 4, v7")
    st(2)
    e.wait(vm=["part", "g"])
    bs = vP + 16
    for q in range(8):
        e(f"v_lshlrev_b32 v4, 16, v{vP + q}\nv_and_b32 v5, 0xffff0000, v{vP + q}")
        e(f"v_lshlrev_b32 v6, 16, v{vP + 8 + q}\nv_and_b32 v7, 0xffff0000, v{vP + 8 + q}")
        e(f"v_add_f32 v{vP + q}, v4, v6\nv_add_f32 v{vP + 8 + q}, v5, v7")
    for jp in range(2, 8):
        for q in range(8):
            src = vP + 8 * jp + q
            e(f"v_lshlrev_b32 v4, 16, v{src}\nv_and_b32 v5, 0xffff0000, v{src}")
            e(f"v_add_f32 v{vP + q}, v{vP + q}, v4\nv_add_f32 v{vP + 8 + q}, v{vP + 8 + q}, v5")
    BS = lambda r: vP + (r >> 1) + 8 * (r & 1)
    st(5)
    e.wait(vm="m"); e("s_barrier")
    st(3)
    def gemm(accr, rd, wait_z):
        rd(0); rd(1)
        for n in range(33):
            if n + 2 < 33: rd(n + 2)
            if wait_z: e.wait(vm=("z", n), lg=("b", n))
            else: e.wait(lg=("b", n))
            e(f"v_mfma_f32_32x32x16_bf16 {vr(accr,16)}, {vr(vZ + 4*n)}, {vr(FB(n))}, {'0' if n == 0 else vr(accr,16)}")
            if wait_z and n + ZPRE < 33: zload(n + ZPRE)
    FB = lambda n: [16, 20, 4][n % 3]
    def rdM(n):
        if n < 32 and n % 4 == 0:
            e(f"s_add_u32 s63, s{sBETA}, {n // 4}\ns_and_b32 s63, s63, 7\ns_lshl_b32 s63, s63, 12")
        if n < 32:
            e(f"v_add_u32 v9, s63, v{10 + (n & 3)}")
            e.lds(f"ds_read_b128 {vr(FB(n))}, v9", ("b", n))
        else:
            e.lds(f"ds_read_b128 {vr(FB(n))}, v{10} offset:{8 * 4096}", ("b", n))
    gemm(acc, rdM, True)
    st(4)
    e(f"""
    s_cmp_lg_u32 s44, 0
    s_cbranch_scc1 K2_noC
    v_lshrrev_b32 v2, 5, v0
    v_lshlrev_b32 v2, 4, v2
    s_lshl_b32 s45, s{sCSW}, 11
    s_add_u32 s45, s45, {R512}
    v_add_u32 v2, s45, v2
    """)
    save = list(e.lg)
    gemm(accC, lambda n: e.lds(f"ds_read_b128 {vr(FB(n))}, v2 offset:{32 * n}", ("b", n)), False)
    e("K2_noC:")
    e.lg = save
    e(f"""
    s_nop 7
    s_nop 7
    s_lshl_b32 s45, s{sW}, 12
    s_add_u32 s45, s45, {XCH}
    v_add_u32 v2, s45, v1
    s_xor_b32 s46, s{sW}, 1
    s_lshl_b32 s46, s46, 12
    s_add_u32 s46, s46, {XCH}
    v_add_u32 v3, s46, v1
    """)
    for z in range(4): e(f"ds_write_b128 v2, {vr(acc + 4*z)} offset:{1024*z}")
    e("s_waitcnt lgkmcnt(0)\ns_barrier")
    sib = vZ
    for z in range(4): e(f"ds_read_b128 {vr(sib + 4*z)}, v3 offset:{1024*z}")
    e(f"""
    s_cmp_lg_u32 s44, 0
    s_cbranch_scc1 K2_noC2
    s_waitcnt lgkmcnt(0)
    s_barrier
    """)
    for z in range(4): e(f"ds_write_b128 v2, {vr(accC + 4*z)} offset:{1024*z}")
    e("s_waitcnt lgkmcnt(0)\ns_barrier")
    for z in range(4): e(f"ds_read_b128 {vr(sib + 16 + 4*z)}, v3 offset:{1024*z}")
    e("K2_noC2:")
    st(5)
    e("s_waitcnt lgkmcnt(0)")
    e(f"s_cmp_eq_u32 s{sCSW}, 0\ns_cselect_b32 s45, 1.0, 0xbf800000")
    for r in range(16): e(f"v_fma_f32 v{acc + r}, s45, v{acc + r}, v{sib + r}")
    e(f"""
    s_or_b32 s46, s44, 0
    s_xor_b32 s47, s{sCSW}, 1
    s_or_b32 s46, s46, s47
    s_cmp_lg_u32 s46, 0
    s_cbranch_scc1 K2_noC3
    s_cmp_eq_u32 s{sFAM}, 0
    s_cselect_b32 s45, 0xbf800000, 1.0
    v_and_b32 v2, 31, v0
    v_cmp_eq_u32 vcc, 0, v2
    s_nop 1
    """)
    for r in range(16):
        e(f"v_fma_f32 v3, s45, v{accC + r}, v{sib + 16 + r}")
        e(f"v_cndmask_b32 v{acc + r}, v{acc + r}, v3, vcc")
    e("K2_noC3:")
    for r in range(16):
        e(f"v_sub_f32 v{acc + r}, v{acc + r}, v{BS(r)}")
        e(f"v_fma_f32 v{acc + r}, v{vGT}, v{acc + r}, v{BS(r)}")
    for q in range(8): e(f"v_cvt_pk_bf16_f32 v{vP + q}, v{acc + 2*q}, v{acc + 2*q + 1}")
    e("s_nop 1")
    for z in range(2):
        e(f"v_permlane32_swap_b32 v{vP + 4*z}, v{vP + 2 + 4*z}")
        e(f"v_permlane32_swap_b32 v{vP + 1 + 4*z}, v{vP + 3 + 4*z}")
    e(f"""
    v_mul_u32_u24 v2, 1152, v{vROW}
    v_lshrrev_b32 v6, 5, v0
    v_lshl_add_u32 v2, v6, 4, v2
    s_lshl_b32 s59, s{sE}, 6
    buffer_store_dwordx4 {vr(vP)}, v2, {SRD(S_OUT)}, s59 offen
    buffer_store_dwordx4 {vr(vP + 4)}, v2, {SRD(S_OUT)}, s59 offen offset:32
    """)
    if DIAG:
        e("s_waitcnt vmcnt(0)"); st(6)
        e(f"s_mul_i32 s45, s2, 6\ns_add_u32 s45, s45, s{sW}\ns_lshl_b32 s45, s45, 8\ns_add_u32 s45, s45, {WS_DIAG2}")
        e(f"v_lshlrev_b32 v2, 2, v0\nbuffer_store_dword v255, v2, {SRD(S_WS)}, s45 offen")
    e("K2_end:\ns_endpgm")
    return e.text() + kdesc(name, 256, 0, 80)
if __name__ == "__main__":
    print(gen_k2())
```

```python
import sys, os
sys.path.insert(0, os.path.dirname(os.path.abspath(__file__)))
from common import *
import k1, ka, k2, k1v2, k2v2
def header(launches):
    s = ""
    for (k, g, b, lds) in launches:
        s += f"; @launch kernel={k} grid=({g},1,1) block=({b},1,1) lds={lds}\n"
    s += '.amdgcn_target "amdgcn-amd-amdhsa--gfx950"\n.text\n'
    return s
def build_k1_only():
    return header([("k1_kernel", 256, 256, k1.LDS_BYTES)]) + k1.gen_k1()
def build_k1_diag():
    k1.DIAG = True
    return build_k1_only()
def build_k1_diag2():
    k1.DIAG = 2
    return build_k1_only()
TOP = open(os.path.join(os.path.dirname(os.path.abspath(__file__)), "top_comment.txt")).read()
def build_v1():
    return TOP + header([("ka_kernel", 170, 256, ka.LDS_BYTES), ("k1_kernel", 256, 256, k1.LDS_BYTES), ("k2_kernel", 192, 384, k2.LDS_BYTES)]) + ka.gen_ka() + k1.gen_k1() + k2.gen_k2()
def build_v2():
    return TOP + header([("k1_kernel", 256, 256, k1v2.LDS_BYTES), ("k2_kernel", 192, 384, k2.LDS_BYTES)]) + k1v2.gen_k1() + k2.gen_k2()
def build_v3():
    k1v2.K2_LABELS = ("k2_kernel", "K2_codeend")
    return TOP + header([("k1_kernel", 256, 256, k1v2.LDS_BYTES), ("k2_kernel", 198, 384, k2v2.LDS_BYTES)]) + k1v2.gen_k1() + k2v2.gen_k2()
def build_v3d():
    k2v2.DIAG = True; k1v2.DIAG = 1
    return build_v3()
def build_full(name):
    k2v2.DIAG = True; k1v2.DIAG = 1
    k1v2.ABL = set(name.split("+")) - {"base"}
    return build_v3()
def build_k2abl(name):
    k2v2.DIAG = True; k1v2.DIAG = 1
    k2v2.ABL = set(name.split("+")) - {"base"}
    return build_v3()
def build_k1v2(name):
    k1v2.DIAG = 1
    k1v2.ABL = set(name.split("+")) - {"base"}
    for a in k1v2.ABL:
        if a.startswith("pf"): k1v2.PF = int(a[2:])
    return header([("k1_kernel", 256, 256, k1v2.LDS_BYTES)]) + k1v2.gen_k1()
def build_abl(name):
    k1.DIAG = 1
    k1.ABL = set(name.split("+")) - {"base"}
    for a in k1.ABL:
        if a.startswith("pf"): k1.PF = int(a[2:])
    return build_k1_only()
if __name__ == "__main__":
    what = sys.argv[1]; out = sys.argv[2]
    if what.startswith("full:"): open(out, "w").write(build_full(what[5:]))
    elif what.startswith("k2abl:"): open(out, "w").write(build_k2abl(what[6:]))
    elif what.startswith("k1v2:"): open(out, "w").write(build_k1v2(what[5:]))
    elif what.startswith("abl:"): open(out, "w").write(build_abl(what[4:]))
    else: open(out, "w").write(globals()["build_" + what]())
```

```python
from common import *

ROWW = 9216; ROWD = 1152; SLOT = 36864
LDS_BYTES = 163840
XB0 = 2 * SLOT; XBW = 20480
FOLD = 4 * SLOT
NUNIT = 28
U_T1 = 22; U_S = 23
DIAG = False
VERBOSE = False
ABL = set()
WS_DIAG = 80 << 20
PF = 6
S_WG, S_WU, S_WD, S_X, S_WS, S_DBG, S_T, S_CD, S_GW, S_SD = 8, 12, 16, 20, 24, 28, 32, 36, 40, 44
sW, sI, sJ, sODD = 48, 49, 50, 51
sGA, sGL, sSA, sSL = 52, 53, 54, 55
sDAo, sDLo, sDAp, sDLp = 56, 57, 58, 59
sUA, sUB, sUL = 60, 61, 62
sM0A, sM0L = 63, 64
sT0 = 65
sHXo, sHXp, sPARTp, sPARTs = 68, 69, 70, 71
sFoffP, sFbitP, sOBp = 72, 73, 74
sTG, sTGs, sTDo, sTDp, sTS = 75, 76, 77, 78, 79
sTrow, sCS, sCcol = 80, 81, 82
sA, sB, sC, sD, sE, sF = 84, 85, 86, 87, 88, 89
sSG = 90
sEA, sEB = 94, 95
sXS = 3
sXB2, sXB3 = 83, 95
sXB, sTCH, sHST, sPST = 4, 5, 6, 7
vTD = 0; vL16 = 1; vWK = (2, 3)
vPGp = (4, 5); vPGs = 6; vPDp = (7, 8); vPDs = 9
vPOLL = 10; vZERO = 11; vOB = 12; vMISC = 13; vTG = 14; vDIAG = 15
vTMP = 16
vH = 24
vG = (96, 128); vU = 160; vUS = 192
DACC = [128, 144, 160, 176, 208, 224, 96, 112, 192]
vTACC = 192
vDGp, vDGs, vDDp, vDDs = 240, 244, 248, 252
aFR = 144; aHP = 176; aDUM = 248
PS = 8 * 18 * 2048
def vr(b, n=4): return f"v[{b}:{b+n-1}]"
def ar(b, n=4): return f"a[{b}:{b+n-1}]"
def SRD(s): return f"s[{s}:{s+3}]"

def unit_desc(u):
    if u < 4: return dict(kind="GUp", mat="GU"[u & 1], p=0, kh=u >> 1)
    if u < 16:
        p, r = divmod(u, 4)
        return dict(kind="GUp", mat="G" if r < 2 else "U", p=p, kh=r & 1)
    if u == 16: return dict(kind="GUs", mat="G")
    if u == 17: return dict(kind="GUs", mat="U")
    if u < 22: return dict(kind="Dp", ps=1, q=u - 18)
    if u == U_T1: return dict(kind="T")
    if u == U_S: return dict(kind="S")
    if u == NUNIT: return dict(kind="T")
    return dict(kind="Dp", ps=2, q=u - 24)

vTD_T = 16
vTR = 16

def dma_groups(u, slot=None):
    d = unit_desc(u); sb = (u % 4) * SLOT if slot is None else slot * SLOT
    k = d["kind"]
    if k == "T":
        g = []
        g.append(([f"s_lshl_b32 s{sT0}, s{sW}, 7", f"s_add_u32 s{sT0}, s{sT0}, s{sTrow}", f"s_add_u32 m0, s{sM0A}, {sb}"],
                  [f"buffer_load_dwordx4 v{vTD_T+q}, {SRD(S_T)}, s{sT0} offen{' offset:%d' % (1024*q) if q else ''} lds" for q in range(4)]))
        g.append(([f"s_add_u32 s{sT0+1}, s{sT0}, 512", f"s_add_u32 m0, s{sM0A}, {sb + 16384}"],
                  [f"buffer_load_dwordx4 v{vTD_T+q}, {SRD(S_T)}, s{sT0+1} offen{' offset:%d' % (1024*q) if q else ''} lds" for q in range(4)]))
        g.append(([f"s_add_u32 s{sT0+2}, s{sTrow}, 1024", f"s_add_u32 m0, s{sM0L}, {sb}"],
                  [f"buffer_load_dwordx4 v{vTD_T+4}, {SRD(S_T)}, s{sT0+2} offen lds"]))
        return g
    if k == "GUp":
        srd_ = S_WG if d["mat"] == "G" else S_WU
        c = 288 * d["kh"] * ROWW + 128 * d["p"]
        A, B, L = (sGA, c), (sGA, c + 128 * ROWW), (sGL, c); vo = vDGp
    elif k == "GUs":
        srd_ = S_WG if d["mat"] == "G" else S_WU
        A, B, L = (sSA, 0), (sSA, 256 * ROWW), (sSL, 0); vo = vDGs
    elif k == "Dp":
        srd_ = S_WD
        a, l = (sDAo, sDLo) if d["ps"] == 1 else (sDAp, sDLp)
        c = 128 * d["q"]
        A, B, L = (a, c), (a, c + 128 * ROWD), (l, c); vo = vDDp
    else:
        srd_ = S_WD
        A, B, L = (sUA, 0), (sUB, 0), (sUL, 0); vo = vDDs
    groups = []
    for gi, (base, c) in enumerate((A, B, L)):
        st = sT0 + gi
        pre = [f"s_add_u32 s{st}, s{base}, {c}"]
        pre.append(f"s_add_u32 m0, s{sM0A}, {sb + 16384 * gi}" if gi < 2 else f"s_add_u32 m0, s{sM0L}, {sb}")
        loads = [f"buffer_load_dwordx4 v{vo + q}, {SRD(srd_)}, s{st} offen{' offset:%d' % (1024*q) if q else ''} lds" for q in range(4 if gi < 2 else 1)]
        groups.append((pre, loads))
    return groups

def touch_ops(u):
    d = unit_desc(u); k = d["kind"]; ops = []
    def t(srd_, vo, base, c):
        ops.append((f"s_add_u32 s{sTCH}, s{base}, {c}", False))
        ops.append((f"buffer_load_dword a{aDUM}, v{vo}, {SRD(srd_)}, s{sTCH} offen", True))
    if k == "GUp": t(S_WG if d["mat"] == "G" else S_WU, vTG, sTG, 288 * d["kh"] * ROWW + 128 * d["p"])
    elif k == "GUs":
        srd_ = S_WG if d["mat"] == "G" else S_WU
        t(srd_, vTG, sTGs, 0); t(srd_, vTG, sTGs, 288 * ROWW)
    elif k == "Dp": t(S_WD, vTD, sTDo if d["ps"] == 1 else sTDp, 128 * d["q"])
    elif k == "S": t(S_WD, vTD, sTS, 0); t(S_WD, vTD, sTS, 288 * ROWD)
    return ops

def frag_reads(u, n):
    d = unit_desc(u); k = d["kind"]
    tr = "ds_read_b64_tr_b16"
    if k == "GUp":
        ks, hf = n >> 1, n & 1
        return [(0, 2, tr, vWK[hf], 2048 * ks), (2, 2, tr, vWK[hf], 2048 * ks + 512)]
    if k == "GUs": return [(0, 2, tr, vWK[0], 1024 * n), (2, 2, tr, vWK[0], 1024 * n + 256)]
    if k == "Dp":
        ks, hf = n >> 1, n & 1
        return [(0, 2, tr, vWK[hf], 2048 * ks), (2, 2, tr, vWK[hf], 2048 * ks + 1024)]
    if k == "T":
        return [(0, 4, "ds_read_b128", vTR + (n & 3), 4096 * (n >> 2))]
    ks = n % 18; par = n // 18
    R = (256 * par + 16 * ks) if ks < 16 else (512 + 32 * par + 16 * (ks - 16))
    return [(0, 2, tr, vWK[0], 64 * R), (2, 2, tr, vWK[0], 64 * R + 512)]

def unit_patterns(u):
    k = unit_desc(u)["kind"]
    return {"GUp": vPGp, "GUs": (vPGs,), "Dp": vPDp, "S": (vPDs,), "T": ()}[k]

def mfma(u, n):
    d = unit_desc(u); k = d["kind"]; gn = 36 * u + n
    A = ar(aFR + 4 * (gn % 8))
    if k == "GUp":
        ks, hf = n >> 1, n & 1; kk = 18 * d["kh"] + ks
        acc = (vG[d["p"] & 1] if d["mat"] == "G" else vU) + 16 * hf
        B = ar(4 * kk); first = kk == 0
    elif k == "GUs":
        acc = vG[0] if d["mat"] == "G" else vUS
        B = ar(4 * n); first = n == 0
    elif k == "Dp":
        ks, hf = n >> 1, n & 1; acc = DACC[2 * d["q"] + hf]
        if d["ps"] == 1: B = vr(vH + 4 * ks); first = ks == 0
        else: B = ar(aHP + 4 * ks); first = False
    elif k == "T":
        acc = vTACC; first = n == 0
        return f"v_mfma_f32_32x32x16_bf16 {vr(acc,16)}, {ar(4*n)}, {A}, {'0' if first else vr(acc,16)}"
    else:
        acc = DACC[8]; B = vr(vH + 4 * n) if n < 18 else ar(aHP + 4 * (n - 18)); first = n == 0
    return f"v_mfma_f32_32x32x16_bf16 {vr(acc,16)}, {A}, {B}, {'0' if first else vr(acc,16)}"

NLOG2E = "0xbfb8aa3b"
class Op:
    __slots__ = ("text", "cost", "deps", "nb", "tag", "at")
    def __init__(self, text, cost=1, deps=(), nb=0, tag=None):
        self.text, self.cost, self.deps, self.nb, self.tag, self.at = text, cost, list(deps), nb, tag, None
sPKC, sPK1 = 90, 92
_tmp_last = {}
def silu_chain(g0, n, nb):
    ops = []; last = {}
    pk = "pk" in ABL
    for e in range(0, n, 2):
        ta = vTMP + (e % 8); a = g0 + e
        prev = [(_tmp_last[t], 1) for t in (ta, ta + 1) if t in _tmp_last]
        if pk:
            m1 = Op(f"v_pk_mul_f32 v[{ta}:{ta+1}], v[{a}:{a+1}], s[{sPKC}:{sPKC+1}]", 1, prev, nb)
            e0 = Op(f"v_exp_f32 v{ta}, v{ta}", 2, [(m1, 1)], nb); e1 = Op(f"v_exp_f32 v{ta+1}, v{ta+1}", 2, [(m1, 1)], nb)
            ad = Op(f"v_pk_add_f32 v[{ta}:{ta+1}], v[{ta}:{ta+1}], s[{sPK1}:{sPK1+1}]", 1, [(e0, 2), (e1, 2)], nb)
            r0 = Op(f"v_rcp_f32 v{ta}, v{ta}", 2, [(ad, 1)], nb); r1 = Op(f"v_rcp_f32 v{ta+1}, v{ta+1}", 2, [(ad, 1)], nb)
            m2 = Op(f"v_pk_mul_f32 v[{a}:{a+1}], v[{a}:{a+1}], v[{ta}:{ta+1}]", 1, [(r0, 2), (r1, 2)], nb)
            ops += [m1, e0, e1, ad, r0, r1, m2]
            _tmp_last[ta] = m2; _tmp_last[ta + 1] = m2; last[e] = m2; last[e + 1] = m2
        else:
            for z in range(2):
                t = ta + z; g = a + z
                m1 = Op(f"v_mul_f32 v{t}, {NLOG2E}, v{g}", 1, [(_tmp_last[t], 1)] if t in _tmp_last else [], nb)
                ex = Op(f"v_exp_f32 v{t}, v{t}", 2, [(m1, 1)], nb)
                ad = Op(f"v_add_f32 v{t}, 1.0, v{t}", 1, [(ex, 2)], nb)
                rc = Op(f"v_rcp_f32 v{t}, v{t}", 2, [(ad, 1)], nb)
                m2 = Op(f"v_mul_f32 v{g}, v{g}, v{t}", 1, [(rc, 2)], nb)
                ops += [m1, ex, ad, rc, m2]
                _tmp_last[t] = m2; last[e + z] = m2
    return ops, last
def h_chain(g0, u0, tile, last, eoff, nb):
    ops = []; H = vH + 8 * tile; prevc = None
    for q in range(8):
        a = g0 + 2 * q
        if "pk" in ABL:
            h0 = Op(f"v_pk_mul_f32 v[{a}:{a+1}], v[{a}:{a+1}], v[{u0+2*q}:{u0+2*q+1}]", 1, [(last[eoff + 2*q], 1)], nb)
            hs = [h0]
        else:
            hs = [Op(f"v_mul_f32 v{a+z}, v{a+z}, v{u0+2*q+z}", 1, [(last[eoff + 2*q + z], 1)], nb) for z in range(2)]
        c = Op(f"v_cvt_pk_bf16_f32 v{H + q}, v{a}, v{a+1}", 1, [(h, 1) for h in hs] + ([(prevc, 1)] if prevc else []), nb,
               ("h", tile) if q == 7 else None)
        prevc = c
        ops += hs + [c]
    return ops
def h_store(tile, half):
    off = tile * 2048 + half * 1024
    return [f"s_add_u32 s{sHST}, s{sHXo}, {off & ~4095}",
            f"buffer_store_dwordx4 {vr(vH + 8*tile + 4*half)}, v{vL16}, {SRD(S_WS)}, s{sHST} offen offset:{off & 4095} sc1"]
vPST = vMISC
def epi_ops(tile):
    T = DACC[tile]
    return [(f"v_cvt_pk_bf16_f32 v{T + q}, v{T + 2*q}, v{T + 2*q + 1}", 1, ("e", tile) if q == 7 else None) for q in range(8)]
def p_store(tile, half):
    T = DACC[tile]
    if tile < 8: base, off = sPARTp, tile * 2048 + half * 1024
    else: base, off = sPARTs, half * 1024
    fl = "" if "plainst" in ABL else " sc1"
    return [f"s_add_u32 s{sPST}, s{base}, {off & ~4095}",
            f"buffer_store_dwordx4 {vr(T + 4*half)}, v{vPST}, {SRD(S_WS)}, s{sPST} offen offset:{off & 4095}{fl}"]

def stamp(e, idx):
    if not DIAG: return
    e(f"{'s_memtime' if DIAG == 2 else 's_memrealtime'} s[{96 + 2*(idx % 2)}:{97 + 2*(idx % 2)}]")
    e.pending_stamp = idx
def settle(e):
    if not DIAG: return
    idx = getattr(e, "pending_stamp", None)
    if idx is None: return
    e(f"v_writelane_b32 v{vDIAG}, s{96 + 2*(idx % 2)}, {idx}")
    e.pending_stamp = None

def pstamp(e, idx):
    if not DIAG: return
    e("s_memrealtime s[96:97]\ns_waitcnt lgkmcnt(0)")
    e(f"v_writelane_b32 v{vDIAG}, s96, {idx}")
def rowcalc(e, dst, vslot, sgrp, t0=16, t1=17):
    e(f"""
    s_lshl_b32 s{sA}, s{sI}, 5
    v_add_u32 v{t0}, s{sA}, v{vslot}          ; s
    s_cmp_eq_u32 s{sgrp}, 0
    s_cselect_b32 s{sA}, 0, 1024
    s_cmp_eq_u32 s{sgrp}, 3
    s_cselect_b32 s{sA}, 2048, s{sA}         ; base
    s_and_b32 s{sB}, s{sgrp}, 1
    v_sub_u32 v{t1}, s{sA}, v{t0}
    v_add_u32 v{dst}, s{sA}, v{t0}
    s_cmp_eq_u32 s{sB}, 1
    s_cselect_b64 vcc, -1, 0
    s_lshl_b32 s{sC}, s{sgrp}, 10
    s_sub_u32 s{sC}, s{sC}, 1536
    v_cndmask_b32 v{dst}, v{dst}, v{t1}, vcc
    v_mov_b32 v{t1}, s{sC}
    s_cmp_ge_u32 s{sgrp}, 2
    s_cselect_b32 s{sB}, 0, -1
    v_cmp_eq_u32 vcc, s{sB}, v{t0}
    s_nop 1
    v_cndmask_b32 v{dst}, v{dst}, v{t1}, vcc
    """)

def T_dma_addr(e, rowbase_in_tile=0):
    ops = []
    ops += [f"v_lshrrev_b32 v21, 7, v{vL16}",
            f"v_bfe_u32 v22, v{vL16}, 4, 3"]
    for q in range(4):
        ops += [f"v_add_u32 v23, {8*q}, v21", f"v_bfe_u32 v20, v23, 1, 3", f"v_xor_b32 v20, v20, v22",
                f"v_mul_u32_u24 v23, 1152, v23", f"v_lshl_add_u32 v{16+q}, v20, 4, v23"]
        if q: ops.append(f"v_subrev_u32 v{16+q}, {1024*q}, v{16+q}")
    ops += [f"s_lshl_b32 s{sE}, s{sW}, 3", f"v_add_u32 v23, s{sE}, v21", f"v_bfe_u32 v20, v23, 1, 3", f"v_xor_b32 v20, v20, v22",
            f"v_mul_u32_u24 v23, 1152, v23", f"v_lshl_add_u32 v20, v20, 4, v23"]
    return ops
def T_read_addr(slotbase):
    ops = [f"v_bfe_u32 v20, v{vL16}, 4, 5",
           f"v_lshrrev_b32 v21, 9, v{vL16}",
           f"v_lshrrev_b32 v22, 3, v20", f"v_lshlrev_b32 v22, 10, v22", f"v_and_b32 v23, 7, v20",
           f"v_lshl_add_u32 v22, v23, 7, v22", f"v_add_u32 v22, {slotbase}, v22",
           f"v_bfe_u32 v23, v20, 1, 3"]
    for q4 in range(4):
        ops += [f"v_add_u32 v20, {2*q4}, v21", f"v_xor_b32 v20, v20, v23", f"v_lshl_add_u32 v{16+q4}, v20, 4, v22"]
    return ops

def code_prefetch():
    return f"""
    s_getpc_b64 s[{S_T}:{S_T+1}]
    K1_pc:
    s_and_b32 s{S_T+1}, s{S_T+1}, 0xffff
    s_mov_b32 s{S_T+2}, K1_codeend-K1_pc
    s_mov_b32 s{S_T+3}, 0x20000
    s_lshr_b32 s{sA}, s2, 3
    s_mul_i32 s{sA}, s{sA}, {{NL}}
    v_add_u32 v3, s{sA}, v0
    v_lshlrev_b32 v3, 7, v3
    v_mov_b32 v4, 0x7ff00000
    v_cmp_gt_u32 vcc, {{NL}}, v0
    s_nop 1
    v_cndmask_b32 v3, v4, v3, vcc
    buffer_load_dword a{aDUM}, v3, {SRD(S_T)}, 0 offen
    """.replace("{NL}", str(CPF_LINES))
CPF_LINES = 20
K2_LABELS = None
def prologue(e):
    e(f"""
    s_cmp_ge_u32 s2, 256
    s_cbranch_scc1 K1_end
    {("s_memtime s[100:101]" if DIAG == 2 else "s_memrealtime s[100:101]") if DIAG else ""}
    s_load_dwordx2 s[{S_X}:{S_X+1}], s[0:1], {KA_AX}
    s_load_dwordx2 s[{S_WG}:{S_WG+1}], s[0:1], {KA_WG}
    s_load_dwordx2 s[{S_WU}:{S_WU+1}], s[0:1], {KA_WU}
    s_load_dwordx2 s[{S_WD}:{S_WD+1}], s[0:1], {KA_WD}
    s_load_dwordx2 s[{S_WS}:{S_WS+1}], s[0:1], {KA_WS}
    s_load_dwordx2 s[{S_DBG}:{S_DBG+1}], s[0:1], {KA_DBG}
    s_load_dwordx2 s[{S_CD}:{S_CD+1}], s[0:1], {KA_CD}
    s_load_dwordx2 s[{S_SD}:{S_SD+1}], s[0:1], {KA_SD}
    s_load_dwordx2 s[{S_GW}:{S_GW+1}], s[0:1], {KA_GW}
    {code_prefetch() if "nocpf" not in ABL else ""}
    v_lshrrev_b32 v2, 6, v0
    v_and_b32 v0, 63, v0
    v_readfirstlane_b32 s{sW}, v2
    v_lshlrev_b32 v{vL16}, 4, v0
    s_and_b32 s{sA}, s2, 1
    s_lshl_b32 s{sA}, s{sA}, 3
    s_lshr_b32 s{sB}, s2, 3
    s_and_b32 s{sC}, s{sB}, 7
    s_add_u32 s{sI}, s{sA}, s{sC}
    s_and_b32 s{sA}, s2, 6
    s_lshl_b32 s{sA}, s{sA}, 1
    s_lshr_b32 s{sB}, s{sB}, 3
    s_add_u32 s{sJ}, s{sA}, s{sB}
    s_and_b32 s{sODD}, s{sJ}, 1
    """)
    if "nocpf" not in ABL: e.vm.append("cpf")
    e("v_lshrrev_b32 v21, 3, v0\nv_and_b32 v22, 7, v0")
    for q in range(4):
        e(f"v_add_u32 v18, {8*q}, v21")
        rowcalc(e, 19, 18, sW)
        e(f"""
        v_mul_u32_u24 v19, 1152, v19
        v_bfe_u32 v18, v18, 1, 3
        v_xor_b32 v18, v18, v22
        v_lshl_add_u32 v{96+q}, v18, 4, v19
        """)
    e(f"""
    s_mul_i32 s{sA}, s{sJ}, 288            ; F0
    s_lshl_b32 s{sB}, s{sODD}, 5
    s_add_u32 s{sA}, s{sA}, s{sB}          ; pairbase
    s_lshl_b32 s{sTG}, s{sA}, 1
    s_mul_i32 s{sB}, s{sW}, {32 * ROWW}
    s_add_u32 s{sGA}, s{sB}, s{sTG}
    s_mul_i32 s{sB}, s{sW}, {8 * ROWW}
    s_add_u32 s{sB}, s{sB}, {256 * ROWW}
    s_add_u32 s{sGL}, s{sB}, s{sTG}
    s_lshl_b32 s{sM0A}, s{sW}, 12
    s_lshl_b32 s{sM0L}, s{sW}, 10
    s_add_u32 s{sM0L}, s{sM0L}, 32768
    ; GU pair dma voffsets
    v_bfe_u32 v17, v0, 2, 1
    v_bfe_u32 v18, v0, 4, 1
    v_xor_b32 v17, v17, v18
    v_lshlrev_b32 v17, 6, v17
    v_and_b32 v18, 3, v0
    v_lshl_add_u32 v17, v18, 4, v17      ; colb
    s_mov_b32 s{sA}, {ROWW}
    v_mul_lo_u32 v18, v21, s{sA}
    v_add_u32 v{vDGp}, v18, v17
    """)
    for q in range(1, 4): e(f"v_add_u32 v{vDGp+q}, {q * (8 * ROWW - 1024)}, v{vDGp}")
    e(f"s_mul_i32 s{sXS}, s{sW}, {XBW}\ns_add_u32 s{sXS}, s{sXS}, {XB0}")
    e(f"""
    s_lshr_b32 s{sA}, s2, 3
    s_and_b32 s{sA}, s{sA}, 7
    s_mul_i32 s{sA}, s{sA}, 36
    s_mul_i32 s{sB}, s{sW}, 9
    s_add_u32 s{sA}, s{sA}, s{sB}
    v_add_u32 v16, s{sA}, v0
    s_mov_b32 s{sA}, {ROWW}
    v_mul_lo_u32 v17, v16, s{sA}
    v_mov_b32 v18, 0x7ff00000
    v_cmp_gt_u32 vcc, 9, v0
    s_nop 1
    v_cndmask_b32 v{vTG}, v18, v17, vcc
    """)
    e("s_waitcnt lgkmcnt(0)")
    if DIAG: e(f"v_mov_b32 v{vDIAG}, 0\nv_writelane_b32 v{vDIAG}, s100, 0")
    pstamp(e, 50)
    for s_, nb in ((S_X, 2048 * ROWD), (S_WG, 576 * ROWW), (S_WU, 576 * ROWW)): srd(e, s_, None, nb)
    def xdma_rot(pos):
        e(f"s_lshr_b32 s{sB}, s2, 6\ns_add_u32 s{sB}, s{sB}, {pos}\ns_cmp_ge_u32 s{sB}, 5\ns_cselect_b32 s{sC}, 5, 0\ns_sub_u32 s{sB}, s{sB}, s{sC}")
        e(f"s_lshl_b32 s{sA}, s{sB}, 7\ns_lshl_b32 s{sB}, s{sB}, 12\ns_add_u32 s{sB}, s{sB}, s{sXS}")
        for q in range(4):
            e(f"s_add_u32 m0, s{sB}, {q * 1024}\ns_nop 0")
            e.vmem(f"buffer_load_dwordx4 v{96+q}, {SRD(S_X)}, s{sA} offen lds", ("x", "A"))
    def udma(u):
        for pre, loads in dma_groups(u):
            for s in pre: e(s)
            e("s_nop 0")
            for s in loads: e.vmem(s, ("u", u))
    NET = next((int(a[2:]) for a in ABL if a.startswith("et")), 0)
    if "notouch" not in ABL:
        for u in range(NET):
            for t, isv in touch_ops(u): (e.vmem(t, "touch") if isv else e(t))
    for pos in range(5): xdma_rot(pos)
    udma(0); udma(1)
    pstamp(e, 51)
    e(f"""
    v_lshrrev_b32 v16, 5, v0             ; h
    v_bfe_u32 v17, v0, 4, 1              ; fb
    v_bfe_u32 v18, v0, 2, 2              ; r
    v_and_b32 v19, 3, v0                 ; c4
    v_lshlrev_b32 v20, 5, v17
    v_lshl_add_u32 v20, v19, 3, v20      ; 32 fb + 8 c4
    v_lshrrev_b32 v21, 1, v18
    v_lshlrev_b32 v21, 6, v21            ; 64*sw
    v_xor_b32 v22, 64, v21
    v_lshl_add_u32 v23, v16, 3, v18      ; 8h + r
    v_lshlrev_b32 v2, 7, v23
    v_add3_u32 v{vPGp[0]}, v2, v21, v20
    v_add3_u32 v{vPGp[1]}, v2, v22, v20
    v_and_b32 v16, 31, v0
    v_lshrrev_b32 v17, 5, v0
    v_lshrrev_b32 v18, 3, v16
    v_lshlrev_b32 v18, 10, v18
    v_and_b32 v19, 7, v16
    v_lshl_add_u32 v18, v19, 7, v18
    v_add_u32 v18, s{sXS}, v18
    v_bfe_u32 v19, v16, 1, 3
    """)
    for q4 in range(4):
        e(f"v_add_u32 v20, {2*q4}, v17\nv_xor_b32 v20, v20, v19\nv_lshl_add_u32 v{100+q4}, v20, 4, v18")
    pstamp(e, 52)
    e.wait(vm=("x", "A"))
    pstamp(e, 53)
    for kc in range(5):
        for q4 in range(4):
            e.lds(f"ds_read_b128 {ar(4 * (4*kc + q4))}, v{100+q4} offset:{kc * 4096}", ("xf", 4*kc + q4))
    for q in range(4): e(f"v_mov_b32 v{16+q}, v{96+q}\nv_mov_b32 v{20+q}, v{100+q}")
    e.wait(lg=("xf", 19))
    e(f"s_lshl_b32 s{sXB2}, s{sW}, 13\ns_add_u32 s{sXB2}, s{sXB2}, {3 * SLOT}\ns_lshl_b32 s{sXB3}, s{sW}, 12\ns_add_u32 s{sXB3}, s{sXB3}, {FOLD}")
    e(f"s_sub_u32 s{sA}, s{sXB2}, s{sXS}")
    for q in range(4): e(f"v_add_u32 v{20+q}, s{sA}, v{20+q}")
    stamp(e, 1)

def late_setup():
    L = []
    def a(txt):
        for x in txt.split("\n"):
            x = x.split(";")[0].strip()
            if x: L.append(x)
    for s_, nb in ((S_WD, 4608 * ROWD), (S_WS, WS_BYTES), (S_DBG, 256), (S_CD, 576 * ROWD), (S_SD, 576 * ROWD), (S_GW, 1152)):
        a(f"s_and_b32 s{s_+1}, s{s_+1}, 0xffff\ns_mov_b32 s{s_+2}, {nb}\ns_mov_b32 s{s_+3}, 0x20000")
    a(f"""
    s_lshr_b32 s{sA}, s2, 3
    s_and_b32 s{sA}, s{sA}, 7
    s_mul_i32 s{sA}, s{sA}, 36
    s_mul_i32 s{sB}, s{sW}, 9
    s_add_u32 s{sA}, s{sA}, s{sB}
    v_add_u32 v192, s{sA}, v0
    s_mov_b32 s{sA}, {ROWW}
    v_mul_lo_u32 v193, v192, s{sA}
    v_mul_u32_u24 v194, {ROWD}, v192
    v_mov_b32 v195, 0x7ff00000
    v_cmp_gt_u32 vcc, 9, v0
    s_nop 1
    v_cndmask_b32 v{vTG}, v195, v193, vcc
    v_cndmask_b32 v206, v195, v194, vcc
    """)
    L.append(("s_nop 0", "tg_ready"))
    a(f"""
    s_lshl_b32 s{sA}, s{sI}, 4
    s_add_u32 s{sA}, s{sA}, s{sJ}
    s_xor_b32 s{sD}, s{sA}, 1
    s_and_b32 s{sFoffP}, s{sD}, 63
    s_lshl_b32 s{sFoffP}, s{sFoffP}, 2
    s_lshr_b32 s{sFbitP}, s{sD}, 6
    s_lshl_b32 s{sB}, s{sD}, 7
    s_lshl_b32 s{sC}, s{sW}, 2
    s_add_u32 s{sB}, s{sB}, s{sC}
    s_add_u32 s{sOBp}, s{sB}, {WS_FLAG}
    s_and_b32 s{sB}, s{sA}, 63
    s_lshl_b32 s{sB}, s{sB}, 2
    s_lshr_b32 s{sC}, s{sA}, 6
    s_lshl_b32 s{sC}, 1, s{sC}
    v_mov_b32 v{vMISC}, s{sC}
    v_mov_b32 v{vPOLL}, s{sB}
    v_mov_b32 v{vZERO}, 0
    v_mov_b32 v192, 0x7ffffff0
    s_lshl_b32 s{sB}, s{sA}, 7
    s_add_u32 s{sB}, s{sB}, {WS_FLAG}
    s_lshl_b32 s{sC}, s{sW}, 2
    s_add_u32 s{sC}, s{sC}, s{sB}
    v_mov_b32 v{vOB}, s{sC}
    v_mov_b32 v193, s{sB}
    v_cmp_eq_u32 vcc, 0, v0
    s_lshl_b32 s{sC}, s{sW}, 6
    v_add_u32 v194, s{sC}, v0
    v_cndmask_b32 v{vOB}, v192, v{vOB}, vcc
    v_cmp_eq_u32 vcc, 0, v194
    v_mov_b32 v200, 0
    v_mov_b32 v201, 0
    v_cndmask_b32 v{vPOLL}, v192, v{vPOLL}, vcc
    v_cndmask_b32 v204, v192, v193, vcc
    v_mov_b32 v202, 0
    v_mov_b32 v203, 0
    """)
    L.append(("s_nop 0", "clr_ready"))
    a(f"""
    s_mul_i32 s{sB}, s{sW}, 18432
    s_mul_i32 s{sC}, s{sA}, 73728
    s_add_u32 s{sC}, s{sC}, s{sB}
    s_add_u32 s{sHXo}, s{sC}, {WS_HX}
    s_mul_i32 s{sC}, s{sD}, 73728
    s_add_u32 s{sC}, s{sC}, s{sB}
    s_add_u32 s{sHXp}, s{sC}, {WS_HX}
    s_lshr_b32 s{sB}, s{sI}, 1
    s_mul_i32 s{sB}, s{sB}, {8 * PS}
    s_mul_i32 s{sC}, s{sW}, {2 * PS}
    s_add_u32 s{sB}, s{sB}, s{sC}
    s_lshr_b32 s{sC}, s{sJ}, 1
    s_mul_i32 s{sC}, s{sC}, {18 * 2048}
    s_add_u32 s{sB}, s{sB}, s{sC}
    s_add_u32 s{sB}, s{sB}, {WS_PART}
    s_mul_i32 s{sC}, s{sODD}, {10 * 2048}
    s_add_u32 s{sPARTp}, s{sB}, s{sC}
    s_add_u32 s{sC}, s{sODD}, 8
    s_lshl_b32 s{sC}, s{sC}, 11
    s_add_u32 s{sPARTs}, s{sB}, s{sC}
    s_mul_i32 s{sA}, s{sJ}, 288
    s_lshl_b32 s{sB}, s{sODD}, 5
    s_add_u32 s{sB}, s{sA}, s{sB}
    s_xor_b32 s{sC}, s{sODD}, 1
    s_lshl_b32 s{sC}, s{sC}, 8
    s_add_u32 s{sC}, s{sA}, s{sC}
    s_xor_b32 s{sD}, s{sJ}, 1
    s_mul_i32 s{sD}, s{sD}, 288
    s_lshl_b32 s{sTGs}, s{sC}, 1
    s_mul_i32 s{sE}, s{sW}, {64 * ROWW}
    s_add_u32 s{sSA}, s{sE}, s{sTGs}
    s_mul_i32 s{sE}, s{sW}, {16 * ROWW}
    s_add_u32 s{sE}, s{sE}, {512 * ROWW}
    s_add_u32 s{sSL}, s{sE}, s{sTGs}
    s_mul_i32 s90, s{sODD}, 640
    s_mul_i32 s91, s{sODD}, 576
    s_xor_b32 s92, s{sODD}, 1
    s_lshl_b32 s93, s92, 9
    s_add_u32 s91, s91, s93
    s_mul_i32 s{sE}, s{sA}, {ROWD}
    s_add_u32 s{sTDo}, s{sE}, s90
    s_mul_i32 s{sE}, s{sD}, {ROWD}
    s_add_u32 s{sTDp}, s{sE}, s90
    s_and_b32 s{sE}, s{sJ}, 14
    s_mul_i32 s{sE}, s{sE}, {288 * ROWD}
    s_add_u32 s{sTS}, s{sE}, s91
    s_lshl_b32 s93, s92, 5
    s_add_u32 s93, s{sD}, s93
    s_lshl_b32 s94, s{sODD}, 8
    s_add_u32 s94, s{sD}, s94
    s_lshl_b32 s{sE}, s{sW}, 5
    s_add_u32 s{sF}, s{sB}, s{sE}
    s_mul_i32 s{sF}, s{sF}, {ROWD}
    s_add_u32 s{sDAo}, s{sF}, s90
    s_add_u32 s{sF}, s93, s{sE}
    s_mul_i32 s{sF}, s{sF}, {ROWD}
    s_add_u32 s{sDAp}, s{sF}, s90
    s_lshl_b32 s{sE}, s{sW}, 3
    s_add_u32 s{sF}, s{sC}, s{sE}
    s_mul_i32 s{sF}, s{sF}, {ROWD}
    s_add_u32 s{sDLo}, s{sF}, s90
    s_add_u32 s{sF}, s94, s{sE}
    s_mul_i32 s{sF}, s{sF}, {ROWD}
    s_add_u32 s{sDLp}, s{sF}, s90
    s_lshl_b32 s{sE}, s{sW}, 6
    s_add_u32 s{sF}, s{sB}, s{sE}
    s_mul_i32 s{sF}, s{sF}, {ROWD}
    s_add_u32 s{sUA}, s{sF}, s91
    s_add_u32 s{sF}, s93, s{sE}
    s_mul_i32 s{sF}, s{sF}, {ROWD}
    s_add_u32 s{sUB}, s{sF}, s91
    s_cmp_lt_u32 s{sW}, 2
    s_cselect_b32 s{sF}, s{sC}, s94
    s_and_b32 s{sE}, s{sW}, 1
    s_lshl_b32 s{sE}, s{sE}, 4
    s_add_u32 s{sF}, s{sF}, s{sE}
    s_mul_i32 s{sF}, s{sF}, {ROWD}
    s_add_u32 s{sUL}, s{sF}, s91
    s_cmp_ge_u32 s{sJ}, 9
    s_cselect_b32 s{sCS}, 1, 0
    s_cselect_b32 s{S_T}, s{S_SD}, s{S_CD}
    s_cselect_b32 s{S_T+1}, s{S_SD+1}, s{S_CD+1}
    s_mov_b32 s{S_T+2}, {576 * ROWD}
    s_mov_b32 s{S_T+3}, 0x20000
    s_lshl_b32 s{sB}, s{sCS}, 3
    s_sub_u32 s{sCcol}, s{sJ}, s{sB}
    s_mul_i32 s{sTrow}, s{sCcol}, {32 * ROWD}
    v_lshrrev_b32 v192, 5, v0
    v_bfe_u32 v193, v0, 4, 1
    v_bfe_u32 v194, v0, 2, 2
    v_and_b32 v195, 3, v0
    v_lshlrev_b32 v196, 5, v193
    v_lshl_add_u32 v196, v195, 3, v196
    v_lshrrev_b32 v197, 1, v194
    v_lshlrev_b32 v197, 6, v197
    v_xor_b32 v198, 64, v197
    v_lshl_add_u32 v199, v192, 3, v194
    v_lshl_add_u32 v{vPGs}, v199, 6, v196
    v_lshl_add_u32 v199, v192, 2, v194
    v_lshlrev_b32 v205, 7, v199
    v_add3_u32 v{vPDp[0]}, v205, v197, v196
    v_add3_u32 v{vPDp[1]}, v205, v198, v196
    v_lshl_add_u32 v{vPDs}, v199, 6, v196
    v_bfe_u32 v192, v0, 2, 1
    v_bfe_u32 v193, v0, 4, 1
    v_xor_b32 v192, v192, v193
    v_lshlrev_b32 v192, 6, v192
    v_lshl_add_u32 v192, v195, 4, v192
    v_lshrrev_b32 v193, 3, v0
    v_mul_u32_u24 v193, {ROWD}, v193
    v_add_u32 v{vDDp}, v193, v192
    v_lshrrev_b32 v192, 2, v0
    v_lshlrev_b32 v193, 4, v195
    s_mov_b32 s{sA}, {ROWW}
    v_mul_lo_u32 v194, v192, s{sA}
    v_add_u32 v{vDGs}, v194, v193
    v_mul_u32_u24 v194, {ROWD}, v192
    v_add_u32 v{vDDs}, v194, v193
    """)
    for q in range(1, 4):
        a(f"v_add_u32 v{vDDp+q}, {q * (8 * ROWD - 1024)}, v{vDDp}")
        a(f"v_add_u32 v{vDGs+q}, {q * (16 * ROWW - 1024)}, v{vDGs}")
        a(f"v_add_u32 v{vDDs+q}, {q * (16 * ROWD - 1024)}, v{vDDs}")
    a(f"v_mov_b32 v{vTD}, v206")
    L.append(("s_nop 0", "late_done"))
    return [(x, 1) if isinstance(x, str) else (x[0], 1, x[1]) for x in L]

vR = 24; vO = 56; vP = 64; vM = 68; vFA = 72; vFB = 73; vFC = 74; vFD = 75
def fold_write_ops(acc=vTACC):
    ops = [f"s_lshl_b32 s{sE}, s{sW}, 12", f"s_add_u32 s{sE}, s{sE}, {FOLD}", f"v_add_u32 v21, s{sE}, v{vL16}"]
    w = [f"ds_write_b128 v21, {vr(acc + 4*z)} offset:{1024*z}" for z in range(4)]
    return ops, w
def fold_setup_ops():
    ops = [f"s_lshr_b32 s{sE}, s{sW}, 1", f"s_lshl_b32 s{sE}, s{sE}, 11", f"s_add_u32 s{sE}, s{sE}, {FOLD}",
           f"v_add_u32 v{vFB}, s{sE}, v{vL16}",
           f"s_and_b32 s{sE}, s{sW}, 1", f"s_lshl_b32 s{sF}, s{sCS}, 1", f"s_or_b32 s{sE}, s{sE}, s{sF}"]
    masks = [0b1100, 0b1010, 0b0110, 0b0000]
    neg = {0: (2, 3), 1: (1, 3), 2: (1, 2), 3: ()}
    for g in range(4):
        m = sum(1 << i for i in neg[g])
        ops += [f"s_lshr_b32 s{sF}, {m}, s{sE}", f"s_bitcmp1_b32 s{sF}, 0", f"s_cselect_b32 s{sSG+g}, 0xbf800000, 1.0"]
    ops += [f"s_cmp_eq_u32 s{sE}, 0", f"s_cselect_b32 s{sEA}, 1.0, 0", f"s_cselect_b32 s{sEB}, 1.0, 0",
            f"s_cmp_eq_u32 s{sE}, 3", f"s_cselect_b32 s{sEA}, 0xbf800000, s{sEA}", f"s_cselect_b32 s{sEB}, 1.0, s{sEB}"]
    return ops
def fold_reads():
    return [(f"ds_read_b128 {vr(vR + 8*g + 4*z)}, v{vFB} offset:{4096*g + 1024*z}", ("fr", g, z)) for g in range(4) for z in range(2)]
def fold_math(signs=None):
    if signs is None: signs = [f"s{sSG+g}" for g in range(4)]
    ops = []
    for r in range(8):
        R = [vR + 8*g + r for g in range(4)]
        if r == 0:
            ops += [f"v_mul_f32 v{vFD}, {signs[2]}, v{R[2]}", f"v_fma_f32 v{vFD}, {signs[3]}, v{R[3]}, v{vFD}",
                    f"v_mul_f32 v{vFD}, v{vFC}, v{vFD}",
                    f"v_fma_f32 v{vO}, {signs[0]}, v{R[0]}, v{vFD}", f"v_fma_f32 v{vO}, {signs[1]}, v{R[1]}, v{vO}"]
        else:
            ops += [f"v_mul_f32 v{vO+r}, {signs[0]}, v{R[0]}"] + [f"v_fma_f32 v{vO+r}, {signs[g]}, v{R[g]}, v{vO+r}" for g in range(1, 4)]
    for q in range(4): ops.append(f"v_cvt_pk_bf16_f32 v{vP+q}, v{vO+2*q}, v{vO+2*q+1}")
    ops += ["s_nop 1", f"v_permlane32_swap_b32 v{vP}, v{vP+2}", f"v_permlane32_swap_b32 v{vP+1}, v{vP+3}"]
    return ops
def fold_mask_ops():
    return [f"s_lshr_b32 s{sE}, s{sW}, 1", f"s_or_b32 s{sE}, s{sE}, s{sI}", f"s_cmp_eq_u32 s{sE}, 0", f"s_cselect_b32 s{sE}, 512, 0",
            f"v_cmp_gt_u32 vcc, s{sE}, v{vL16}", f"v_mov_b32 v{vFC}, 1.0", "s_nop 0", f"v_cndmask_b32 v{vFC}, v{vFC}, v{vZERO}, vcc"]
def z_addr_ops():
    return [f"s_and_b32 s{sE}, s{sW}, 1", f"s_lshl_b32 s{sE}, s{sE}, 1", f"s_add_u32 s{sE}, s{sE}, s{sCS}",
            f"s_mul_i32 s{sC}, s{sE}, {18*33*1024}", f"s_lshl_b32 s{sE}, s{sI}, 1", f"s_lshr_b32 s{sF}, s{sW}, 1", f"s_add_u32 s{sE}, s{sE}, s{sF}",
            f"s_lshl_b32 s{sE}, s{sE}, 10", f"s_add_u32 s{sC}, s{sC}, s{sE}", f"s_add_u32 s{sC}, s{sC}, {WS_Z}",
            f"s_mul_i32 s{sE}, s{sCcol}, {33*1024}", f"v_add_u32 v{vFA}, s{sE}, v{vL16}",
            f"v_bfe_u32 v{vM}, v{vL16}, 4, 5", f"s_lshl_b32 s{sE}, s{sCcol}, 5", f"v_add_u32 v{vM}, s{sE}, v{vM}",
            f"v_sub_u32 v{vM+1}, 576, v{vM}", f"v_lshrrev_b32 v{vM+2}, 5, v{vM+1}", f"v_mul_u32_u24 v{vM+2}, {33*1024}, v{vM+2}",
            f"v_and_b32 v{vM+1}, 31, v{vM+1}", f"v_lshlrev_b32 v{vM+1}, 4, v{vM+1}", f"v_and_b32 v{vM+3}, 512, v{vL16}",
            f"v_add3_u32 v{vFB}, v{vM+1}, v{vM+2}, v{vM+3}",
            f"v_cmp_eq_u32 vcc, 0, v{vM}", f"v_mov_b32 v{vM+1}, 0x7ff00000", "s_nop 0", f"v_cndmask_b32 v{vFB}, v{vFB}, v{vM+1}, vcc",
            f"s_cmp_eq_u32 s{sCS}, 1", f"s_cselect_b32 s{sD}, 0x80008000, 0"]
def z_store_ops():
    ops = [(f"buffer_store_dwordx4 {vr(vP)}, v{vFA}, {SRD(S_WS)}, s{sC} offen", "vm")]
    ops += [(f"v_xor_b32 v{vM+q}, s{sD}, v{vP+q}", None) for q in range(4)]
    ops += [(f"buffer_store_dwordx4 {vr(vM)}, v{vFB}, {SRD(S_WS)}, s{sC} offen", "vm")]
    return ops
def z512_ops(lbl):
    return f"""
    s_lshr_b32 s{sE}, s{sW}, 1
    s_or_b32 s{sE}, s{sE}, s{sI}
    s_cmp_eq_u32 s{sE}, 0
    s_cbranch_scc0 {lbl}
    v_mul_f32 v{vO}, s{sEA}, v{vR + 16}
    v_fma_f32 v{vO}, s{sEB}, v{vR + 24}, v{vO}
    v_cmp_gt_u32 vcc, 512, v{vL16}
    v_mov_b32 v{vO+1}, 0
    s_nop 0
    v_cndmask_b32 v{vO}, v{vO+1}, v{vO}, vcc
    v_cvt_pk_bf16_f32 v{vO+4}, v{vO}, v{vO+1}
    v_mov_b32 v{vO+5}, 0
    v_mov_b32 v{vO+6}, 0
    v_mov_b32 v{vO+7}, 0
    s_add_u32 s{sE}, s{sC}, {32 * 1024}
    buffer_store_dwordx4 {vr(vO+4)}, v{vFA}, {SRD(S_WS)}, s{sE} offen
    s_nop 1
    v_xor_b32 v{vO+4}, s{sD}, v{vO+4}
    buffer_store_dwordx4 {vr(vO+4)}, v{vFB}, {SRD(S_WS)}, s{sE} offen
    {lbl}:
    """

def gen_main(e):
    def set_work(u):
        pats = unit_patterns(u); sb = (u % 4) * SLOT
        for i, p in enumerate(pats):
            e(f"v_add_u32 v{vWK[i]}, {sb}, v{p}" if sb else f"v_mov_b32 v{vWK[i]}, v{p}")
    def reads(u, n):
        gn = 36 * u + n; b = aFR + 4 * (gn % 8); c = 0
        for (do, nr, ins, va, off) in frag_reads(u, n):
            e.lds(f"{ins} {ar(b + do, nr)}, v{va} offset:{off}", ("f", gn)); c += 1
        return c
    if "pk" in ABL: e(f"s_mov_b32 s{sPKC}, {NLOG2E}\ns_mov_b32 s{sPKC+1}, {NLOG2E}\ns_mov_b32 s{sPK1}, 1.0\ns_mov_b32 s{sPK1+1}, 1.0")
    e.wait(vm=("u", 0)); e("s_barrier")
    if DIAG: e("s_waitcnt lgkmcnt(0)"); settle(e); stamp(e, 2)
    set_work(0)
    for n in range(6): reads(0, n)

    queue = []
    def add(ops, gslot):
        prev = None
        merged = []
        for o in ops:
            if not isinstance(o, Op):
                if isinstance(o, str): o = (o, 1)
                if o[0].startswith("s_cselect") and merged and not isinstance(merged[-1], Op):
                    p_ = merged[-1]
                    assert p_[0].split("\n")[0].startswith(("s_cmp", "s_bitcmp")), p_
                    merged[-1] = (p_[0] + "\n" + o[0], p_[1] + 1) + tuple(p_[2:]); continue
            merged.append(o)
        for o in merged:
            if isinstance(o, Op): queue.append(o); continue
            op = Op(o[0], o[1], [(prev, 1)] if prev else [], gslot, o[2] if len(o) > 2 else None)
            queue.append(op); prev = op
    done = set()
    def ready(o):
        n = len(e.l)
        return all(d.at is not None and n - d.at >= dist for d, dist in o.deps)
    def emit(o):
        queue.remove(o); o.at = len(e.l); e(o.text)
        if o.tag: done.add(o.tag)
        return o.cost
    def fill(gs, room):
        used = 0
        while True:
            for o in queue[:40]:
                if o.nb <= gs and (o.cost <= room - used or (o.cost > 2 and used == 0)) and ready(o):
                    used += emit(o); break
            else: return used
    def force(o):
        for d, dist in o.deps:
            if d.at is None: force(d)
        while not ready(o): e("s_nop 0")
        emit(o)
    def drain_until(tag):
        while tag not in done:
            tgt = next(o for o in queue if o.tag == tag)
            force(tgt)
    def pop(): force(queue[0])
    G = lambda u, n: 36 * u + n
    P_early = []
    add(late_setup(), G(0, 0))
    def xb_dma(u_, kc, slots):
        base = (f"s{sXB2}", (kc - 5) * 4096) if kc < 7 else (f"s{sXB3}", 0)
        P_early.append((u_, slots[0] - 1, f"s_movk_i32 s{sXB}, {128 * kc}", None))
        for q in range(4):
            P_early.append((u_, slots[q] - 1, f"s_add_u32 m0, {base[0]}, {base[1] + q * 1024}", None))
            P_early.append((u_, slots[q], f"buffer_load_dwordx4 v{16+q}, {SRD(S_X)}, s{sXB} offen lds", ("x", kc)))
    xb_dma(0, 5, [1, 2, 3, 4]); xb_dma(0, 6, [5, 6, 7, 8]); xb_dma(0, 7, [9, 10, 11, 12]); xb_dma(1, 8, [7, 8, 9, 10])
    _tmp_last.clear()
    for p in range(4):
        ops, last = silu_chain(vG[p & 1], 32, G(3, 3) if p == 0 else G(4*p + 2, 3)); add(ops, 0)
        add(h_chain(vG[p & 1], vU, 2*p, last, 0, G(4*p + 4, 3)), 0)
        add(h_chain(vG[p & 1] + 16, vU + 16, 2*p + 1, last, 16, G(4*p + 4, 3)), 0)
    ops, last = silu_chain(vG[0], 16, G(17, 3)); add(ops, 0); add(h_chain(vG[0], vUS, 8, last, 0, G(18, 3)), 0)
    deadlines = {G(6, 0): [("h", 0), ("h", 1)], G(10, 0): [("h", 2), ("h", 3)], G(14, 0): [("h", 4), ("h", 5)], G(18, 0): [("h", 6), ("h", 7)], G(18, 32): [("h", 8)]}
    post = {}
    def P(u, n, text, tag=None): post.setdefault((u, n), []).append((text, tag))
    for (u_, n_, t_, g_) in P_early: P(u_, n_, t_, g_)
    pre = {}
    def PRE(u, n, fn): pre.setdefault((u, n), []).append(fn)
    PRE(1, 6, lambda: drain_until("clr_ready"))
    P(1, 30, f"buffer_store_dwordx4 v[200:203], v204, {SRD(S_WS)}, 0 offen sc1", "clr")
    PRE(0, 33, lambda: drain_until("tg_ready"))
    PRE(3, 0, lambda: drain_until("late_done"))
    def sched_dma(u, tgt, slots):
        g = dma_groups(tgt); i = 0
        for pre_, loads in g:
            for s_ in pre_: P(u, slots[i], s_)
            i += 1
            for s_ in loads: P(u, slots[i], s_, ("u", tgt)); i += 1
    STD = [1, 2, 4, 6, 8, 10, 11, 13, 15, 17, 19, 20]
    TWO_A = [1, 2, 3, 4, 5, 7, 8, 9, 10, 11, 13, 14]; TWO_B = [16, 17, 19, 21, 23, 25, 26, 27, 28, 29, 30, 31]
    sched_dma(0, 2, [13, 14, 15, 16, 17, 19, 20, 21, 22, 23, 25, 26])
    sched_dma(1, 4, [12, 13, 15, 17, 19, 21, 22, 24, 26, 27, 28, 29])
    sched_dma(2, 3, [0, 1, 2, 3, 4, 5, 6, 7, 9, 10, 11, 12]); sched_dma(2, 5, TWO_B)
    first_std = 3
    for u in range(first_std, NUNIT - 3):
        if u + 3 == U_T1:
            for k_, s_ in enumerate(T_dma_addr(None)): P(u, k_ // 3, s_)
            sched_dma(u, u + 3, [11, 12, 13, 14, 15, 17, 18, 19, 20, 21, 23, 24])
        else:
            sched_dma(u, u + 3, STD)
    if "notouch" not in ABL:
        NET = next((int(a[2:]) for a in ABL if a.startswith("et")), 0)
        for k_, u in enumerate(range(max(NET, 2), PF)):
            for t, isv in touch_ops(u): P(0, 34 if k_ < 2 else 35, t, "touch" if isv else None)
        for u in range(0, NUNIT - PF):
            for t, isv in touch_ops(u + PF): P(u if u else 1, 22 if u not in (0, 1, 2) else (31 if u == 0 else 32), t, "touch" if isv else None)
    PRE(1, 0, lambda: e.wait(vm=("x", 7)))
    for k_ in range(8):
        kc = 5 + k_ // 4; q4 = k_ % 4
        P(1, k_ // 4, f"ds_read_b128 {ar(4 * (4*kc + q4))}, v{20+q4} offset:{(kc - 5) * 4096}", ("lds", ("xf", 4*kc + q4)))
    P(1, 2, f"s_sub_u32 s{sXB}, s{sXB3}, s{sXB2}")
    for q4 in range(4): P(1, 2, f"v_add_u32 v{20+q4}, s{sXB}, v{20+q4}")
    for q4 in range(4): P(1, 3, f"ds_read_b128 {ar(4 * (28 + q4))}, v{20+q4}", ("lds", ("xf", 28 + q4)))
    PRE(1, 6, lambda: e.wait(lg=("xf", 31)))
    PRE(2, 8, lambda: e.wait(vm=("x", 8)))
    for q4 in range(4): P(2, 8, f"ds_read_b128 {ar(4 * (32 + q4))}, v{20+q4}", ("lds", ("xf", 32 + q4)))
    P(4, 34, f"buffer_atomic_or v{vMISC}, v{vPOLL}, {SRD(S_DBG)}, 0 offen", "clrbit")
    P(8, 24, f"buffer_load_dword v{vPOLL}, v{vZERO}, {SRD(S_DBG)}, s{sFoffP} offen sc1", "pollc")
    def chk_c():
        e.wait(vm="pollc"); e(f"v_readfirstlane_b32 s{sE}, v{vPOLL}\ns_nop 3\ns_bitcmp1_b32 s{sE}, s{sFbitP}\ns_cbranch_scc0 K1_spinc\nK1_spinc_done:")
    PRE(11, 6, chk_c)
    if "notouch" not in ABL:
        tt = [f"s_lshr_b32 s{sE}, s2, 3", f"s_and_b32 s{sE}, s{sE}, 7", f"s_mul_i32 s{sE}, s{sE}, 36", f"s_mul_i32 s{sC}, s{sW}, 9",
              f"s_add_u32 s{sE}, s{sE}, s{sC}", f"s_lshl_b32 s{sE}, s{sE}, 7", f"v_lshlrev_b32 v{vMISC}, 3, v{vL16}",
              f"v_add_u32 v{vMISC}, s{sE}, v{vMISC}", f"v_cmp_gt_u32 vcc, 144, v{vL16}", f"v_mov_b32 v{vPOLL}, 0x7ff00000", "s_nop 0",
              f"v_cndmask_b32 v{vMISC}, v{vPOLL}, v{vMISC}, vcc"]
        for k_, s_ in enumerate(tt): P(12, 26 + k_ // 2, s_)
        P(13, 23, f"buffer_load_dword a{aDUM}, v{vMISC}, {SRD(S_T)}, s{sTrow} offen", "touch")
    hs = [(t, h) for t in range(9) for h in range(2)]
    hplan = [(6, 25), (7, 25), (8, 25), (9, 25), (10, 25), (11, 25), (12, 25), (13, 25), (14, 25), (14, 31), (15, 25), (15, 31),
             (17, 23), (17, 29), (17, 34), (18, 23), (18, 33), (19, 4)]
    for (t, h), (u, n) in zip(hs, hplan):
        a, b = h_store(t, h); P(u, n, a); P(u, n, b, ("hst", t))
        need = ("h", t)
        PRE(u, n, (lambda need=need: drain_until(need)))
    def mkflag(tag, val):
        def f():
            e.wait(vm=tag); e(f"v_mov_b32 v{vMISC}, {val}")
            e.vmem(f"buffer_store_dword v{vMISC}, v{vOB}, {SRD(S_WS)}, 0 offen sc1", ("flag", val))
        return f
    PRE(19, 9, mkflag(("hst", 7), 1)); PRE(20, 0, mkflag(("hst", 8), 2))
    def mkchk(tag, val, lbl):
        def f():
            e.wait(vm=tag)
            e(f"v_readfirstlane_b32 s{sE}, v{vPOLL}\ns_nop 3\ns_cmp_ge_u32 s{sE}, {val}\ns_cbranch_scc0 {lbl}\n{lbl}_done:")
        return f
    P(20, 22, f"buffer_load_dword v{vPOLL}, v{vZERO}, {SRD(S_WS)}, s{sOBp} offen sc1", "poll1")
    PRE(21, 12, mkchk("poll1", 1, "K1_spin"))
    P(22, 0, f"buffer_load_dword v{vPOLL}, v{vZERO}, {SRD(S_WS)}, s{sOBp} offen sc1", "poll2")
    PRE(22, 33, mkchk("poll2", 2, "K1_spin2"))
    hpl = [(21, 21 + 2*k_) for k_ in range(8)] + [(22, 21 + 2*k_) for k_ in range(8)] + [(23, 1), (23, 3)]
    for k_, (u, n) in enumerate(hpl):
        P(u, min(n, 35), f"s_add_u32 s{sD}, s{sHXp}, {(k_ * 1024) & ~4095}")
        P(u, min(n, 35), f"buffer_load_dwordx4 {ar(aHP + 4*k_)}, v{vL16}, {SRD(S_WS)}, s{sD} offen offset:{(k_ * 1024) & 4095} sc1", ("hp", k_))
    PRE(U_S, 17, lambda: e.wait(vm=("hp", 7)))
    PRE(U_S, 25, lambda: e.wait(vm=("hp", 15)))
    PRE(U_S, 33, lambda: e.wait(vm=("hp", 17)))
    for k_, s_ in enumerate(T_read_addr((U_T1 % 4) * SLOT)): P(21, 8 + k_ // 2, s_)
    pst = [f"v_bfe_u32 v20, v{vL16}, 4, 1", f"v_mul_u32_u24 v20, {PS}, v20" if PS < (1 << 24) else None,
           f"v_bfe_u32 v21, v{vL16}, 5, 4", f"s_and_b32 s{sE}, s{sI}, 1", f"s_lshl_b32 s{sE}, s{sE}, 4", f"v_add_u32 v21, s{sE}, v21",
           f"v_lshlrev_b32 v21, 4, v21", f"v_and_b32 v22, 512, v{vL16}", f"v_add3_u32 v{vPST}, v20, v21, v22"]
    for k_, s_ in enumerate(pst): P(22, 8 + k_, s_)
    if DIAG and "probe" in ABL:
        def mk(idx):
            def f():
                e(f"s_memrealtime s[96:97]\ns_waitcnt lgkmcnt(0)\nv_writelane_b32 v{vDIAG}, s96, {idx}")
            return f
        pts = [(19, 33), (20, 0), (20, 1), (21, 0), (21, 30), (21, 33), (22, 0), (22, 21), (22, 22), (22, 33), (23, 0), (23, 17), (23, 18)]
        for k_, (u_, n_) in enumerate(pts):
            pre.setdefault((u_, n_), []).insert(0, mk(44 + k_))
    if "nocpf" not in ABL and K2_LABELS:
        k2s, k2e = K2_LABELS
        cp = [f"s_getpc_b64 s[{S_T}:{S_T+1}]\nK1_pc2:\ns_add_u32 s{S_T}, s{S_T}, {k2s}-K1_pc2\ns_addc_u32 s{S_T+1}, s{S_T+1}, 0\ns_and_b32 s{S_T+1}, s{S_T+1}, 0xffff\ns_mov_b32 s{S_T+2}, {k2e}-{k2s}",
              f"s_lshr_b32 s{sE}, s2, 3", f"s_lshl_b32 s{sE}, s{sE}, 9", f"v_lshlrev_b32 v20, 3, v{vL16}", f"v_add_u32 v20, s{sE}, v20",
              f"v_mov_b32 v21, 0x7ff00000", f"v_cmp_gt_u32 vcc, 64, v{vL16}", "s_nop 1", f"v_cndmask_b32 v20, v21, v20, vcc"]
        for k_, s_ in enumerate(cp): P(23, 4 + k_, s_)
        P(23, 24, f"buffer_load_dword a{aDUM}, v20, {SRD(S_T)}, 0 offen", "touch")
    a_, w_ = fold_write_ops()
    def t_write():
        for s_ in a_: e(s_)
        e("s_nop 7")
        for s_ in w_: e.lds(s_, "fw")
    PRE(U_S, 0, t_write)
    fo = []
    fo += fold_setup_ops() + fold_mask_ops()
    add(fo, G(24, 0))
    add([("s_nop 0", 1, "fsetup")], G(24, 0)); queue[-1].deps = [(queue[-2], 1)]
    PRE(24, 9, lambda: drain_until("fsetup"))
    frs = fold_reads()
    for k_, (s_, tg) in enumerate(frs): P(24, 9 + k_, s_, ("lds", tg))
    PRE(24, 19, lambda: e.wait(lg=("fr", 3, 1)))
    add(z_addr_ops(), G(24, 17)); za_last = queue[-1]; add(fold_math(), G(24, 19))
    zs = z_store_ops()
    add([("s_nop 0", 1, "zready")], G(24, 19)); queue[-1].deps = [(queue[-2], 1), (za_last, 1)]
    def z_out():
        drain_until("zready")
        for s_, k_ in zs: (e.vmem(s_, "zst") if k_ else e(s_))
        e(z512_ops("K1_noz512"))
    PRE(25, 2, z_out)
    apx = {}
    def apx_dma():
        appendix_dma(e); apx["vmidx"] = len(e.vm)
    PRE(25, 6, apx_dma)
    for k_, s_ in enumerate(T_read_addr(APX_SLOT * SLOT)): P(26, 1 + k_ // 2, s_)
    add(epi_ops(8), G(25, 4))
    for q in range(3): add(epi_ops(2*q), G(25 + q, 4)); add(epi_ops(2*q + 1), G(25 + q, 4))
    pplan = {8: [(25, 12), (25, 17)], 0: [(25, 22), (25, 27)], 1: [(25, 32), (26, 6)], 2: [(26, 12), (26, 18)], 3: [(26, 24), (26, 30)],
             4: [(27, 8), (27, 14)], 5: [(27, 20), (27, 26)]}
    for t, pl in pplan.items():
        for h, (u, n) in enumerate(pl):
            a, b = p_store(t, h); P(u, n, a); P(u, n, b, ("pst", t))
            PRE(u, n, (lambda t=t: drain_until(("e", t))))

    def slot(u, n, last_path=None):
        gs = G(u, n)
        if gs in deadlines:
            n0 = len(e.l)
            for tg_ in deadlines[gs]: drain_until(tg_)
            if VERBOSE: print("deadline", u, n, "forced", len(e.l) - n0)
        cost = 0
        for fn in pre.get((u, n), []): fn()
        nxt = u + 1 < NUNIT or last_path == "A"
        if n % 3 == 0:
            if n == 33 and nxt:
                nvm = e.vm_count([("u", u + 1)]) if u + 1 < NUNIT else len(e.vm) - apx["vmidx"]
                e(f"s_waitcnt vmcnt({min(nvm, 63)}) lgkmcnt(0)")
                settle(e); e("s_barrier"); stamp(e, 4 + u)
                if u + 1 < NUNIT: set_work(u + 1)
            else:
                e.wait(lg=[("f", gs), ("f", gs + 1), ("f", gs + 2)])
            cost += 1
        e(mfma(u, n))
        if n <= 29: cost += reads(u, n + 6)
        elif n >= 33 and nxt:
            cost += reads(u + 1, 2*(n - 33)); cost += reads(u + 1, 2*(n - 33) + 1)
        for s_, tg in post.get((u, n), []):
            if s_ is None: continue
            if isinstance(tg, tuple) and tg[0] == "lds": e.lds(s_, tg[1])
            elif tg is not None: e.vmem(s_, tg)
            else: e(s_)
            cost += 1
        if n == 32: return
        fill(gs, 5 - cost)
    for u in range(NUNIT):
        for n in range(36):
            if u == NUNIT - 1 and n == 33: break
            slot(u, n)
    e(f"s_cmp_gt_u32 s{sJ}, 2\ns_cbranch_scc1 K1_tailN")
    sv_vm, sv_lg, sv_pend = list(e.vm), list(e.lg), getattr(e, "pending_stamp", None)
    assert not queue, [o.text for o in queue]
    for n in (33, 34, 35): slot(NUNIT - 1, n, "A")
    add(epi_ops(6), G(NUNIT, 3)); add(epi_ops(7), G(NUNIT, 3))
    for t, pl in {6: [(NUNIT, 10), (NUNIT, 16)], 7: [(NUNIT, 22), (NUNIT, 28)]}.items():
        for h, (u, n) in enumerate(pl):
            a, b = p_store(t, h); P(u, n, a); P(u, n, b, ("pst", t))
            PRE(u, n, (lambda t=t: drain_until(("e", t))))
    for n in range(36):
        gs = G(NUNIT, n)
        cost = 0
        for fn in pre.get((NUNIT, n), []): fn()
        if n % 3 == 0: e.wait(lg=[("f", gs), ("f", gs + 1), ("f", gs + 2)]); cost += 1
        e(mfma(NUNIT, n))
        if n <= 29: cost += reads(NUNIT, n + 6)
        for s_, tg in post.get((NUNIT, n), []):
            (e.vmem(s_, tg) if tg is not None else e(s_)); cost += 1
        fill(gs, 5 - cost)
    appendix_post(e)
    e("s_branch K1_fin")
    e("K1_tailN:")
    e.vm, e.lg = sv_vm, sv_lg; e.pending_stamp = sv_pend
    for n in (33, 34, 35): slot(NUNIT - 1, n, "N")
    e("s_nop 7\ns_nop 7")
    for t in (6, 7):
        for o in epi_ops(t): e(o[0])
        for h in range(2):
            a, b = p_store(t, h); e(a); e.vmem(b, ("pst", t))

APX_SLOT = 0
def appendix_dma(e):
    sb = APX_SLOT * SLOT
    e(f"s_cmp_gt_u32 s{sJ}, 2\ns_cbranch_scc1 K1_apx_nodma")
    for s_ in T_dma_addr(None): e(s_)
    e(f"""
    s_cmp_eq_u32 s{sJ}, 2
    s_cselect_b32 s{S_T}, s{S_GW}, s{S_SD}
    s_cselect_b32 s{S_T+1}, s{S_GW+1}, s{S_SD+1}
    s_mov_b32 s{sF}, {576 * ROWD}
    s_cselect_b32 s{S_T+2}, 1152, s{sF}
    s_cmp_eq_u32 s{sJ}, 0
    s_cselect_b32 s{sCcol}, 8, 0
    s_mov_b32 s{sCS}, 1
    s_mul_i32 s{sTrow}, s{sCcol}, {32 * ROWD}
    v_add_u32 v21, {288 * ROWD}, v{vL16}
    """)
    u = U_T1
    for gi, (pre_, loads) in enumerate(dma_groups(u, slot=APX_SLOT)):
        for s_ in pre_: e(s_)
        e("s_nop 0")
        for q, s_ in enumerate(loads):
            special = (gi < 2 and q == 0) or gi == 2
            if not special: e(s_); continue
            lbl = f"K1_apx_n{gi}"
            e(f"s_cmp_eq_u32 s{sJ}, 1\ns_cbranch_scc0 {lbl}")
            if gi == 2: e(f"s_cmp_eq_u32 s{sW}, 0\ns_cbranch_scc0 {lbl}")
            st = sT0 + gi
            e(f"s_mov_b64 exec, 0xff\nbuffer_load_dwordx4 v21, {SRD(S_CD)}, s83 offen lds" if False else "")
            e(f"s_mov_b64 exec, 0xff")
            e(f"buffer_load_dwordx4 v21, {SRD(S_CD)}, s{st} offen lds")
            e(f"s_not_b64 exec, exec")
            e(s_)
            e(f"s_mov_b64 exec, -1\ns_branch {lbl}_d\n{lbl}:")
            e(s_)
            e(f"{lbl}_d:")
    e("K1_apx_nodma:")

def appendix_post(e):
    e("s_nop 7\ns_nop 7")
    a_, w_ = fold_write_ops()
    for s_ in a_ + w_: e(s_)
    e(f"s_cmp_eq_u32 s{sJ}, 2\ns_cbranch_scc1 K1_gate")
    e("s_waitcnt lgkmcnt(0)\ns_barrier")
    for s_ in fold_setup_ops() + fold_mask_ops(): e(s_)
    for s_, tg in fold_reads(): e(s_)
    vS = 76; vE = 80
    e(f"s_and_b32 s{sE}, s{sW}, 1")
    neg = {0: (), 1: (1,), 2: (1,), 3: ()}
    e(f"""
    v_bfe_u32 v84, v{vL16}, 4, 5
    s_cmp_eq_u32 s{sJ}, 1
    s_cselect_b32 s{sF}, 0, -1
    v_cmp_eq_u32 vcc, s{sF}, v84
    s_mov_b64 s[98:99], vcc
    """ if False else f"""
    v_bfe_u32 v84, v{vL16}, 4, 5
    s_cmp_eq_u32 s{sJ}, 1
    s_cselect_b32 s{sF}, 0, -1
    v_cmp_eq_u32 vcc, s{sF}, v84
    """)
    for g in range(4):
        if g in (1, 2):
            e(f"s_cmp_eq_u32 s{sE}, 1\ns_cselect_b32 s{sF}, 0xbf800000, 1.0")
        else:
            e(f"s_mov_b32 s{sF}, 1.0")
        e(f"v_mov_b32 v{vS+g}, s{sSG+g}\nv_mov_b32 v85, s{sF}\nv_cndmask_b32 v{vS+g}, v{vS+g}, v85, vcc")
    e(f"s_cmp_eq_u32 s{sE}, 0\ns_cselect_b32 s{sF}, 1.0, 0\nv_mov_b32 v85, s{sF}")
    e(f"v_mov_b32 v{vE}, s{sEA}\nv_mov_b32 v{vE+1}, s{sEB}\nv_cndmask_b32 v{vE}, v{vE}, v85, vcc\nv_cndmask_b32 v{vE+1}, v{vE+1}, v85, vcc")
    e(f"v_mov_b32 v86, 0\nv_mov_b32 v87, -1\nv_cndmask_b32 v86, v86, v87, vcc")
    e("s_waitcnt lgkmcnt(0)")
    for s_ in fold_math([f"v{vS+g}" for g in range(4)]): e(s_)
    for s_ in z_addr_ops(): e(s_)
    e(f"""
    v_and_b32 v88, 512, v{vL16}
    v_add_u32 v88, {9 * 33 * 1024}, v88
    v_mov_b32 v89, 0x7ff00000
    v_cmp_eq_u32 vcc, -1, v86
    s_nop 1
    v_cndmask_b32 v88, v89, v88, vcc
    s_sub_u32 s{sF}, s{sC}, {18 * 33 * 1024}  ; same (p, ks) in the cosine matrix
    """)
    e(f"buffer_store_dwordx4 {vr(vP)}, v88, {SRD(S_WS)}, s{sF} offen")
    for q in range(4): e(f"v_cndmask_b32 v{vO+q}, v{vP+q}, v{vZERO}, vcc")
    for q in range(4): e(f"v_cndmask_b32 v{vO+4+q}, v{vZERO}, v{vZERO}, vcc")
    e(f"buffer_store_dwordx4 {vr(vO)}, v{vFA}, {SRD(S_WS)}, s{sC} offen")
    e(f"buffer_store_dwordx4 {vr(vO+4)}, v88, {SRD(S_WS)}, s{sC} offen")
    for q in range(4): e(f"v_xor_b32 v{vM+q}, s{sD}, v{vP+q}")
    e(f"buffer_store_dwordx4 {vr(vM)}, v{vFB}, {SRD(S_WS)}, s{sC} offen")
    e(f"""
    s_lshr_b32 s{sE}, s{sW}, 1
    s_or_b32 s{sE}, s{sE}, s{sI}
    s_cmp_eq_u32 s{sE}, 0
    s_cbranch_scc0 K1_fin
    v_mul_f32 v{vO}, v{vE}, v{vR + 16}
    v_fma_f32 v{vO}, v{vE+1}, v{vR + 24}, v{vO}
    v_cmp_gt_u32 vcc, 512, v{vL16}
    v_mov_b32 v{vO+1}, 0
    s_nop 0
    v_cndmask_b32 v{vO}, v{vO+1}, v{vO}, vcc
    v_cvt_pk_bf16_f32 v{vO+4}, v{vO}, v{vO+1}
    v_mov_b32 v{vO+5}, 0
    v_mov_b32 v{vO+6}, 0
    v_mov_b32 v{vO+7}, 0
    s_add_u32 s{sE}, s{sC}, {32 * 1024}
    s_add_u32 s{sF}, s{sF}, {32 * 1024}
    v_cmp_eq_u32 vcc, -1, v86
    s_nop 1
    v_cndmask_b32 v{vM}, v{vO+4}, v{vZERO}, vcc
    v_mov_b32 v{vM+1}, 0
    v_mov_b32 v{vM+2}, 0
    v_mov_b32 v{vM+3}, 0
    buffer_store_dwordx4 {vr(vO+4)}, v88, {SRD(S_WS)}, s{sF} offen
    buffer_store_dwordx4 {vr(vM)}, v{vFA}, {SRD(S_WS)}, s{sE} offen
    v_mov_b32 v{vR}, 0
    v_mov_b32 v{vR+1}, 0
    v_mov_b32 v{vR+2}, 0
    v_mov_b32 v{vR+3}, 0
    buffer_store_dwordx4 {vr(vR)}, v88, {SRD(S_WS)}, s{sE} offen
    s_nop 1
    v_xor_b32 v{vO+4}, s{sD}, v{vO+4}
    s_nop 0
    buffer_store_dwordx4 {vr(vO+4)}, v{vFB}, {SRD(S_WS)}, s{sE} offen
    s_branch K1_fin
    K1_gate:
    """)
    e(f"""
    v_bfe_u32 v18, v{vL16}, 4, 5
    v_lshrrev_b32 v19, 3, v18
    v_lshlrev_b32 v19, 10, v19
    v_bfe_u32 v20, v18, 2, 1
    v_lshl_add_u32 v19, v20, 9, v19
    v_and_b32 v20, 3, v18
    v_lshl_add_u32 v19, v20, 2, v19
    s_lshl_b32 s{sE}, s{sW}, 12
    s_add_u32 s{sE}, s{sE}, {FOLD}
    v_add_u32 v19, s{sE}, v19
    s_waitcnt lgkmcnt(0)
    ds_read_b32 v22, v19
    """)
    rowcalc(e, 19, 18, sW)
    e(f"""
    v_lshlrev_b32 v19, 2, v19
    v_mov_b32 v20, 0x7ff00000
    v_cmp_gt_u32 vcc, 512, v{vL16}
    s_waitcnt lgkmcnt(0)
    v_mul_f32 v21, {NLOG2E}, v22
    v_exp_f32 v21, v21
    v_cndmask_b32 v19, v20, v19, vcc
    v_add_f32 v21, 1.0, v21
    v_rcp_f32 v21, v21
    s_mov_b32 s{sE}, {WS_G}
    s_nop 0
    buffer_store_dword v21, v19, {SRD(S_WS)}, s{sE} offen
    """)

def gen_k1(name="k1_kernel"):
    e = Emit()
    e.l.append(kbegin(name).rstrip("\n"))
    prologue(e)
    gen_main(e)
    e("K1_fin:")
    if DIAG: e("s_waitcnt lgkmcnt(0)"); settle(e); stamp(e, 40); e("s_waitcnt lgkmcnt(0)"); settle(e)
    e("s_waitcnt vmcnt(0)")
    if DIAG:
        stamp(e, 41); e("s_waitcnt lgkmcnt(0)"); settle(e)
        e(f"s_lshl_b32 s{sA}, s2, 2\ns_add_u32 s{sA}, s{sA}, s{sW}\ns_lshl_b32 s{sA}, s{sA}, 8\ns_add_u32 s{sA}, s{sA}, {WS_DIAG}")
        e(f"v_lshrrev_b32 v14, 2, v{vL16}")
        e(f"buffer_store_dword v{vDIAG}, v14, {SRD(S_WS)}, s{sA} offen")
        e("s_waitcnt vmcnt(0)")
    e("K1_end:")
    e("s_endpgm")
    for nm, srd_, so, test in (("K1_spin", S_WS, sOBp, f"s_cmp_ge_u32 s{sE}, 1"), ("K1_spin2", S_WS, sOBp, f"s_cmp_ge_u32 s{sE}, 2"), ("K1_spinc", S_DBG, sFoffP, f"s_bitcmp1_b32 s{sE}, s{sFbitP}")):
        e(f"""
        {nm}:
        s_mov_b32 s{sD}, 0
        {nm}_loop:
        s_sleep 4
        buffer_load_dword v{vPOLL}, v{vZERO}, {SRD(srd_)}, s{so} offen sc1
        s_waitcnt vmcnt(0)
        v_readfirstlane_b32 s{sE}, v{vPOLL}
        s_nop 3
        {test}
        s_cbranch_scc1 {nm}_done
        s_add_u32 s{sD}, s{sD}, 1
        s_cmp_lt_u32 s{sD}, 0x40000
        s_cbranch_scc1 {nm}_loop
        s_branch {nm}_done
        """)
    e("K1_codeend:")
    return e.text() + kdesc(name, 256, 252, 102)
if __name__ == "__main__":
    print(gen_k1())
```

```python
from common import *
S_CS, S_SS, S_WS, S_OUT = 8, 12, 16, 20
sW, sP, sFAM, sBETA, sE, sCSW, sGOUT, sS0 = 32, 33, 34, 35, 36, 37, 38, 39
NW = 6
MB = 36864
XCH = 2 * MB
R512 = XCH + 6 * 4096
LDS_BYTES = R512
PS = 8 * 18 * 2048
DIAG = False
ABL = set()
WS_DIAG2 = 84 << 20
def vr(b, n=4): return f"v[{b}:{b+n-1}]"
def SRD(s): return f"s[{s}:{s+3}]"

def gen_k2(name="k2_kernel"):
    e = Emit()
    e.l.append(kbegin(name).rstrip("\n"))
    def st(idx):
        if DIAG: e(f"s_memrealtime s[70:71]\ns_waitcnt lgkmcnt(0)\nv_writelane_b32 v255, s70, {idx}")
    e(f"""
    s_cmp_ge_u32 s2, 198
    s_cbranch_scc1 K2_end
    s_load_dwordx2 s[{S_CS}:{S_CS+1}], s[0:1], {KA_CS}
    s_load_dwordx2 s[{S_SS}:{S_SS+1}], s[0:1], {KA_SS}
    s_load_dwordx2 s[{S_WS}:{S_WS+1}], s[0:1], {KA_WS}
    s_load_dwordx2 s[{S_OUT}:{S_OUT+1}], s[0:1], {KA_OUT}
    s_getpc_b64 s[24:25]
    K2_pc:
    s_and_b32 s25, s25, 0xffff
    s_mov_b32 s26, K2_codeend-K2_pc
    s_mov_b32 s27, 0x20000
    s_lshr_b32 s40, s2, 3
    s_lshl_b32 s40, s40, 2
    v_add_u32 v3, s40, v0
    v_lshlrev_b32 v3, 7, v3
    v_mov_b32 v4, 0x7ff00000
    v_cmp_gt_u32 vcc, 4, v0
    s_nop 1
    v_cndmask_b32 v3, v4, v3, vcc
    buffer_load_dword v252, v3, s[24:27], 0 offen
    v_lshrrev_b32 v2, 6, v0
    v_and_b32 v0, 63, v0
    v_readfirstlane_b32 s{sW}, v2
    v_lshlrev_b32 v1, 4, v0
    s_and_b32 s{sP}, s2, 1
    s_bfe_u32 s40, s2, 0x10001           ; eh
    s_bfe_u32 s{sFAM}, s2, 0x10002
    s_lshr_b32 s41, s2, 3                ; q
    s_and_b32 s{sBETA}, s41, 7
    s_lshr_b32 s41, s41, 3               ; 0..2
    s_mul_i32 s40, s40, 3
    s_add_u32 s40, s40, s41              ; E group
    s_sub_u32 s42, s2, 192
    s_cmp_ge_u32 s2, 192
    s_cselect_b32 s40, s42, s40
    s_cselect_b32 s{sP}, 0, s{sP}
    s_cselect_b32 s{sBETA}, 0, s{sBETA}
    s_cselect_b32 s{sFAM}, 2, s{sFAM}
    s_mul_i32 s40, s40, 3
    s_lshr_b32 s41, s{sW}, 1
    s_add_u32 s{sE}, s40, s41            ; E
    s_and_b32 s{sCSW}, s{sW}, 1          ; cs
    s_sub_u32 s41, 3, s{sFAM}
    s_cmp_eq_u32 s{sCSW}, 0
    s_cselect_b32 s{sGOUT}, s{sFAM}, s41
    s_add_u32 s41, s{sCSW}, 2
    s_cmp_eq_u32 s{sFAM}, 2
    s_cselect_b32 s{sGOUT}, s41, s{sGOUT}
    s_lshl_b32 s{sS0}, s{sBETA}, 6
    s_add_u32 s{sS0}, s{sS0}, s{sP}      ; 64 beta + p
    """)
    if DIAG: e("v_mov_b32 v255, 0"); st(0)
    e("v_lshrrev_b32 v3, 3, v0\nv_and_b32 v4, 7, v0")
    e(f"s_cmp_eq_u32 s{sFAM}, 1\ns_cselect_b32 s42, 1024, 0\ns_cselect_b32 s43, -1, 1")
    e(f"s_cmp_eq_u32 s{sFAM}, 2\ns_cselect_b32 s42, 512, s42\ns_cselect_b32 s43, 0, s43")
    for q in range(4):
        e(f"""
        v_add_u32 v5, {8*q}, v3
        v_lshl_add_u32 v6, v5, 1, s{sS0}
        v_mul_lo_u32 v6, v6, s43
        v_add_u32 v6, s42, v6
        v_lshlrev_b32 v6, 12, v6
        v_bfe_u32 v7, v5, 1, 3
        v_xor_b32 v7, v7, v4
        v_lshl_add_u32 v{10+q}, v7, 4, v6
        """)
    e("s_waitcnt lgkmcnt(0)")
    st(1)
    for s_, nb in ((S_CS, 2048 * 4096), (S_SS, 2048 * 4096), (S_WS, WS_BYTES), (S_OUT, 2048 * 1152)): srd(e, s_, None, nb)
    vZ = 120; acc = 24; accC = 40; vP = 56; fb = 16
    vROW = 15; vGT = 14
    e(f"""
    s_lshl_b32 s49, s{sBETA}, 2
    s_add_u32 s49, s49, s{sGOUT}
    s_lshl_b32 s49, s49, 1
    s_add_u32 s49, s49, s{sP}
    s_mul_i32 s49, s49, {PS}
    s_lshl_b32 s50, s{sE}, 11
    s_add_u32 s49, s49, s50
    s_add_u32 s49, s49, {WS_PART}
    """)
    if "lat" in ABL:
        e(f"s_memrealtime s[70:71]\ns_waitcnt lgkmcnt(0)\ns_mov_b32 s72, s70")
        e(f"buffer_load_dwordx4 {vr(vP)}, v1, {SRD(S_WS)}, s49 offen\ns_waitcnt vmcnt(0)")
        e(f"s_memrealtime s[70:71]\ns_waitcnt lgkmcnt(0)\ns_sub_u32 s73, s70, s72\nv_writelane_b32 v255, s73, 10\ns_mov_b32 s72, s70")
        e(f"s_lshl_b32 s57, s{sP}, 1\ns_add_u32 s57, s57, s{sCSW}\ns_mul_i32 s57, s57, 18\ns_add_u32 s57, s57, s{sE}\ns_mul_i32 s57, s57, {33*1024}\ns_add_u32 s57, s57, {WS_Z}")
        e(f"buffer_load_dwordx4 {vr(vP)}, v1, {SRD(S_WS)}, s57 offen\ns_waitcnt vmcnt(0)")
        e(f"s_memrealtime s[70:71]\ns_waitcnt lgkmcnt(0)\ns_sub_u32 s73, s70, s72\nv_writelane_b32 v255, s73, 11\ns_mov_b32 s72, s70")
        e(f"buffer_load_dwordx4 {vr(vP)}, v10, {SRD(S_CS)}, 0 offen\ns_waitcnt vmcnt(0)")
        e(f"s_memrealtime s[70:71]\ns_waitcnt lgkmcnt(0)\ns_sub_u32 s73, s70, s72\nv_writelane_b32 v255, s73, 12\ns_mov_b32 s72, s70")
        e(f"buffer_load_dwordx4 {vr(vP)}, v1, {SRD(S_WS)}, s49 offen offset:1024\ns_waitcnt vmcnt(0)")
        e(f"s_memrealtime s[70:71]\ns_waitcnt lgkmcnt(0)\ns_sub_u32 s73, s70, s72\nv_writelane_b32 v255, s73, 13\ns_mov_b32 s72, s70")
    def pload(k_):
        jp, h = k_ >> 1, k_ & 1
        if h == 0: e(f"s_add_u32 s65, s49, {jp * 18 * 2048}")
        e.vmem(f"buffer_load_dwordx4 {vr(vP + 8*jp + 4*h)}, v1, {SRD(S_WS)}, s65 offen offset:{1024*h}", ("part", k_))
    e(f"""
    v_and_b32 v5, 31, v0
    v_lshl_add_u32 v8, v5, 1, s{sS0}     ; s
    s_cmp_eq_u32 s{sGOUT}, 0
    s_cselect_b32 s60, 0, 1024
    s_cmp_eq_u32 s{sGOUT}, 3
    s_cselect_b32 s60, 2048, s60
    s_and_b32 s61, s{sGOUT}, 1
    v_sub_u32 v9, s60, v8
    v_add_u32 v{vROW}, s60, v8
    s_cmp_eq_u32 s61, 1
    s_cselect_b64 vcc, -1, 0
    s_lshl_b32 s62, s{sGOUT}, 10
    s_sub_u32 s62, s62, 1536
    v_cndmask_b32 v{vROW}, v{vROW}, v9, vcc
    v_mov_b32 v9, s62
    s_cmp_ge_u32 s{sGOUT}, 2
    s_cselect_b32 s61, 0, -1
    v_cmp_eq_u32 vcc, s61, v8
    s_nop 1
    v_cndmask_b32 v{vROW}, v{vROW}, v9, vcc
    v_lshlrev_b32 v2, 2, v{vROW}
    s_mov_b32 s51, {WS_G}
    """)
    e.vmem(f"buffer_load_dword v{vGT}, v2, {SRD(S_WS)}, s51 offen", "g")
    e(f"s_mul_i32 s52, s{sW}, 3\ns_lshr_b32 s64, s2, 6")
    for gi in range(3 if "nom" not in ABL else 1):
        e(f"""
        s_add_u32 s53, s64, {gi}
        s_cmp_ge_u32 s53, 3
        s_cselect_b32 s54, 3, 0
        s_sub_u32 s53, s53, s54
        s_add_u32 s53, s52, s53
        s_cmp_ge_u32 s53, 9
        s_cselect_b32 s54, 9, 0
        s_sub_u32 s54, s53, s54
        s_lshl_b32 s55, s54, 7
        s_lshl_b32 s56, s53, 12
        s_cmp_ge_u32 s53, 9
        s_cbranch_scc1 K2_ss{gi}
        """)
        for q in range(4):
            e(f"s_add_u32 m0, s56, {1024*q}\ns_nop 0\nbuffer_load_dwordx4 v{10+q}, {SRD(S_CS)}, s55 offen lds")
        e(f"s_branch K2_dn{gi}\nK2_ss{gi}:")
        for q in range(4):
            e(f"s_add_u32 m0, s56, {1024*q}\ns_nop 0\nbuffer_load_dwordx4 v{10+q}, {SRD(S_SS)}, s55 offen lds")
        e(f"K2_dn{gi}:")
        for q in range(4): e.vm.append("m")
    e(f"""
    s_lshl_b32 s57, s{sP}, 1
    s_add_u32 s57, s57, s{sCSW}
    s_mul_i32 s57, s57, 18
    s_add_u32 s57, s57, s{sE}
    s_mul_i32 s57, s57, {33*1024}
    s_add_u32 s57, s57, {WS_Z}
    """)
    def zload(n):
        if n == 32: e(f"s_add_u32 s58, s57, {32 * 1024}")
        elif n % 4 == 0:
            e(f"s_add_u32 s58, s{sBETA}, {n // 4}\ns_and_b32 s58, s58, 7\ns_lshl_b32 s58, s58, 12\ns_add_u32 s58, s58, s57")
        if "noz" in ABL and n > 0: e.vm.append(("z", n)); return
        e.vmem(f"buffer_load_dwordx4 {vr(vZ + 4*n)}, v1, {SRD(S_WS)}, s58 offen offset:{(n % 4) * 1024 if n < 32 else 0}", ("z", n))
    ZPRE = 16
    NP0 = next((int(a[2:]) for a in ABL if a.startswith("np")), 0)
    for k_ in range(NP0): pload(k_)
    for n in range(ZPRE): zload(n)
    e("""
    v_lshrrev_b32 v6, 5, v0
    v_lshrrev_b32 v7, 3, v5
    v_lshlrev_b32 v7, 10, v7
    v_and_b32 v8, 7, v5
    v_lshl_add_u32 v7, v8, 7, v7
    v_bfe_u32 v8, v5, 1, 3
    """)
    e(f"s_mul_i32 s59, s{sCSW}, {MB}\nv_add_u32 v7, s59, v7")
    for q4 in range(4):
        e(f"v_add_u32 v9, {2*q4}, v6\nv_xor_b32 v9, v9, v8\nv_lshl_add_u32 v{10+q4}, v9, 4, v7")
    st(2)
    sums = []
    for q in range(8):
        need = 2 + (q >> 2)
        sums += [(t_, need) for t_ in (f"v_lshlrev_b32 v2, 16, v{vP + q}", f"v_and_b32 v3, 0xffff0000, v{vP + q}",
                 f"v_lshlrev_b32 v8, 16, v{vP + 8 + q}", f"v_and_b32 v252, 0xffff0000, v{vP + 8 + q}",
                 f"v_add_f32 v{vP + q}, v2, v8", f"v_add_f32 v{vP + 8 + q}, v3, v252")]
    for jp in range(2, 8):
        for q in range(8):
            src = vP + 8 * jp + q
            sums += [(t_, 2 * jp + (q >> 2)) for t_ in (f"v_lshlrev_b32 v2, 16, v{src}", f"v_and_b32 v3, 0xffff0000, v{src}",
                     f"v_add_f32 v{vP + q}, v{vP + q}, v2", f"v_add_f32 v{vP + 8 + q}, v{vP + 8 + q}, v3")]
    BS = lambda r: vP + (r >> 1) + 8 * (r & 1)
    e.wait(vm="m"); e("s_barrier")
    st(3)
    def gemm(accr, rd, wait_z):
        rd(0); rd(1)
        for n in range(33):
            if n + 2 < 33: rd(n + 2)
            if wait_z: e.wait(vm=("z", n), lg=("b", n))
            else: e.wait(lg=("b", n))
            e(f"v_mfma_f32_32x32x16_bf16 {vr(accr,16)}, {vr(vZ + 4*n)}, {vr(FB(n))}, {'0' if n == 0 else vr(accr,16)}")
            if wait_z and n + ZPRE < 33: zload(n + ZPRE)
            if (n % 2 == 1 or "pev" in ABL) and prest: pload(prest.pop(0))
            if n >= 18:
                for _ in range(8):
                    if sums and sums[0][1] < NP0: e(sums.pop(0)[0])
    FB = lambda n: [16, 20, 4][n % 3]
    def rdM(n):
        if n < 32 and n % 4 == 0:
            e(f"s_add_u32 s63, s{sBETA}, {n // 4}\ns_and_b32 s63, s63, 7\ns_lshl_b32 s63, s63, 12")
        if n < 32:
            e(f"v_add_u32 v9, s63, v{10 + (n & 3)}")
            e.lds(f"ds_read_b128 {vr(FB(n))}, v9", ("b", n))
        else:
            e.lds(f"ds_read_b128 {vr(FB(n))}, v{10} offset:{8 * 4096}", ("b", n))
    prest = list(range(NP0, 16))
    gemm(acc, rdM, True)
    while prest: pload(prest.pop(0))
    st(4)
    e(f"""
    s_nop 7
    s_nop 7
    s_lshl_b32 s45, s{sW}, 12
    s_add_u32 s45, s45, {XCH}
    v_add_u32 v2, s45, v1
    s_xor_b32 s46, s{sW}, 1
    s_lshl_b32 s46, s46, 12
    s_add_u32 s46, s46, {XCH}
    v_add_u32 v3, s46, v1
    """)
    for z in range(4): e(f"ds_write_b128 v2, {vr(acc + 4*z)} offset:{1024*z}")
    e("s_waitcnt lgkmcnt(0)\ns_barrier")
    sib = vZ
    for z in range(4): e(f"ds_read_b128 {vr(sib + 4*z)}, v3 offset:{1024*z}")
    e.wait(vm=[("part", 15), "g"])
    while sums: e(sums.pop(0)[0])
    st(5)
    e("s_waitcnt lgkmcnt(0)")
    e(f"s_cmp_eq_u32 s{sCSW}, 0\ns_cselect_b32 s45, 1.0, 0xbf800000")
    for r in range(16): e(f"v_fma_f32 v{acc + r}, s45, v{acc + r}, v{sib + r}")
    for r in range(16):
        e(f"v_sub_f32 v{acc + r}, v{acc + r}, v{BS(r)}")
        e(f"v_fma_f32 v{acc + r}, v{vGT}, v{acc + r}, v{BS(r)}")
    for q in range(8): e(f"v_cvt_pk_bf16_f32 v{vP + q}, v{acc + 2*q}, v{acc + 2*q + 1}")
    e("s_nop 1")
    for z in range(2):
        e(f"v_permlane32_swap_b32 v{vP + 4*z}, v{vP + 2 + 4*z}")
        e(f"v_permlane32_swap_b32 v{vP + 1 + 4*z}, v{vP + 3 + 4*z}")
    e(f"""
    v_mul_u32_u24 v2, 1152, v{vROW}
    v_lshrrev_b32 v6, 5, v0
    v_lshl_add_u32 v2, v6, 4, v2
    v_and_b32 v3, 31, v0
    v_mov_b32 v4, 0x7ff00000
    s_or_b32 s44, s{sBETA}, s{sP}
    s_cmp_ge_u32 s{sGOUT}, 2
    s_cselect_b32 s45, s44, 1
    s_cmp_eq_u32 s45, 0
    s_cbranch_scc0 K2_st
    s_cmp_eq_u32 s{sFAM}, 2
    s_cbranch_scc1 K2_onlyc0
    v_cmp_eq_u32 vcc, 0, v3
    s_nop 1
    v_cndmask_b32 v2, v2, v4, vcc
    s_branch K2_st
    K2_onlyc0:
    v_cmp_eq_u32 vcc, 0, v3
    s_nop 1
    v_cndmask_b32 v2, v4, v2, vcc
    K2_st:
    s_lshl_b32 s59, s{sE}, 6
    buffer_store_dwordx4 {vr(vP)}, v2, {SRD(S_OUT)}, s59 offen
    buffer_store_dwordx4 {vr(vP + 4)}, v2, {SRD(S_OUT)}, s59 offen offset:32
    """)
    if DIAG:
        e("s_waitcnt vmcnt(0)"); st(6)
        e(f"s_mul_i32 s45, s2, 6\ns_add_u32 s45, s45, s{sW}\ns_lshl_b32 s45, s45, 8\ns_add_u32 s45, s45, {WS_DIAG2}")
        e(f"v_lshlrev_b32 v2, 2, v0\nbuffer_store_dword v255, v2, {SRD(S_WS)}, s45 offen")
    e("K2_end:\ns_endpgm\nK2_codeend:")
    return e.text() + kdesc(name, 256, 0, 80)
if __name__ == "__main__":
    print(gen_k2())
```

```python
from common import *

ROWW = 9216; ROWD = 1152; SLOT = 36864
LDS_BYTES = 163840
XB0 = 2 * SLOT; XBW = 20480
FOLD = 4 * SLOT
NUNIT = 28
U_T1 = 22; U_S = 23
DIAG = False
VERBOSE = False
ZF = ' sc1'
ABL = set()
WS_DIAG = 80 << 20
PF = 6
S_WG, S_WU, S_WD, S_X, S_WS, S_DBG, S_T, S_CD, S_GW, S_SD = 8, 12, 16, 20, 24, 28, 32, 36, 40, 44
sW, sI, sJ, sODD = 48, 49, 50, 51
sGA, sGL, sSA, sSL = 52, 53, 54, 55
sDAo, sDLo, sDAp, sDLp = 56, 57, 58, 59
sUA, sUB, sUL = 60, 61, 62
sM0A, sM0L = 63, 64
sT0 = 65
sHXo, sHXp, sPARTp, sPARTs = 68, 69, 70, 71
sFoffP, sFbitP, sOBp = 72, 73, 74
sTG, sTGs, sTDo, sTDp, sTS = 75, 76, 77, 78, 79
sTrow, sCS, sCcol = 80, 81, 82
sA, sB, sC, sD, sE, sF = 84, 85, 86, 87, 88, 89
sSG = 90
sEA, sEB = 94, 95
sCP = 20
sXS = 3
sXB2, sXB3 = 83, 95
sXB, sTCH, sHST, sPST = 4, 5, 6, 7
vTD = 0; vL16 = 1; vWK = (2, 3)
vPGp = (4, 5); vPGs = 6; vPDp = (7, 8); vPDs = 9
vPOLL = 10; vZERO = 11; vOB = 12; vMISC = 13; vTG = 14; vDIAG = 15
vTMP = 16
vH = 24
vG = (96, 128); vU = 160; vUS = 192
DACC = [128, 144, 160, 176, 208, 224, 96, 112, 192]
vTACC = 192
vDGp, vDGs, vDDp, vDDs = 240, 244, 248, 252
aFR = 144; aHP = 176; aDUM = 248
PS = 8 * 18 * 2048
def vr(b, n=4): return f"v[{b}:{b+n-1}]"
def ar(b, n=4): return f"a[{b}:{b+n-1}]"
def SRD(s): return f"s[{s}:{s+3}]"

def unit_desc(u):
    if u < 4: return dict(kind="GUp", mat="GU"[u & 1], p=0, kh=u >> 1)
    if u < 16:
        p, r = divmod(u, 4)
        return dict(kind="GUp", mat="G" if r < 2 else "U", p=p, kh=r & 1)
    if u == 16: return dict(kind="GUs", mat="G")
    if u == 17: return dict(kind="GUs", mat="U")
    if u < 22: return dict(kind="Dp", ps=1, q=u - 18)
    if u == U_T1: return dict(kind="T")
    if u == U_S: return dict(kind="S")
    if u == NUNIT: return dict(kind="T")
    return dict(kind="Dp", ps=2, q=u - 24)

vTD_T = 16
vTR = 16

def dma_groups(u, slot=None):
    d = unit_desc(u); sb = (u % 4) * SLOT if slot is None else slot * SLOT
    k = d["kind"]
    if k == "T":
        g = []
        g.append(([f"s_lshl_b32 s{sT0}, s{sW}, 7", f"s_add_u32 s{sT0}, s{sT0}, s{sTrow}", f"s_add_u32 m0, s{sM0A}, {sb}"],
                  [f"buffer_load_dwordx4 v{vTD_T+q}, {SRD(S_T)}, s{sT0} offen{' offset:%d' % (1024*q) if q else ''} lds" for q in range(4)]))
        g.append(([f"s_add_u32 s{sT0+1}, s{sT0}, 512", f"s_add_u32 m0, s{sM0A}, {sb + 16384}"],
                  [f"buffer_load_dwordx4 v{vTD_T+q}, {SRD(S_T)}, s{sT0+1} offen{' offset:%d' % (1024*q) if q else ''} lds" for q in range(4)]))
        g.append(([f"s_add_u32 s{sT0+2}, s{sTrow}, 1024", f"s_add_u32 m0, s{sM0L}, {sb}"],
                  [f"buffer_load_dwordx4 v{vTD_T+4}, {SRD(S_T)}, s{sT0+2} offen lds"]))
        return g
    if k == "GUp":
        srd_ = S_WG if d["mat"] == "G" else S_WU
        c = 288 * d["kh"] * ROWW + 128 * d["p"]
        A, B, L = (sGA, c), (sGA, c + 128 * ROWW), (sGL, c); vo = vDGp
    elif k == "GUs":
        srd_ = S_WG if d["mat"] == "G" else S_WU
        A, B, L = (sSA, 0), (sSA, 256 * ROWW), (sSL, 0); vo = vDGs
    elif k == "Dp":
        srd_ = S_WD
        a, l = (sDAo, sDLo) if d["ps"] == 1 else (sDAp, sDLp)
        c = 128 * d["q"]
        A, B, L = (a, c), (a, c + 128 * ROWD), (l, c); vo = vDDp
    else:
        srd_ = S_WD
        A, B, L = (sUA, 0), (sUB, 0), (sUL, 0); vo = vDDs
    groups = []
    for gi, (base, c) in enumerate((A, B, L)):
        st = sT0 + gi
        pre = [f"s_add_u32 s{st}, s{base}, {c}"]
        pre.append(f"s_add_u32 m0, s{sM0A}, {sb + 16384 * gi}" if gi < 2 else f"s_add_u32 m0, s{sM0L}, {sb}")
        loads = [f"buffer_load_dwordx4 v{vo + q}, {SRD(srd_)}, s{st} offen{' offset:%d' % (1024*q) if q else ''} lds" for q in range(4 if gi < 2 else 1)]
        groups.append((pre, loads))
    return groups

def touch_ops(u):
    d = unit_desc(u); k = d["kind"]; ops = []
    def t(srd_, vo, base, c):
        ops.append((f"s_add_u32 s{sTCH}, s{base}, {c}", False))
        ops.append((f"buffer_load_dword a{aDUM}, v{vo}, {SRD(srd_)}, s{sTCH} offen", True))
    if k == "GUp": t(S_WG if d["mat"] == "G" else S_WU, vTG, sTG, 288 * d["kh"] * ROWW + 128 * d["p"])
    elif k == "GUs":
        srd_ = S_WG if d["mat"] == "G" else S_WU
        t(srd_, vTG, sTGs, 0); t(srd_, vTG, sTGs, 288 * ROWW)
    elif k == "Dp": t(S_WD, vTD, sTDo if d["ps"] == 1 else sTDp, 128 * d["q"])
    elif k == "S": t(S_WD, vTD, sTS, 0); t(S_WD, vTD, sTS, 288 * ROWD)
    return ops

def frag_reads(u, n):
    d = unit_desc(u); k = d["kind"]
    tr = "ds_read_b64_tr_b16"
    if k == "GUp":
        ks, hf = n >> 1, n & 1
        return [(0, 2, tr, vWK[hf], 2048 * ks), (2, 2, tr, vWK[hf], 2048 * ks + 512)]
    if k == "GUs": return [(0, 2, tr, vWK[0], 1024 * n), (2, 2, tr, vWK[0], 1024 * n + 256)]
    if k == "Dp":
        ks, hf = n >> 1, n & 1
        return [(0, 2, tr, vWK[hf], 2048 * ks), (2, 2, tr, vWK[hf], 2048 * ks + 1024)]
    if k == "T":
        return [(0, 4, "ds_read_b128", vTR + (n & 3), 4096 * (n >> 2))]
    ks = n % 18; par = n // 18
    R = (256 * par + 16 * ks) if ks < 16 else (512 + 32 * par + 16 * (ks - 16))
    return [(0, 2, tr, vWK[0], 64 * R), (2, 2, tr, vWK[0], 64 * R + 512)]

def unit_patterns(u):
    k = unit_desc(u)["kind"]
    return {"GUp": vPGp, "GUs": (vPGs,), "Dp": vPDp, "S": (vPDs,), "T": ()}[k]

def mfma(u, n):
    d = unit_desc(u); k = d["kind"]; gn = 36 * u + n
    A = ar(aFR + 4 * (gn % 8))
    if k == "GUp":
        ks, hf = n >> 1, n & 1; kk = 18 * d["kh"] + ks
        acc = (vG[d["p"] & 1] if d["mat"] == "G" else vU) + 16 * hf
        B = ar(4 * kk); first = kk == 0
    elif k == "GUs":
        acc = vG[0] if d["mat"] == "G" else vUS
        B = ar(4 * n); first = n == 0
    elif k == "Dp":
        ks, hf = n >> 1, n & 1; acc = DACC[2 * d["q"] + hf]
        if d["ps"] == 1: B = vr(vH + 4 * ks); first = ks == 0
        else: B = ar(aHP + 4 * ks); first = False
    elif k == "T":
        acc = vTACC; first = n == 0
        return f"v_mfma_f32_32x32x16_bf16 {vr(acc,16)}, {ar(4*n)}, {A}, {'0' if first else vr(acc,16)}"
    else:
        acc = DACC[8]; B = vr(vH + 4 * n) if n < 18 else ar(aHP + 4 * (n - 18)); first = n == 0
    return f"v_mfma_f32_32x32x16_bf16 {vr(acc,16)}, {A}, {B}, {'0' if first else vr(acc,16)}"

NLOG2E = "0xbfb8aa3b"
class Op:
    __slots__ = ("text", "cost", "deps", "nb", "tag", "at")
    def __init__(self, text, cost=1, deps=(), nb=0, tag=None):
        self.text, self.cost, self.deps, self.nb, self.tag, self.at = text, cost, list(deps), nb, tag, None
sPKC, sPK1 = 90, 92
_tmp_last = {}
def silu_chain(g0, n, nb):
    ops = []; last = {}
    pk = "pk" in ABL
    for e in range(0, n, 2):
        ta = vTMP + (e % 8); a = g0 + e
        prev = [(_tmp_last[t], 1) for t in (ta, ta + 1) if t in _tmp_last]
        if pk:
            m1 = Op(f"v_pk_mul_f32 v[{ta}:{ta+1}], v[{a}:{a+1}], s[{sPKC}:{sPKC+1}]", 1, prev, nb)
            e0 = Op(f"v_exp_f32 v{ta}, v{ta}", 2, [(m1, 1)], nb); e1 = Op(f"v_exp_f32 v{ta+1}, v{ta+1}", 2, [(m1, 1)], nb)
            ad = Op(f"v_pk_add_f32 v[{ta}:{ta+1}], v[{ta}:{ta+1}], s[{sPK1}:{sPK1+1}]", 1, [(e0, 2), (e1, 2)], nb)
            r0 = Op(f"v_rcp_f32 v{ta}, v{ta}", 2, [(ad, 1)], nb); r1 = Op(f"v_rcp_f32 v{ta+1}, v{ta+1}", 2, [(ad, 1)], nb)
            m2 = Op(f"v_pk_mul_f32 v[{a}:{a+1}], v[{a}:{a+1}], v[{ta}:{ta+1}]", 1, [(r0, 2), (r1, 2)], nb)
            ops += [m1, e0, e1, ad, r0, r1, m2]
            _tmp_last[ta] = m2; _tmp_last[ta + 1] = m2; last[e] = m2; last[e + 1] = m2
        else:
            for z in range(2):
                t = ta + z; g = a + z
                m1 = Op(f"v_mul_f32 v{t}, {NLOG2E}, v{g}", 1, [(_tmp_last[t], 1)] if t in _tmp_last else [], nb)
                ex = Op(f"v_exp_f32 v{t}, v{t}", 2, [(m1, 1)], nb)
                ad = Op(f"v_add_f32 v{t}, 1.0, v{t}", 1, [(ex, 2)], nb)
                rc = Op(f"v_rcp_f32 v{t}, v{t}", 2, [(ad, 1)], nb)
                m2 = Op(f"v_mul_f32 v{g}, v{g}, v{t}", 1, [(rc, 2)], nb)
                ops += [m1, ex, ad, rc, m2]
                _tmp_last[t] = m2; last[e + z] = m2
    return ops, last
def h_chain(g0, u0, tile, last, eoff, nb):
    ops = []; H = vH + 8 * tile; prevc = None
    for q in range(8):
        a = g0 + 2 * q
        if "pk" in ABL:
            h0 = Op(f"v_pk_mul_f32 v[{a}:{a+1}], v[{a}:{a+1}], v[{u0+2*q}:{u0+2*q+1}]", 1, [(last[eoff + 2*q], 1)], nb)
            hs = [h0]
        else:
            hs = [Op(f"v_mul_f32 v{a+z}, v{a+z}, v{u0+2*q+z}", 1, [(last[eoff + 2*q + z], 1)], nb) for z in range(2)]
        c = Op(f"v_cvt_pk_bf16_f32 v{H + q}, v{a}, v{a+1}", 1, [(h, 1) for h in hs] + ([(prevc, 1)] if prevc else []), nb,
               ("h", tile) if q == 7 else None)
        prevc = c
        ops += hs + [c]
    return ops
def h_store(tile, half):
    off = tile * 2048 + half * 1024
    return [f"s_add_u32 s{sHST}, s{sHXo}, {off & ~4095}",
            f"buffer_store_dwordx4 {vr(vH + 8*tile + 4*half)}, v{vL16}, {SRD(S_WS)}, s{sHST} offen offset:{off & 4095} sc1"]
vPST = vMISC
def epi_ops(tile):
    T = DACC[tile]
    return [(f"v_cvt_pk_bf16_f32 v{T + q}, v{T + 2*q}, v{T + 2*q + 1}", 1, ("e", tile) if q == 7 else None) for q in range(8)]
def p_store(tile, half):
    T = DACC[tile]
    if tile < 8: base, off = sPARTp, tile * 2048 + half * 1024
    else: base, off = sPARTs, half * 1024
    fl = "" if "plainst" in ABL else " sc1"
    return [f"s_add_u32 s{sPST}, s{base}, {off & ~4095}",
            f"buffer_store_dwordx4 {vr(T + 4*half)}, v{vPST}, {SRD(S_WS)}, s{sPST} offen offset:{off & 4095}{fl}"]

def stamp(e, idx):
    if not DIAG: return
    e(f"{'s_memtime' if DIAG == 2 else 's_memrealtime'} s[{96 + 2*(idx % 2)}:{97 + 2*(idx % 2)}]")
    e.pending_stamp = idx
def settle(e):
    if not DIAG: return
    idx = getattr(e, "pending_stamp", None)
    if idx is None: return
    e(f"v_writelane_b32 v{vDIAG}, s{96 + 2*(idx % 2)}, {idx}")
    e.pending_stamp = None

def pstamp(e, idx):
    if not DIAG: return
    e("s_memrealtime s[96:97]\ns_waitcnt lgkmcnt(0)")
    e(f"v_writelane_b32 v{vDIAG}, s96, {idx}")
def rowcalc(e, dst, vslot, sgrp, t0=16, t1=17):
    e(f"""
    s_lshl_b32 s{sA}, s{sI}, 5
    v_add_u32 v{t0}, s{sA}, v{vslot}          ; s
    s_cmp_eq_u32 s{sgrp}, 0
    s_cselect_b32 s{sA}, 0, 1024
    s_cmp_eq_u32 s{sgrp}, 3
    s_cselect_b32 s{sA}, 2048, s{sA}         ; base
    s_and_b32 s{sB}, s{sgrp}, 1
    v_sub_u32 v{t1}, s{sA}, v{t0}
    v_add_u32 v{dst}, s{sA}, v{t0}
    s_cmp_eq_u32 s{sB}, 1
    s_cselect_b64 vcc, -1, 0
    s_lshl_b32 s{sC}, s{sgrp}, 10
    s_sub_u32 s{sC}, s{sC}, 1536
    v_cndmask_b32 v{dst}, v{dst}, v{t1}, vcc
    v_mov_b32 v{t1}, s{sC}
    s_cmp_ge_u32 s{sgrp}, 2
    s_cselect_b32 s{sB}, 0, -1
    v_cmp_eq_u32 vcc, s{sB}, v{t0}
    s_nop 1
    v_cndmask_b32 v{dst}, v{dst}, v{t1}, vcc
    """)

def T_dma_addr(e, rowbase_in_tile=0):
    ops = []
    ops += [f"v_lshrrev_b32 v21, 7, v{vL16}",
            f"v_bfe_u32 v22, v{vL16}, 4, 3"]
    for q in range(4):
        ops += [f"v_add_u32 v23, {8*q}, v21", f"v_bfe_u32 v20, v23, 1, 3", f"v_xor_b32 v20, v20, v22",
                f"v_mul_u32_u24 v23, 1152, v23", f"v_lshl_add_u32 v{16+q}, v20, 4, v23"]
        if q: ops.append(f"v_subrev_u32 v{16+q}, {1024*q}, v{16+q}")
    ops += [f"s_lshl_b32 s{sE}, s{sW}, 3", f"v_add_u32 v23, s{sE}, v21", f"v_bfe_u32 v20, v23, 1, 3", f"v_xor_b32 v20, v20, v22",
            f"v_mul_u32_u24 v23, 1152, v23", f"v_lshl_add_u32 v20, v20, 4, v23"]
    return ops
def T_read_addr(slotbase):
    ops = [f"v_bfe_u32 v20, v{vL16}, 4, 5",
           f"v_lshrrev_b32 v21, 9, v{vL16}",
           f"v_lshrrev_b32 v22, 3, v20", f"v_lshlrev_b32 v22, 10, v22", f"v_and_b32 v23, 7, v20",
           f"v_lshl_add_u32 v22, v23, 7, v22", f"v_add_u32 v22, {slotbase}, v22",
           f"v_bfe_u32 v23, v20, 1, 3"]
    for q4 in range(4):
        ops += [f"v_add_u32 v20, {2*q4}, v21", f"v_xor_b32 v20, v20, v23", f"v_lshl_add_u32 v{16+q4}, v20, 4, v22"]
    return ops

def code_prefetch():
    return f"""
    s_getpc_b64 s[{S_T}:{S_T+1}]
    K1_pc:
    s_and_b32 s{S_T+1}, s{S_T+1}, 0xffff
    s_mov_b32 s{S_T+2}, K1_codeend-K1_pc
    s_mov_b32 s{S_T+3}, 0x20000
    s_lshr_b32 s{sA}, s2, 3
    s_mul_i32 s{sA}, s{sA}, {{NL}}
    v_add_u32 v3, s{sA}, v0
    v_lshlrev_b32 v3, 7, v3
    v_mov_b32 v4, 0x7ff00000
    v_cmp_gt_u32 vcc, {{NL}}, v0
    s_nop 1
    v_cndmask_b32 v3, v4, v3, vcc
    buffer_load_dword a{aDUM}, v3, {SRD(S_T)}, 0 offen
    """.replace("{NL}", str(CPF_LINES))
CPF_LINES = 20
K2_LABELS = None
def prologue(e):
    e(f"""
    s_cmp_ge_u32 s2, 256
    s_cbranch_scc1 K1_end
    {("s_memtime s[100:101]" if DIAG == 2 else "s_memrealtime s[100:101]") if DIAG else ""}
    s_load_dwordx2 s[{S_X}:{S_X+1}], s[0:1], {KA_AX}
    s_load_dwordx2 s[{S_WG}:{S_WG+1}], s[0:1], {KA_WG}
    s_load_dwordx2 s[{S_WU}:{S_WU+1}], s[0:1], {KA_WU}
    s_load_dwordx2 s[{S_WD}:{S_WD+1}], s[0:1], {KA_WD}
    s_load_dwordx2 s[{S_WS}:{S_WS+1}], s[0:1], {KA_WS}
    s_load_dwordx2 s[{S_DBG}:{S_DBG+1}], s[0:1], {KA_DBG}
    s_load_dwordx2 s[{S_CD}:{S_CD+1}], s[0:1], {KA_CD}
    s_load_dwordx2 s[{S_SD}:{S_SD+1}], s[0:1], {KA_SD}
    s_load_dwordx2 s[{S_GW}:{S_GW+1}], s[0:1], {KA_GW}
    {code_prefetch() if "nocpf" not in ABL else ""}
    v_lshrrev_b32 v2, 6, v0
    v_and_b32 v0, 63, v0
    v_readfirstlane_b32 s{sW}, v2
    v_lshlrev_b32 v{vL16}, 4, v0
    s_and_b32 s{sA}, s2, 1
    s_lshl_b32 s{sA}, s{sA}, 3
    s_lshr_b32 s{sB}, s2, 3
    s_and_b32 s{sC}, s{sB}, 7
    s_add_u32 s{sI}, s{sA}, s{sC}
    s_and_b32 s{sA}, s2, 6
    s_lshl_b32 s{sA}, s{sA}, 1
    s_lshr_b32 s{sB}, s{sB}, 3
    s_add_u32 s{sJ}, s{sA}, s{sB}
    s_and_b32 s{sODD}, s{sJ}, 1
    """)
    if "nocpf" not in ABL: e.vm.append("cpf")
    e("v_lshrrev_b32 v21, 3, v0\nv_and_b32 v22, 7, v0")
    for q in range(4):
        e(f"v_add_u32 v18, {8*q}, v21")
        rowcalc(e, 19, 18, sW)
        e(f"""
        v_mul_u32_u24 v19, 1152, v19
        v_bfe_u32 v18, v18, 1, 3
        v_xor_b32 v18, v18, v22
        v_lshl_add_u32 v{96+q}, v18, 4, v19
        """)
    e(f"""
    s_mul_i32 s{sA}, s{sJ}, 288            ; F0
    s_lshl_b32 s{sB}, s{sODD}, 5
    s_add_u32 s{sA}, s{sA}, s{sB}          ; pairbase
    s_lshl_b32 s{sTG}, s{sA}, 1
    s_mul_i32 s{sB}, s{sW}, {32 * ROWW}
    s_add_u32 s{sGA}, s{sB}, s{sTG}
    s_mul_i32 s{sB}, s{sW}, {8 * ROWW}
    s_add_u32 s{sB}, s{sB}, {256 * ROWW}
    s_add_u32 s{sGL}, s{sB}, s{sTG}
    s_lshl_b32 s{sM0A}, s{sW}, 12
    s_lshl_b32 s{sM0L}, s{sW}, 10
    s_add_u32 s{sM0L}, s{sM0L}, 32768
    ; GU pair dma voffsets
    v_bfe_u32 v17, v0, 2, 1
    v_bfe_u32 v18, v0, 4, 1
    v_xor_b32 v17, v17, v18
    v_lshlrev_b32 v17, 6, v17
    v_and_b32 v18, 3, v0
    v_lshl_add_u32 v17, v18, 4, v17      ; colb
    s_mov_b32 s{sA}, {ROWW}
    v_mul_lo_u32 v18, v21, s{sA}
    v_add_u32 v{vDGp}, v18, v17
    """)
    for q in range(1, 4): e(f"v_add_u32 v{vDGp+q}, {q * (8 * ROWW - 1024)}, v{vDGp}")
    e(f"s_mul_i32 s{sXS}, s{sW}, {XBW}\ns_add_u32 s{sXS}, s{sXS}, {XB0}")
    e(f"""
    s_lshr_b32 s{sA}, s2, 3
    s_and_b32 s{sA}, s{sA}, 7
    s_mul_i32 s{sA}, s{sA}, 36
    s_mul_i32 s{sB}, s{sW}, 9
    s_add_u32 s{sA}, s{sA}, s{sB}
    v_add_u32 v16, s{sA}, v0
    s_mov_b32 s{sA}, {ROWW}
    v_mul_lo_u32 v17, v16, s{sA}
    v_mov_b32 v18, 0x7ff00000
    v_cmp_gt_u32 vcc, 9, v0
    s_nop 1
    v_cndmask_b32 v{vTG}, v18, v17, vcc
    """)
    e("s_waitcnt lgkmcnt(0)")
    if DIAG: e(f"v_mov_b32 v{vDIAG}, 0\nv_writelane_b32 v{vDIAG}, s100, 0")
    pstamp(e, 50)
    for s_, nb in ((S_X, 2048 * ROWD), (S_WG, 576 * ROWW), (S_WU, 576 * ROWW)): srd(e, s_, None, nb)
    def xdma_rot(pos):
        e(f"s_lshr_b32 s{sB}, s2, 6\ns_add_u32 s{sB}, s{sB}, {pos}\ns_cmp_ge_u32 s{sB}, 5\ns_cselect_b32 s{sC}, 5, 0\ns_sub_u32 s{sB}, s{sB}, s{sC}")
        e(f"s_lshl_b32 s{sA}, s{sB}, 7\ns_lshl_b32 s{sB}, s{sB}, 12\ns_add_u32 s{sB}, s{sB}, s{sXS}")
        for q in range(4):
            e(f"s_add_u32 m0, s{sB}, {q * 1024}\ns_nop 0")
            e.vmem(f"buffer_load_dwordx4 v{96+q}, {SRD(S_X)}, s{sA} offen lds", ("x", "A"))
    def udma(u):
        for pre, loads in dma_groups(u):
            for s in pre: e(s)
            e("s_nop 0")
            for s in loads: e.vmem(s, ("u", u))
    NET = next((int(a[2:]) for a in ABL if a.startswith("et")), 0)
    if "notouch" not in ABL:
        for u in range(NET):
            for t, isv in touch_ops(u): (e.vmem(t, "touch") if isv else e(t))
    for pos in range(5): xdma_rot(pos)
    udma(0); udma(1)
    pstamp(e, 51)
    e(f"""
    v_lshrrev_b32 v16, 5, v0             ; h
    v_bfe_u32 v17, v0, 4, 1              ; fb
    v_bfe_u32 v18, v0, 2, 2              ; r
    v_and_b32 v19, 3, v0                 ; c4
    v_lshlrev_b32 v20, 5, v17
    v_lshl_add_u32 v20, v19, 3, v20      ; 32 fb + 8 c4
    v_lshrrev_b32 v21, 1, v18
    v_lshlrev_b32 v21, 6, v21            ; 64*sw
    v_xor_b32 v22, 64, v21
    v_lshl_add_u32 v23, v16, 3, v18      ; 8h + r
    v_lshlrev_b32 v2, 7, v23
    v_add3_u32 v{vPGp[0]}, v2, v21, v20
    v_add3_u32 v{vPGp[1]}, v2, v22, v20
    v_and_b32 v16, 31, v0
    v_lshrrev_b32 v17, 5, v0
    v_lshrrev_b32 v18, 3, v16
    v_lshlrev_b32 v18, 10, v18
    v_and_b32 v19, 7, v16
    v_lshl_add_u32 v18, v19, 7, v18
    v_add_u32 v18, s{sXS}, v18
    v_bfe_u32 v19, v16, 1, 3
    """)
    for q4 in range(4):
        e(f"v_add_u32 v20, {2*q4}, v17\nv_xor_b32 v20, v20, v19\nv_lshl_add_u32 v{100+q4}, v20, 4, v18")
    pstamp(e, 52)
    e.wait(vm=("x", "A"))
    pstamp(e, 53)
    for kc in range(5):
        for q4 in range(4):
            e.lds(f"ds_read_b128 {ar(4 * (4*kc + q4))}, v{100+q4} offset:{kc * 4096}", ("xf", 4*kc + q4))
    for q in range(4): e(f"v_mov_b32 v{16+q}, v{96+q}\nv_mov_b32 v{20+q}, v{100+q}")
    e.wait(lg=("xf", 19))
    e(f"s_lshl_b32 s{sXB2}, s{sW}, 13\ns_add_u32 s{sXB2}, s{sXB2}, {3 * SLOT}\ns_lshl_b32 s{sXB3}, s{sW}, 12\ns_add_u32 s{sXB3}, s{sXB3}, {FOLD}")
    e(f"s_sub_u32 s{sA}, s{sXB2}, s{sXS}")
    for q in range(4): e(f"v_add_u32 v{20+q}, s{sA}, v{20+q}")
    stamp(e, 1)

def late_setup():
    L = []
    def a(txt):
        for x in txt.split("\n"):
            x = x.split(";")[0].strip()
            if x: L.append(x)
    for s_, nb in ((S_WD, 4608 * ROWD), (S_WS, WS_BYTES), (S_DBG, 256), (S_CD, 576 * ROWD), (S_SD, 576 * ROWD), (S_GW, 1152)):
        a(f"s_and_b32 s{s_+1}, s{s_+1}, 0xffff\ns_mov_b32 s{s_+2}, {nb}\ns_mov_b32 s{s_+3}, 0x20000")
    a(f"""
    s_lshr_b32 s{sA}, s2, 3
    s_and_b32 s{sA}, s{sA}, 7
    s_mul_i32 s{sA}, s{sA}, 36
    s_mul_i32 s{sB}, s{sW}, 9
    s_add_u32 s{sA}, s{sA}, s{sB}
    v_add_u32 v192, s{sA}, v0
    s_mov_b32 s{sA}, {ROWW}
    v_mul_lo_u32 v193, v192, s{sA}
    v_mul_u32_u24 v194, {ROWD}, v192
    v_mov_b32 v195, 0x7ff00000
    v_cmp_gt_u32 vcc, 9, v0
    s_nop 1
    v_cndmask_b32 v{vTG}, v195, v193, vcc
    v_cndmask_b32 v206, v195, v194, vcc
    """)
    L.append(("s_nop 0", "tg_ready"))
    a(f"""
    s_lshl_b32 s{sA}, s{sI}, 4
    s_add_u32 s{sA}, s{sA}, s{sJ}
    s_xor_b32 s{sD}, s{sA}, 1
    s_and_b32 s{sFoffP}, s{sD}, 63
    s_lshl_b32 s{sFoffP}, s{sFoffP}, 2
    s_lshr_b32 s{sFbitP}, s{sD}, 6
    s_lshl_b32 s{sB}, s{sD}, 7
    s_lshl_b32 s{sC}, s{sW}, 2
    s_add_u32 s{sB}, s{sB}, s{sC}
    s_add_u32 s{sOBp}, s{sB}, {WS_FLAG}
    s_and_b32 s{sB}, s{sA}, 63
    s_lshl_b32 s{sB}, s{sB}, 2
    s_lshr_b32 s{sC}, s{sA}, 6
    s_lshl_b32 s{sC}, 1, s{sC}
    v_mov_b32 v{vMISC}, s{sC}
    v_mov_b32 v{vPOLL}, s{sB}
    v_mov_b32 v{vZERO}, 0
    v_mov_b32 v192, 0x7ffffff0
    s_lshl_b32 s{sB}, s{sA}, 7
    s_add_u32 s{sB}, s{sB}, {WS_FLAG}
    s_lshl_b32 s{sC}, s{sW}, 2
    s_add_u32 s{sC}, s{sC}, s{sB}
    v_mov_b32 v{vOB}, s{sC}
    v_mov_b32 v193, s{sB}
    v_cmp_eq_u32 vcc, 0, v0
    s_lshl_b32 s{sC}, s{sW}, 6
    v_add_u32 v194, s{sC}, v0
    v_cndmask_b32 v{vOB}, v192, v{vOB}, vcc
    v_cmp_eq_u32 vcc, 0, v194
    v_mov_b32 v200, 0
    v_mov_b32 v201, 0
    v_cndmask_b32 v{vPOLL}, v192, v{vPOLL}, vcc
    v_cndmask_b32 v204, v192, v193, vcc
    v_mov_b32 v202, 0
    v_mov_b32 v203, 0
    """)
    L.append(("s_nop 0", "clr_ready"))
    a(f"""
    s_mul_i32 s{sB}, s{sW}, 18432
    s_mul_i32 s{sC}, s{sA}, 73728
    s_add_u32 s{sC}, s{sC}, s{sB}
    s_add_u32 s{sHXo}, s{sC}, {WS_HX}
    s_mul_i32 s{sC}, s{sD}, 73728
    s_add_u32 s{sC}, s{sC}, s{sB}
    s_add_u32 s{sHXp}, s{sC}, {WS_HX}
    s_lshr_b32 s{sB}, s{sI}, 1
    s_mul_i32 s{sB}, s{sB}, {8 * PS}
    s_mul_i32 s{sC}, s{sW}, {2 * PS}
    s_add_u32 s{sB}, s{sB}, s{sC}
    s_lshr_b32 s{sC}, s{sJ}, 1
    s_mul_i32 s{sC}, s{sC}, {18 * 2048}
    s_add_u32 s{sB}, s{sB}, s{sC}
    s_add_u32 s{sB}, s{sB}, {WS_PART}
    s_mul_i32 s{sC}, s{sODD}, {10 * 2048}
    s_add_u32 s{sPARTp}, s{sB}, s{sC}
    s_add_u32 s{sC}, s{sODD}, 8
    s_lshl_b32 s{sC}, s{sC}, 11
    s_add_u32 s{sPARTs}, s{sB}, s{sC}
    s_mul_i32 s{sA}, s{sJ}, 288
    s_lshl_b32 s{sB}, s{sODD}, 5
    s_add_u32 s{sB}, s{sA}, s{sB}
    s_xor_b32 s{sC}, s{sODD}, 1
    s_lshl_b32 s{sC}, s{sC}, 8
    s_add_u32 s{sC}, s{sA}, s{sC}
    s_xor_b32 s{sD}, s{sJ}, 1
    s_mul_i32 s{sD}, s{sD}, 288
    s_lshl_b32 s{sTGs}, s{sC}, 1
    s_mul_i32 s{sE}, s{sW}, {64 * ROWW}
    s_add_u32 s{sSA}, s{sE}, s{sTGs}
    s_mul_i32 s{sE}, s{sW}, {16 * ROWW}
    s_add_u32 s{sE}, s{sE}, {512 * ROWW}
    s_add_u32 s{sSL}, s{sE}, s{sTGs}
    s_mul_i32 s90, s{sODD}, 640
    s_mul_i32 s91, s{sODD}, 576
    s_xor_b32 s92, s{sODD}, 1
    s_lshl_b32 s93, s92, 9
    s_add_u32 s91, s91, s93
    s_mul_i32 s{sE}, s{sA}, {ROWD}
    s_add_u32 s{sTDo}, s{sE}, s90
    s_mul_i32 s{sE}, s{sD}, {ROWD}
    s_add_u32 s{sTDp}, s{sE}, s90
    s_and_b32 s{sE}, s{sJ}, 14
    s_mul_i32 s{sE}, s{sE}, {288 * ROWD}
    s_add_u32 s{sTS}, s{sE}, s91
    s_lshl_b32 s93, s92, 5
    s_add_u32 s93, s{sD}, s93
    s_lshl_b32 s94, s{sODD}, 8
    s_add_u32 s94, s{sD}, s94
    s_lshl_b32 s{sE}, s{sW}, 5
    s_add_u32 s{sF}, s{sB}, s{sE}
    s_mul_i32 s{sF}, s{sF}, {ROWD}
    s_add_u32 s{sDAo}, s{sF}, s90
    s_add_u32 s{sF}, s93, s{sE}
    s_mul_i32 s{sF}, s{sF}, {ROWD}
    s_add_u32 s{sDAp}, s{sF}, s90
    s_lshl_b32 s{sE}, s{sW}, 3
    s_add_u32 s{sF}, s{sC}, s{sE}
    s_mul_i32 s{sF}, s{sF}, {ROWD}
    s_add_u32 s{sDLo}, s{sF}, s90
    s_add_u32 s{sF}, s94, s{sE}
    s_mul_i32 s{sF}, s{sF}, {ROWD}
    s_add_u32 s{sDLp}, s{sF}, s90
    s_lshl_b32 s{sE}, s{sW}, 6
    s_add_u32 s{sF}, s{sB}, s{sE}
    s_mul_i32 s{sF}, s{sF}, {ROWD}
    s_add_u32 s{sUA}, s{sF}, s91
    s_add_u32 s{sF}, s93, s{sE}
    s_mul_i32 s{sF}, s{sF}, {ROWD}
    s_add_u32 s{sUB}, s{sF}, s91
    s_cmp_lt_u32 s{sW}, 2
    s_cselect_b32 s{sF}, s{sC}, s94
    s_and_b32 s{sE}, s{sW}, 1
    s_lshl_b32 s{sE}, s{sE}, 4
    s_add_u32 s{sF}, s{sF}, s{sE}
    s_mul_i32 s{sF}, s{sF}, {ROWD}
    s_add_u32 s{sUL}, s{sF}, s91
    s_cmp_ge_u32 s{sJ}, 9
    s_cselect_b32 s{sCS}, 1, 0
    s_cselect_b32 s{S_T}, s{S_SD}, s{S_CD}
    s_cselect_b32 s{S_T+1}, s{S_SD+1}, s{S_CD+1}
    s_mov_b32 s{S_T+2}, {576 * ROWD}
    s_mov_b32 s{S_T+3}, 0x20000
    s_lshl_b32 s{sB}, s{sCS}, 3
    s_sub_u32 s{sCcol}, s{sJ}, s{sB}
    s_mul_i32 s{sTrow}, s{sCcol}, {32 * ROWD}
    v_lshrrev_b32 v192, 5, v0
    v_bfe_u32 v193, v0, 4, 1
    v_bfe_u32 v194, v0, 2, 2
    v_and_b32 v195, 3, v0
    v_lshlrev_b32 v196, 5, v193
    v_lshl_add_u32 v196, v195, 3, v196
    v_lshrrev_b32 v197, 1, v194
    v_lshlrev_b32 v197, 6, v197
    v_xor_b32 v198, 64, v197
    v_lshl_add_u32 v199, v192, 3, v194
    v_lshl_add_u32 v{vPGs}, v199, 6, v196
    v_lshl_add_u32 v199, v192, 2, v194
    v_lshlrev_b32 v205, 7, v199
    v_add3_u32 v{vPDp[0]}, v205, v197, v196
    v_add3_u32 v{vPDp[1]}, v205, v198, v196
    v_lshl_add_u32 v{vPDs}, v199, 6, v196
    v_bfe_u32 v192, v0, 2, 1
    v_bfe_u32 v193, v0, 4, 1
    v_xor_b32 v192, v192, v193
    v_lshlrev_b32 v192, 6, v192
    v_lshl_add_u32 v192, v195, 4, v192
    v_lshrrev_b32 v193, 3, v0
    v_mul_u32_u24 v193, {ROWD}, v193
    v_add_u32 v{vDDp}, v193, v192
    v_lshrrev_b32 v192, 2, v0
    v_lshlrev_b32 v193, 4, v195
    s_mov_b32 s{sA}, {ROWW}
    v_mul_lo_u32 v194, v192, s{sA}
    v_add_u32 v{vDGs}, v194, v193
    v_mul_u32_u24 v194, {ROWD}, v192
    v_add_u32 v{vDDs}, v194, v193
    """)
    for q in range(1, 4):
        a(f"v_add_u32 v{vDDp+q}, {q * (8 * ROWD - 1024)}, v{vDDp}")
        a(f"v_add_u32 v{vDGs+q}, {q * (16 * ROWW - 1024)}, v{vDGs}")
        a(f"v_add_u32 v{vDDs+q}, {q * (16 * ROWD - 1024)}, v{vDDs}")
    a(f"v_mov_b32 v{vTD}, v206")
    L.append(("s_nop 0", "late_done"))
    return [(x, 1) if isinstance(x, str) else (x[0], 1, x[1]) for x in L]

vR = 24; vO = 56; vP = 64; vM = 68; vFA = 72; vFB = 73; vFC = 74; vFD = 75
def fold_write_ops(acc=vTACC):
    ops = [f"s_lshl_b32 s{sE}, s{sW}, 12", f"s_add_u32 s{sE}, s{sE}, {FOLD}", f"v_add_u32 v21, s{sE}, v{vL16}"]
    w = [f"ds_write_b128 v21, {vr(acc + 4*z)} offset:{1024*z}" for z in range(4)]
    return ops, w
def fold_setup_ops():
    ops = [f"s_lshr_b32 s{sE}, s{sW}, 1", f"s_lshl_b32 s{sE}, s{sE}, 11", f"s_add_u32 s{sE}, s{sE}, {FOLD}",
           f"v_add_u32 v{vFB}, s{sE}, v{vL16}",
           f"s_and_b32 s{sE}, s{sW}, 1", f"s_lshl_b32 s{sF}, s{sCS}, 1", f"s_or_b32 s{sE}, s{sE}, s{sF}"]
    masks = [0b1100, 0b1010, 0b0110, 0b0000]
    neg = {0: (2, 3), 1: (1, 3), 2: (1, 2), 3: ()}
    for g in range(4):
        m = sum(1 << i for i in neg[g])
        ops += [f"s_lshr_b32 s{sF}, {m}, s{sE}", f"s_bitcmp1_b32 s{sF}, 0", f"s_cselect_b32 s{sSG+g}, 0xbf800000, 1.0"]
    ops += [f"s_cmp_eq_u32 s{sE}, 0", f"s_cselect_b32 s{sEA}, 1.0, 0", f"s_cselect_b32 s{sEB}, 1.0, 0",
            f"s_cmp_eq_u32 s{sE}, 3", f"s_cselect_b32 s{sEA}, 0xbf800000, s{sEA}", f"s_cselect_b32 s{sEB}, 1.0, s{sEB}"]
    return ops
def fold_reads():
    return [(f"ds_read_b128 {vr(vR + 8*g + 4*z)}, v{vFB} offset:{4096*g + 1024*z}", ("fr", g, z)) for g in range(4) for z in range(2)]
def fold_math(signs=None):
    if signs is None: signs = [f"s{sSG+g}" for g in range(4)]
    ops = []
    for r in range(8):
        R = [vR + 8*g + r for g in range(4)]
        if r == 0:
            ops += [f"v_mul_f32 v{vFD}, {signs[2]}, v{R[2]}", f"v_fma_f32 v{vFD}, {signs[3]}, v{R[3]}, v{vFD}",
                    f"v_mul_f32 v{vFD}, v{vFC}, v{vFD}",
                    f"v_fma_f32 v{vO}, {signs[0]}, v{R[0]}, v{vFD}", f"v_fma_f32 v{vO}, {signs[1]}, v{R[1]}, v{vO}"]
        else:
            ops += [f"v_mul_f32 v{vO+r}, {signs[0]}, v{R[0]}"] + [f"v_fma_f32 v{vO+r}, {signs[g]}, v{R[g]}, v{vO+r}" for g in range(1, 4)]
    for q in range(4): ops.append(f"v_cvt_pk_bf16_f32 v{vP+q}, v{vO+2*q}, v{vO+2*q+1}")
    ops += ["s_nop 1", f"v_permlane32_swap_b32 v{vP}, v{vP+2}", f"v_permlane32_swap_b32 v{vP+1}, v{vP+3}"]
    return ops
def fold_mask_ops():
    return [f"s_lshr_b32 s{sE}, s{sW}, 1", f"s_or_b32 s{sE}, s{sE}, s{sI}", f"s_cmp_eq_u32 s{sE}, 0", f"s_cselect_b32 s{sE}, 512, 0",
            f"v_cmp_gt_u32 vcc, s{sE}, v{vL16}", f"v_mov_b32 v{vFC}, 1.0", "s_nop 0", f"v_cndmask_b32 v{vFC}, v{vFC}, v{vZERO}, vcc"]
def z_addr_ops():
    return [f"s_and_b32 s{sE}, s{sW}, 1", f"s_lshl_b32 s{sE}, s{sE}, 1", f"s_add_u32 s{sE}, s{sE}, s{sCS}",
            f"s_mul_i32 s{sC}, s{sE}, {18*33*1024}", f"s_lshl_b32 s{sE}, s{sI}, 1", f"s_lshr_b32 s{sF}, s{sW}, 1", f"s_add_u32 s{sE}, s{sE}, s{sF}",
            f"s_lshl_b32 s{sE}, s{sE}, 10", f"s_add_u32 s{sC}, s{sC}, s{sE}", f"s_add_u32 s{sC}, s{sC}, {WS_Z}",
            f"s_mul_i32 s{sE}, s{sCcol}, {33*1024}", f"v_add_u32 v{vFA}, s{sE}, v{vL16}",
            f"v_bfe_u32 v{vM}, v{vL16}, 4, 5", f"s_lshl_b32 s{sE}, s{sCcol}, 5", f"v_add_u32 v{vM}, s{sE}, v{vM}",
            f"v_sub_u32 v{vM+1}, 576, v{vM}", f"v_lshrrev_b32 v{vM+2}, 5, v{vM+1}", f"v_mul_u32_u24 v{vM+2}, {33*1024}, v{vM+2}",
            f"v_and_b32 v{vM+1}, 31, v{vM+1}", f"v_lshlrev_b32 v{vM+1}, 4, v{vM+1}", f"v_and_b32 v{vM+3}, 512, v{vL16}",
            f"v_add3_u32 v{vFB}, v{vM+1}, v{vM+2}, v{vM+3}",
            f"v_cmp_eq_u32 vcc, 0, v{vM}", f"v_mov_b32 v{vM+1}, 0x7ff00000", "s_nop 0", f"v_cndmask_b32 v{vFB}, v{vFB}, v{vM+1}, vcc",
            f"s_cmp_eq_u32 s{sCS}, 1", f"s_cselect_b32 s{sD}, 0x80008000, 0"]
def z_store_ops():
    ops = [(f"buffer_store_dwordx4 {vr(vP)}, v{vFA}, {SRD(S_WS)}, s{sC} offen{ZF}", "vm")]
    ops += [(f"v_xor_b32 v{vM+q}, s{sD}, v{vP+q}", None) for q in range(4)]
    ops += [(f"buffer_store_dwordx4 {vr(vM)}, v{vFB}, {SRD(S_WS)}, s{sC} offen{ZF}", "vm")]
    return ops
def z512_ops(lbl):
    return f"""
    s_lshr_b32 s{sE}, s{sW}, 1
    s_or_b32 s{sE}, s{sE}, s{sI}
    s_cmp_eq_u32 s{sE}, 0
    s_cbranch_scc0 {lbl}
    v_mul_f32 v{vO}, s{sEA}, v{vR + 16}
    v_fma_f32 v{vO}, s{sEB}, v{vR + 24}, v{vO}
    v_cmp_gt_u32 vcc, 512, v{vL16}
    v_mov_b32 v{vO+1}, 0
    s_nop 0
    v_cndmask_b32 v{vO}, v{vO+1}, v{vO}, vcc
    v_cvt_pk_bf16_f32 v{vO+4}, v{vO}, v{vO+1}
    v_mov_b32 v{vO+5}, 0
    v_mov_b32 v{vO+6}, 0
    v_mov_b32 v{vO+7}, 0
    s_add_u32 s{sE}, s{sC}, {32 * 1024}
    buffer_store_dwordx4 {vr(vO+4)}, v{vFA}, {SRD(S_WS)}, s{sE} offen{ZF}
    s_nop 1
    v_xor_b32 v{vO+4}, s{sD}, v{vO+4}
    buffer_store_dwordx4 {vr(vO+4)}, v{vFB}, {SRD(S_WS)}, s{sE} offen{ZF}
    {lbl}:
    """

def gen_main(e):
    def set_work(u):
        pats = unit_patterns(u); sb = (u % 4) * SLOT
        for i, p in enumerate(pats):
            e(f"v_add_u32 v{vWK[i]}, {sb}, v{p}" if sb else f"v_mov_b32 v{vWK[i]}, v{p}")
    def reads(u, n):
        gn = 36 * u + n; b = aFR + 4 * (gn % 8); c = 0
        for (do, nr, ins, va, off) in frag_reads(u, n):
            e.lds(f"{ins} {ar(b + do, nr)}, v{va} offset:{off}", ("f", gn)); c += 1
        return c
    if "pk" in ABL: e(f"s_mov_b32 s{sPKC}, {NLOG2E}\ns_mov_b32 s{sPKC+1}, {NLOG2E}\ns_mov_b32 s{sPK1}, 1.0\ns_mov_b32 s{sPK1+1}, 1.0")
    e.wait(vm=("u", 0)); e("s_barrier")
    if DIAG: e("s_waitcnt lgkmcnt(0)"); settle(e); stamp(e, 2)
    set_work(0)
    for n in range(6): reads(0, n)

    queue = []
    def add(ops, gslot):
        prev = None
        merged = []
        for o in ops:
            if not isinstance(o, Op):
                if isinstance(o, str): o = (o, 1)
                if o[0].startswith("s_cselect") and merged and not isinstance(merged[-1], Op):
                    p_ = merged[-1]
                    assert p_[0].split("\n")[0].startswith(("s_cmp", "s_bitcmp")), p_
                    merged[-1] = (p_[0] + "\n" + o[0], p_[1] + 1) + tuple(p_[2:]); continue
            merged.append(o)
        for o in merged:
            if isinstance(o, Op): queue.append(o); continue
            op = Op(o[0], o[1], [(prev, 1)] if prev else [], gslot, o[2] if len(o) > 2 else None)
            queue.append(op); prev = op
    done = set()
    def ready(o):
        n = len(e.l)
        return all(d.at is not None and n - d.at >= dist for d, dist in o.deps)
    def emit(o):
        queue.remove(o); o.at = len(e.l); e(o.text)
        if o.tag: done.add(o.tag)
        return o.cost
    def fill(gs, room):
        used = 0
        while True:
            for o in queue[:40]:
                if o.nb <= gs and (o.cost <= room - used or (o.cost > 2 and used == 0)) and ready(o):
                    used += emit(o); break
            else: return used
    def force(o):
        for d, dist in o.deps:
            if d.at is None: force(d)
        while not ready(o): e("s_nop 0")
        emit(o)
    def drain_until(tag):
        while tag not in done:
            tgt = next(o for o in queue if o.tag == tag)
            force(tgt)
    def pop(): force(queue[0])
    G = lambda u, n: 36 * u + n
    P_early = []
    MT = []
    add(late_setup(), G(0, 0))
    def xb_dma(u_, kc, slots):
        base = (f"s{sXB2}", (kc - 5) * 4096) if kc < 7 else (f"s{sXB3}", 0)
        P_early.append((u_, slots[0] - 1, f"s_movk_i32 s{sXB}, {128 * kc}", None))
        for q in range(4):
            P_early.append((u_, slots[q] - 1, f"s_add_u32 m0, {base[0]}, {base[1] + q * 1024}", None))
            P_early.append((u_, slots[q], f"buffer_load_dwordx4 v{16+q}, {SRD(S_X)}, s{sXB} offen lds", ("x", kc)))
    xb_dma(0, 5, [1, 2, 3, 4]); xb_dma(0, 6, [5, 6, 7, 8]); xb_dma(0, 7, [9, 10, 11, 12]); xb_dma(1, 8, [7, 8, 9, 10])
    _tmp_last.clear()
    for p in range(4):
        ops, last = silu_chain(vG[p & 1], 32, G(3, 3) if p == 0 else G(4*p + 2, 3)); add(ops, 0)
        add(h_chain(vG[p & 1], vU, 2*p, last, 0, G(4*p + 4, 3)), 0)
        add(h_chain(vG[p & 1] + 16, vU + 16, 2*p + 1, last, 16, G(4*p + 4, 3)), 0)
    ops, last = silu_chain(vG[0], 16, G(17, 3)); add(ops, 0); add(h_chain(vG[0], vUS, 8, last, 0, G(18, 3)), 0)
    deadlines = {G(6, 0): [("h", 0), ("h", 1)], G(10, 0): [("h", 2), ("h", 3)], G(14, 0): [("h", 4), ("h", 5)], G(18, 0): [("h", 6), ("h", 7)], G(18, 32): [("h", 8)]}
    post = {}
    def P(u, n, text, tag=None): post.setdefault((u, n), []).append((text, tag))
    for (u_, n_, t_, g_) in P_early: P(u_, n_, t_, g_)
    pre = {}
    def PRE(u, n, fn): pre.setdefault((u, n), []).append(fn)
    PRE(1, 6, lambda: drain_until("clr_ready"))
    P(1, 30, f"buffer_store_dwordx4 v[200:203], v204, {SRD(S_WS)}, 0 offen sc1", "clr")
    PRE(0, 33, lambda: drain_until("tg_ready"))
    PRE(3, 0, lambda: drain_until("late_done"))
    def sched_dma(u, tgt, slots):
        g = dma_groups(tgt); i = 0
        for pre_, loads in g:
            for s_ in pre_: P(u, slots[i], s_)
            i += 1
            for s_ in loads: P(u, slots[i], s_, ("u", tgt)); i += 1
    STD = [1, 2, 4, 6, 8, 10, 11, 13, 15, 17, 19, 20]
    TWO_A = [1, 2, 3, 4, 5, 7, 8, 9, 10, 11, 13, 14]; TWO_B = [16, 17, 19, 21, 23, 25, 26, 27, 28, 29, 30, 31]
    sched_dma(0, 2, [13, 14, 15, 16, 17, 19, 20, 21, 22, 23, 25, 26])
    sched_dma(1, 4, [12, 13, 15, 17, 19, 21, 22, 24, 26, 27, 28, 29])
    sched_dma(2, 3, [0, 1, 2, 3, 4, 5, 6, 7, 9, 10, 11, 12]); sched_dma(2, 5, TWO_B)
    first_std = 3
    for u in range(first_std, NUNIT - 3):
        if u + 3 == U_T1:
            for k_, s_ in enumerate(T_dma_addr(None)): P(u, k_ // 3, s_)
            sched_dma(u, u + 3, [11, 12, 13, 14, 15, 17, 18, 19, 20, 21, 23, 24])
        else:
            sched_dma(u, u + 3, STD)
    if "notouch" not in ABL:
        NET = next((int(a[2:]) for a in ABL if a.startswith("et")), 0)
        for k_, u in enumerate(range(max(NET, 2), PF)):
            for t, isv in touch_ops(u): P(0, 34 if k_ < 2 else 35, t, "touch" if isv else None)
        PFL = next((int(a[3:]) for a in ABL if a.startswith("pfl")), 20)
        cnt_ = {}
        for v in range(PF, NUNIT):
            u = max(1, v - PFL)
            while cnt_.get(u, 0) >= 2: u += 1
            k_ = cnt_.get(u, 0); cnt_[u] = k_ + 1
            sl = (31 + k_) if u in (1, 2) else (22 + 2 * k_)
            for t, isv in touch_ops(v): P(u, sl, t, "touch" if isv else None)
    PRE(1, 0, lambda: e.wait(vm=("x", 7)))
    for k_ in range(8):
        kc = 5 + k_ // 4; q4 = k_ % 4
        P(1, k_ // 4, f"ds_read_b128 {ar(4 * (4*kc + q4))}, v{20+q4} offset:{(kc - 5) * 4096}", ("lds", ("xf", 4*kc + q4)))
    P(1, 2, f"s_sub_u32 s{sXB}, s{sXB3}, s{sXB2}")
    for q4 in range(4): P(1, 2, f"v_add_u32 v{20+q4}, s{sXB}, v{20+q4}")
    for q4 in range(4): P(1, 3, f"ds_read_b128 {ar(4 * (28 + q4))}, v{20+q4}", ("lds", ("xf", 28 + q4)))
    PRE(1, 6, lambda: e.wait(lg=("xf", 31)))
    PRE(2, 8, lambda: e.wait(vm=("x", 8)))
    for q4 in range(4): P(2, 8, f"ds_read_b128 {ar(4 * (32 + q4))}, v{20+q4}", ("lds", ("xf", 32 + q4)))
    P(4, 34, f"buffer_atomic_or v{vMISC}, v{vPOLL}, {SRD(S_DBG)}, 0 offen", "clrbit")
    P(8, 24, f"buffer_load_dword v{vPOLL}, v{vZERO}, {SRD(S_DBG)}, s{sFoffP} offen sc1", "pollc")
    def chk_c():
        e.wait(vm="pollc"); e(f"v_readfirstlane_b32 s{sE}, v{vPOLL}\ns_nop 3\ns_bitcmp1_b32 s{sE}, s{sFbitP}\ns_cbranch_scc0 K1_spinc\nK1_spinc_done:")
    PRE(11, 6, chk_c)
    if "notouch" not in ABL:
        tt = [f"s_lshr_b32 s{sE}, s2, 3", f"s_and_b32 s{sE}, s{sE}, 7", f"s_mul_i32 s{sE}, s{sE}, 36", f"s_mul_i32 s{sC}, s{sW}, 9",
              f"s_add_u32 s{sE}, s{sE}, s{sC}", f"s_lshl_b32 s{sE}, s{sE}, 7", f"v_lshlrev_b32 v{vMISC}, 3, v{vL16}",
              f"v_add_u32 v{vMISC}, s{sE}, v{vMISC}", f"v_cmp_gt_u32 vcc, 144, v{vL16}", f"v_mov_b32 v{vPOLL}, 0x7ff00000", "s_nop 0",
              f"v_cndmask_b32 v{vMISC}, v{vPOLL}, v{vMISC}, vcc"]
        for k_, s_ in enumerate(tt): P(12, 26 + k_ // 2, s_)
        P(13, 27, f"buffer_load_dword a{aDUM}, v{vMISC}, {SRD(S_T)}, s{sTrow} offen", "touch")
        P(16, 26, f"s_cmp_eq_u32 s{sJ}, 0\ns_cselect_b32 s{sTCH}, {8 * 32 * ROWD}, 0\ns_cmp_gt_u32 s{sJ}, 1\ns_cselect_b32 s{sTCH}, 0x7ff00000, s{sTCH}")
        P(16, 27, f"buffer_load_dword a{aDUM}, v{vMISC}, {SRD(S_SD)}, s{sTCH} offen", "touch")
    if "notouch" not in ABL and "nomt" not in ABL:
        mt = [f"s_lshr_b32 s{sE}, s{sW}, 1\ns_lshl_b32 s{sE}, s{sE}, 3\ns_add_u32 s{sE}, s{sE}, {KA_CS}\ns_load_dwordx2 s[{S_DBG}:{S_DBG+1}], s[0:1], s{sE}",
              f"v_lshrrev_b32 v24, 4, v{vL16}", f"v_mul_u32_u24 v25, 57, v24", f"v_lshrrev_b32 v25, 9, v25",
              f"v_mul_u32_u24 v26, 9, v25", f"v_sub_u32 v26, v24, v26", f"s_lshl_b32 s{sE}, s2, 2", f"s_and_b32 s{sC}, s{sW}, 1",
              f"s_lshl_b32 s{sC}, s{sC}, 1", f"s_add_u32 s{sE}, s{sE}, s{sC}", f"v_add_u32 v25, s{sE}, v25", f"v_lshlrev_b32 v25, 12, v25",
              f"v_lshl_add_u32 v25, v26, 7, v25", f"v_mov_b32 v26, 0x7ff00000", f"v_cmp_gt_u32 vcc, 18, v24", "s_nop 1",
              f"v_cndmask_b32 v25, v26, v25, vcc"]
        for k_, s_ in enumerate(mt): P(25, 8 + k_, s_)
        P(25, 34, f"s_and_b32 s{S_DBG+1}, s{S_DBG+1}, 0xffff\ns_mov_b32 s{S_DBG+2}, {2048 * 4096}")
        MT.append(f"buffer_load_dword a{aDUM}, v25, {SRD(S_DBG)}, 0 offen")
    if "nocpf" not in ABL:
        c2 = [f"s_getpc_b64 s[{4}:{5}]\nK1_pc3:\ns_sub_u32 s4, s4, K1_pc3-K1_pc\ns_subb_u32 s5, s5, 0\ns_mov_b32 s{sCP}, s4\ns_and_b32 s{sCP+1}, s5, 0xffff\ns_mov_b32 s{sCP+2}, K1_codeend-K1_pc\ns_mov_b32 s{sCP+3}, 0x20000",
              f"s_lshr_b32 s{sE}, s2, 3", f"s_mul_i32 s{sE}, s{sE}, {CPF_LINES}", f"v_lshrrev_b32 v192, 4, v{vL16}", f"v_add_u32 v193, s{sE}, v192",
              f"v_lshlrev_b32 v193, 7, v193", f"v_mov_b32 v194, 0x7ff00000", f"v_cmp_gt_u32 vcc, {CPF_LINES}, v192", "s_nop 1", f"v_cndmask_b32 v193, v194, v193, vcc"]
        for k_, s_ in enumerate(c2): P(11, 23 + k_, s_)
        P(11, 34, f"s_cmp_eq_u32 s{sW}, 0\ns_cselect_b32 s{sE}, 0, 0x7ff00000")
        P(11, 35, f"buffer_load_dword a{aDUM}, v193, {SRD(sCP)}, s{sE} offen", "touch")
    hs = [(t, h) for t in range(9) for h in range(2)]
    hplan = [(6, 25), (7, 25), (8, 25), (9, 25), (10, 25), (11, 25), (12, 25), (13, 25), (14, 25), (14, 31), (15, 25), (15, 31),
             (17, 23), (17, 29), (17, 34), (18, 23), (18, 33), (19, 4)]
    for (t, h), (u, n) in zip(hs, hplan):
        a, b = h_store(t, h); P(u, n, a); P(u, n, b, ("hst", t))
        need = ("h", t)
        PRE(u, n, (lambda need=need: drain_until(need)))
    def mkflag(tag, val):
        def f():
            e.wait(vm=tag); e(f"v_mov_b32 v{vMISC}, {val}")
            e.vmem(f"buffer_store_dword v{vMISC}, v{vOB}, {SRD(S_WS)}, 0 offen sc1", ("flag", val))
        return f
    PRE(19, 9, mkflag(("hst", 7), 1)); PRE(20, 0, mkflag(("hst", 8), 2))
    def mkchk(tag, val, lbl):
        def f():
            e.wait(vm=tag)
            e(f"v_readfirstlane_b32 s{sE}, v{vPOLL}\ns_nop 3\ns_cmp_ge_u32 s{sE}, {val}\ns_cbranch_scc0 {lbl}\n{lbl}_done:")
        return f
    P(20, 22, f"buffer_load_dword v{vPOLL}, v{vZERO}, {SRD(S_WS)}, s{sOBp} offen sc1", "poll1")
    PRE(21, 12, mkchk("poll1", 1, "K1_spin"))
    P(22, 0, f"buffer_load_dword v{vPOLL}, v{vZERO}, {SRD(S_WS)}, s{sOBp} offen sc1", "poll2")
    PRE(22, 33, mkchk("poll2", 2, "K1_spin2"))
    hpl = [(21, 21 + 2*k_) for k_ in range(8)] + [(22, 21 + 2*k_) for k_ in range(8)] + [(23, 1), (23, 3)]
    for k_, (u, n) in enumerate(hpl):
        P(u, min(n, 35), f"s_add_u32 s{sD}, s{sHXp}, {(k_ * 1024) & ~4095}")
        P(u, min(n, 35), f"buffer_load_dwordx4 {ar(aHP + 4*k_)}, v{vL16}, {SRD(S_WS)}, s{sD} offen offset:{(k_ * 1024) & 4095} sc1", ("hp", k_))
    PRE(U_S, 17, lambda: e.wait(vm=("hp", 7)))
    PRE(U_S, 25, lambda: e.wait(vm=("hp", 15)))
    PRE(U_S, 33, lambda: e.wait(vm=("hp", 17)))
    for k_, s_ in enumerate(T_read_addr((U_T1 % 4) * SLOT)): P(21, 8 + k_ // 2, s_)
    pst = [f"v_bfe_u32 v20, v{vL16}, 4, 1", f"v_mul_u32_u24 v20, {PS}, v20" if PS < (1 << 24) else None,
           f"v_bfe_u32 v21, v{vL16}, 5, 4", f"s_and_b32 s{sE}, s{sI}, 1", f"s_lshl_b32 s{sE}, s{sE}, 4", f"v_add_u32 v21, s{sE}, v21",
           f"v_lshlrev_b32 v21, 4, v21", f"v_and_b32 v22, 512, v{vL16}", f"v_add3_u32 v{vPST}, v20, v21, v22"]
    for k_, s_ in enumerate(pst): P(22, 8 + k_, s_)
    if DIAG and "probe" in ABL:
        def mk(idx):
            def f():
                e(f"s_memrealtime s[96:97]\ns_waitcnt lgkmcnt(0)\nv_writelane_b32 v{vDIAG}, s96, {idx}")
            return f
        pts = [(19, 33), (20, 0), (20, 1), (21, 0), (21, 30), (21, 33), (22, 0), (22, 21), (22, 22), (22, 33), (23, 0), (23, 17), (23, 18)]
        for k_, (u_, n_) in enumerate(pts):
            pre.setdefault((u_, n_), []).insert(0, mk(44 + k_))
    if "nocpf" not in ABL and K2_LABELS:
        k2s, k2e = K2_LABELS
        cp = [f"s_getpc_b64 s[{S_T}:{S_T+1}]\nK1_pc2:\ns_add_u32 s{S_T}, s{S_T}, {k2s}-K1_pc2\ns_addc_u32 s{S_T+1}, s{S_T+1}, 0\ns_and_b32 s{S_T+1}, s{S_T+1}, 0xffff\ns_mov_b32 s{S_T+2}, {k2e}-{k2s}",
              f"s_lshr_b32 s{sE}, s2, 3", f"s_lshl_b32 s{sE}, s{sE}, 9", f"v_lshlrev_b32 v20, 3, v{vL16}", f"v_add_u32 v20, s{sE}, v20",
              f"v_mov_b32 v21, 0x7ff00000", f"v_cmp_gt_u32 vcc, 64, v{vL16}", "s_nop 1", f"v_cndmask_b32 v20, v21, v20, vcc"]
        for k_, s_ in enumerate(cp): P(23, 4 + k_, s_)
        P(23, 24, f"buffer_load_dword a{aDUM}, v20, {SRD(S_T)}, 0 offen", "touch")
    a_, w_ = fold_write_ops()
    def t_write():
        for s_ in a_: e(s_)
        e("s_nop 7")
        for s_ in w_: e.lds(s_, "fw")
    PRE(U_S, 0, t_write)
    fo = []
    fo += fold_setup_ops() + fold_mask_ops()
    add(fo, G(24, 0))
    add([("s_nop 0", 1, "fsetup")], G(24, 0)); queue[-1].deps = [(queue[-2], 1)]
    PRE(24, 9, lambda: drain_until("fsetup"))
    frs = fold_reads()
    for k_, (s_, tg) in enumerate(frs): P(24, 9 + k_, s_, ("lds", tg))
    PRE(24, 19, lambda: e.wait(lg=("fr", 3, 1)))
    add(z_addr_ops(), G(24, 17)); za_last = queue[-1]; add(fold_math(), G(24, 19))
    zs = z_store_ops()
    add([("s_nop 0", 1, "zready")], G(24, 19)); queue[-1].deps = [(queue[-2], 1), (za_last, 1)]
    def z_out():
        drain_until("zready")
        for s_, k_ in zs: (e.vmem(s_, "zst") if k_ else e(s_))
        e(z512_ops("K1_noz512"))
    PRE(25, 2, z_out)
    apx = {}
    def apx_dma():
        appendix_dma(e); apx["vmidx"] = len(e.vm)
    PRE(25, 6, apx_dma)
    for k_, s_ in enumerate(T_read_addr(APX_SLOT * SLOT)): P(26, 1 + k_ // 2, s_)
    add(epi_ops(8), G(25, 4))
    for q in range(3): add(epi_ops(2*q), G(25 + q, 4)); add(epi_ops(2*q + 1), G(25 + q, 4))
    pplan = {8: [(25, 12), (25, 17)], 0: [(25, 22), (25, 27)], 1: [(25, 32), (26, 6)], 2: [(26, 12), (26, 18)], 3: [(26, 24), (26, 30)],
             4: [(27, 8), (27, 14)], 5: [(27, 20), (27, 26)]}
    for t, pl in pplan.items():
        for h, (u, n) in enumerate(pl):
            a, b = p_store(t, h); P(u, n, a); P(u, n, b, ("pst", t))
            PRE(u, n, (lambda t=t: drain_until(("e", t))))

    def slot(u, n, last_path=None):
        gs = G(u, n)
        if gs in deadlines:
            n0 = len(e.l)
            for tg_ in deadlines[gs]: drain_until(tg_)
            if VERBOSE: print("deadline", u, n, "forced", len(e.l) - n0)
        cost = 0
        for fn in pre.get((u, n), []): fn()
        nxt = u + 1 < NUNIT or last_path == "A"
        if n % 3 == 0:
            if n == 33 and nxt:
                nvm = e.vm_count([("u", u + 1)]) if u + 1 < NUNIT else len(e.vm) - apx["vmidx"]
                e(f"s_waitcnt vmcnt({min(nvm, 63)}) lgkmcnt(0)")
                settle(e); e("s_barrier"); stamp(e, 4 + u)
                if u + 1 < NUNIT: set_work(u + 1)
            else:
                e.wait(lg=[("f", gs), ("f", gs + 1), ("f", gs + 2)])
            cost += 1
        e(mfma(u, n))
        if n <= 29: cost += reads(u, n + 6)
        elif n >= 33 and nxt:
            cost += reads(u + 1, 2*(n - 33)); cost += reads(u + 1, 2*(n - 33) + 1)
        for s_, tg in post.get((u, n), []):
            if s_ is None: continue
            if isinstance(tg, tuple) and tg[0] == "lds": e.lds(s_, tg[1])
            elif tg is not None: e.vmem(s_, tg)
            else: e(s_)
            cost += 1
        if n == 32: return
        fill(gs, 5 - cost)
    for u in range(NUNIT):
        for n in range(36):
            if u == NUNIT - 1 and n == 33: break
            slot(u, n)
    e(f"s_cmp_gt_u32 s{sJ}, 2\ns_cbranch_scc1 K1_tailN")
    sv_vm, sv_lg, sv_pend = list(e.vm), list(e.lg), getattr(e, "pending_stamp", None)
    assert not queue, [o.text for o in queue]
    for n in (33, 34, 35): slot(NUNIT - 1, n, "A")
    add(epi_ops(6), G(NUNIT, 3)); add(epi_ops(7), G(NUNIT, 3))
    for t, pl in {6: [(NUNIT, 10), (NUNIT, 16)], 7: [(NUNIT, 22), (NUNIT, 28)]}.items():
        for h, (u, n) in enumerate(pl):
            a, b = p_store(t, h); P(u, n, a); P(u, n, b, ("pst", t))
            PRE(u, n, (lambda t=t: drain_until(("e", t))))
    for n in range(36):
        gs = G(NUNIT, n)
        cost = 0
        for fn in pre.get((NUNIT, n), []): fn()
        if n % 3 == 0: e.wait(lg=[("f", gs), ("f", gs + 1), ("f", gs + 2)]); cost += 1
        e(mfma(NUNIT, n))
        if n <= 29: cost += reads(NUNIT, n + 6)
        for s_, tg in post.get((NUNIT, n), []):
            (e.vmem(s_, tg) if tg is not None else e(s_)); cost += 1
        fill(gs, 5 - cost)
    appendix_post(e)
    e("s_branch K1_fin")
    e("K1_tailN:")
    e.vm, e.lg = sv_vm, sv_lg; e.pending_stamp = sv_pend
    for n in (33, 34, 35): slot(NUNIT - 1, n, "N")
    e("s_nop 7\ns_nop 7")
    for t in (6, 7):
        for o in epi_ops(t): e(o[0])
        for h in range(2):
            a, b = p_store(t, h); e(a); e.vmem(b, ("pst", t))
    for s_ in MT: e.vmem(s_, "touch")

APX_SLOT = 0
def appendix_dma(e):
    sb = APX_SLOT * SLOT
    e(f"s_cmp_gt_u32 s{sJ}, 2\ns_cbranch_scc1 K1_apx_nodma")
    for s_ in T_dma_addr(None): e(s_)
    e(f"""
    s_cmp_eq_u32 s{sJ}, 2
    s_cselect_b32 s{S_T}, s{S_GW}, s{S_SD}
    s_cselect_b32 s{S_T+1}, s{S_GW+1}, s{S_SD+1}
    s_mov_b32 s{sF}, {576 * ROWD}
    s_cselect_b32 s{S_T+2}, 1152, s{sF}
    s_cmp_eq_u32 s{sJ}, 0
    s_cselect_b32 s{sCcol}, 8, 0
    s_mov_b32 s{sCS}, 1
    s_mul_i32 s{sTrow}, s{sCcol}, {32 * ROWD}
    v_add_u32 v21, {288 * ROWD}, v{vL16}
    """)
    u = U_T1
    for gi, (pre_, loads) in enumerate(dma_groups(u, slot=APX_SLOT)):
        for s_ in pre_: e(s_)
        e("s_nop 0")
        for q, s_ in enumerate(loads):
            special = (gi < 2 and q == 0) or gi == 2
            if not special: e(s_); continue
            lbl = f"K1_apx_n{gi}"
            e(f"s_cmp_eq_u32 s{sJ}, 1\ns_cbranch_scc0 {lbl}")
            if gi == 2: e(f"s_cmp_eq_u32 s{sW}, 0\ns_cbranch_scc0 {lbl}")
            st = sT0 + gi
            e(f"s_mov_b64 exec, 0xff\nbuffer_load_dwordx4 v21, {SRD(S_CD)}, s83 offen lds" if False else "")
            e(f"s_mov_b64 exec, 0xff")
            e(f"buffer_load_dwordx4 v21, {SRD(S_CD)}, s{st} offen lds")
            e(f"s_not_b64 exec, exec")
            e(s_)
            e(f"s_mov_b64 exec, -1\ns_branch {lbl}_d\n{lbl}:")
            e(s_)
            e(f"{lbl}_d:")
    e("K1_apx_nodma:")

def appendix_post(e):
    e("s_nop 7\ns_nop 7")
    a_, w_ = fold_write_ops()
    for s_ in a_ + w_: e(s_)
    e(f"s_cmp_eq_u32 s{sJ}, 2\ns_cbranch_scc1 K1_gate")
    e("s_waitcnt lgkmcnt(0)\ns_barrier")
    for s_ in fold_setup_ops() + fold_mask_ops(): e(s_)
    for s_, tg in fold_reads(): e(s_)
    vS = 76; vE = 80
    e(f"s_and_b32 s{sE}, s{sW}, 1")
    neg = {0: (), 1: (1,), 2: (1,), 3: ()}
    e(f"""
    v_bfe_u32 v84, v{vL16}, 4, 5
    s_cmp_eq_u32 s{sJ}, 1
    s_cselect_b32 s{sF}, 0, -1
    v_cmp_eq_u32 vcc, s{sF}, v84
    s_mov_b64 s[98:99], vcc
    """ if False else f"""
    v_bfe_u32 v84, v{vL16}, 4, 5
    s_cmp_eq_u32 s{sJ}, 1
    s_cselect_b32 s{sF}, 0, -1
    v_cmp_eq_u32 vcc, s{sF}, v84
    """)
    for g in range(4):
        if g in (1, 2):
            e(f"s_cmp_eq_u32 s{sE}, 1\ns_cselect_b32 s{sF}, 0xbf800000, 1.0")
        else:
            e(f"s_mov_b32 s{sF}, 1.0")
        e(f"v_mov_b32 v{vS+g}, s{sSG+g}\nv_mov_b32 v85, s{sF}\nv_cndmask_b32 v{vS+g}, v{vS+g}, v85, vcc")
    e(f"s_cmp_eq_u32 s{sE}, 0\ns_cselect_b32 s{sF}, 1.0, 0\nv_mov_b32 v85, s{sF}")
    e(f"v_mov_b32 v{vE}, s{sEA}\nv_mov_b32 v{vE+1}, s{sEB}\nv_cndmask_b32 v{vE}, v{vE}, v85, vcc\nv_cndmask_b32 v{vE+1}, v{vE+1}, v85, vcc")
    e(f"v_mov_b32 v86, 0\nv_mov_b32 v87, -1\nv_cndmask_b32 v86, v86, v87, vcc")
    e("s_waitcnt lgkmcnt(0)")
    for s_ in fold_math([f"v{vS+g}" for g in range(4)]): e(s_)
    for s_ in z_addr_ops(): e(s_)
    e(f"""
    v_and_b32 v88, 512, v{vL16}
    v_add_u32 v88, {9 * 33 * 1024}, v88
    v_mov_b32 v89, 0x7ff00000
    v_cmp_eq_u32 vcc, -1, v86
    s_nop 1
    v_cndmask_b32 v88, v89, v88, vcc
    s_sub_u32 s{sF}, s{sC}, {18 * 33 * 1024}  ; same (p, ks) in the cosine matrix
    """)
    e(f"buffer_store_dwordx4 {vr(vP)}, v88, {SRD(S_WS)}, s{sF} offen{ZF}")
    for q in range(4): e(f"v_cndmask_b32 v{vO+q}, v{vP+q}, v{vZERO}, vcc")
    for q in range(4): e(f"v_cndmask_b32 v{vO+4+q}, v{vZERO}, v{vZERO}, vcc")
    e(f"buffer_store_dwordx4 {vr(vO)}, v{vFA}, {SRD(S_WS)}, s{sC} offen{ZF}")
    e(f"buffer_store_dwordx4 {vr(vO+4)}, v88, {SRD(S_WS)}, s{sC} offen{ZF}")
    for q in range(4): e(f"v_xor_b32 v{vM+q}, s{sD}, v{vP+q}")
    e(f"buffer_store_dwordx4 {vr(vM)}, v{vFB}, {SRD(S_WS)}, s{sC} offen{ZF}")
    e(f"""
    s_lshr_b32 s{sE}, s{sW}, 1
    s_or_b32 s{sE}, s{sE}, s{sI}
    s_cmp_eq_u32 s{sE}, 0
    s_cbranch_scc0 K1_fin
    v_mul_f32 v{vO}, v{vE}, v{vR + 16}
    v_fma_f32 v{vO}, v{vE+1}, v{vR + 24}, v{vO}
    v_cmp_gt_u32 vcc, 512, v{vL16}
    v_mov_b32 v{vO+1}, 0
    s_nop 0
    v_cndmask_b32 v{vO}, v{vO+1}, v{vO}, vcc
    v_cvt_pk_bf16_f32 v{vO+4}, v{vO}, v{vO+1}
    v_mov_b32 v{vO+5}, 0
    v_mov_b32 v{vO+6}, 0
    v_mov_b32 v{vO+7}, 0
    s_add_u32 s{sE}, s{sC}, {32 * 1024}
    s_add_u32 s{sF}, s{sF}, {32 * 1024}
    v_cmp_eq_u32 vcc, -1, v86
    s_nop 1
    v_cndmask_b32 v{vM}, v{vO+4}, v{vZERO}, vcc
    v_mov_b32 v{vM+1}, 0
    v_mov_b32 v{vM+2}, 0
    v_mov_b32 v{vM+3}, 0
    buffer_store_dwordx4 {vr(vO+4)}, v88, {SRD(S_WS)}, s{sF} offen{ZF}
    buffer_store_dwordx4 {vr(vM)}, v{vFA}, {SRD(S_WS)}, s{sE} offen{ZF}
    v_mov_b32 v{vR}, 0
    v_mov_b32 v{vR+1}, 0
    v_mov_b32 v{vR+2}, 0
    v_mov_b32 v{vR+3}, 0
    buffer_store_dwordx4 {vr(vR)}, v88, {SRD(S_WS)}, s{sE} offen{ZF}
    s_nop 1
    v_xor_b32 v{vO+4}, s{sD}, v{vO+4}
    s_nop 0
    buffer_store_dwordx4 {vr(vO+4)}, v{vFB}, {SRD(S_WS)}, s{sE} offen{ZF}
    s_branch K1_fin
    K1_gate:
    """)
    e(f"""
    v_bfe_u32 v18, v{vL16}, 4, 5
    v_lshrrev_b32 v19, 3, v18
    v_lshlrev_b32 v19, 10, v19
    v_bfe_u32 v20, v18, 2, 1
    v_lshl_add_u32 v19, v20, 9, v19
    v_and_b32 v20, 3, v18
    v_lshl_add_u32 v19, v20, 2, v19
    s_lshl_b32 s{sE}, s{sW}, 12
    s_add_u32 s{sE}, s{sE}, {FOLD}
    v_add_u32 v19, s{sE}, v19
    s_waitcnt lgkmcnt(0)
    ds_read_b32 v22, v19
    """)
    rowcalc(e, 19, 18, sW)
    e(f"""
    v_lshlrev_b32 v19, 2, v19
    v_mov_b32 v20, 0x7ff00000
    v_cmp_gt_u32 vcc, 512, v{vL16}
    s_waitcnt lgkmcnt(0)
    v_mul_f32 v21, {NLOG2E}, v22
    v_exp_f32 v21, v21
    v_cndmask_b32 v19, v20, v19, vcc
    v_add_f32 v21, 1.0, v21
    v_rcp_f32 v21, v21
    s_mov_b32 s{sE}, {WS_G}
    s_nop 0
    buffer_store_dword v21, v19, {SRD(S_WS)}, s{sE} offen{ZF}
    """)

def gen_k1(name="k1_kernel"):
    e = Emit()
    e.l.append(kbegin(name).rstrip("\n"))
    prologue(e)
    gen_main(e)
    e("K1_fin:")
    if DIAG: e("s_waitcnt lgkmcnt(0)"); settle(e); stamp(e, 40); e("s_waitcnt lgkmcnt(0)"); settle(e)
    e("s_waitcnt vmcnt(0)")
    if DIAG:
        stamp(e, 41); e("s_waitcnt lgkmcnt(0)"); settle(e)
        e(f"s_lshl_b32 s{sA}, s2, 2\ns_add_u32 s{sA}, s{sA}, s{sW}\ns_lshl_b32 s{sA}, s{sA}, 8\ns_add_u32 s{sA}, s{sA}, {WS_DIAG}")
        e(f"v_lshrrev_b32 v14, 2, v{vL16}")
        e(f"buffer_store_dword v{vDIAG}, v14, {SRD(S_WS)}, s{sA} offen")
        e("s_waitcnt vmcnt(0)")
    e("K1_end:")
    e("s_endpgm")
    for nm, srd_, so, test in (("K1_spin", S_WS, sOBp, f"s_cmp_ge_u32 s{sE}, 1"), ("K1_spin2", S_WS, sOBp, f"s_cmp_ge_u32 s{sE}, 2"), ("K1_spinc", S_DBG, sFoffP, f"s_bitcmp1_b32 s{sE}, s{sFbitP}")):
        e(f"""
        {nm}:
        s_mov_b32 s{sD}, 0
        {nm}_loop:
        s_sleep 4
        buffer_load_dword v{vPOLL}, v{vZERO}, {SRD(srd_)}, s{so} offen sc1
        s_waitcnt vmcnt(0)
        v_readfirstlane_b32 s{sE}, v{vPOLL}
        s_nop 3
        {test}
        s_cbranch_scc1 {nm}_done
        s_add_u32 s{sD}, s{sD}, 1
        s_cmp_lt_u32 s{sD}, 0x40000
        s_cbranch_scc1 {nm}_loop
        s_branch {nm}_done
        """)
    e("K1_codeend:")
    return e.text() + kdesc(name, 256, 252, 102)
if __name__ == "__main__":
    print(gen_k1())
```

```python
import sys, os
sys.path.insert(0, os.path.dirname(os.path.abspath(__file__)))
from common import *
import k1, ka, k2, k1v2, k2v2
def header(launches):
    s = ""
    for (k, g, b, lds) in launches:
        s += f"; @launch kernel={k} grid=({g},1,1) block=({b},1,1) lds={lds}\n"
    s += '.amdgcn_target "amdgcn-amd-amdhsa--gfx950"\n.text\n'
    return s
def build_k1_only():
    return header([("k1_kernel", 256, 256, k1.LDS_BYTES)]) + k1.gen_k1()
def build_k1_diag():
    k1.DIAG = True
    return build_k1_only()
def build_k1_diag2():
    k1.DIAG = 2
    return build_k1_only()
TOP = open(os.path.join(os.path.dirname(os.path.abspath(__file__)), "top_comment.txt")).read()
def build_v1():
    return TOP + header([("ka_kernel", 170, 256, ka.LDS_BYTES), ("k1_kernel", 256, 256, k1.LDS_BYTES), ("k2_kernel", 192, 384, k2.LDS_BYTES)]) + ka.gen_ka() + k1.gen_k1() + k2.gen_k2()
def build_v2():
    return TOP + header([("k1_kernel", 256, 256, k1v2.LDS_BYTES), ("k2_kernel", 192, 384, k2.LDS_BYTES)]) + k1v2.gen_k1() + k2.gen_k2()
def build_v3():
    k1v2.K2_LABELS = ("k2_kernel", "K2_codeend")
    return TOP + header([("k1_kernel", 256, 256, k1v2.LDS_BYTES), ("k2_kernel", 198, 384, k2v2.LDS_BYTES)]) + k1v2.gen_k1() + k2v2.gen_k2()
def build_v3d():
    k2v2.DIAG = True; k1v2.DIAG = 1
    return build_v3()
def build_full(name):
    k2v2.DIAG = True; k1v2.DIAG = 1
    k1v2.ABL = set(name.split("+")) - {"base"}
    for a in k1v2.ABL:
        if a.startswith("pf") and not a.startswith("pfl"): k1v2.PF = int(a[2:])
    if "zplain" in k1v2.ABL: k1v2.ZF = ""
    return build_v3()
def build_k2abl(name):
    k2v2.DIAG = True; k1v2.DIAG = 1
    k2v2.ABL = set(name.split("+")) - {"base"}
    return build_v3()
def build_k1v2(name):
    k1v2.DIAG = 1
    k1v2.ABL = set(name.split("+")) - {"base"}
    for a in k1v2.ABL:
        if a.startswith("pf") and not a.startswith("pfl"): k1v2.PF = int(a[2:])
    return header([("k1_kernel", 256, 256, k1v2.LDS_BYTES)]) + k1v2.gen_k1()
def build_abl(name):
    k1.DIAG = 1
    k1.ABL = set(name.split("+")) - {"base"}
    for a in k1.ABL:
        if a.startswith("pf"): k1.PF = int(a[2:])
    return build_k1_only()
if __name__ == "__main__":
    what = sys.argv[1]; out = sys.argv[2]
    if what.startswith("full:"): open(out, "w").write(build_full(what[5:]))
    elif what.startswith("k2abl:"): open(out, "w").write(build_k2abl(what[6:]))
    elif what.startswith("k1v2:"): open(out, "w").write(build_k1v2(what[5:]))
    elif what.startswith("abl:"): open(out, "w").write(build_abl(what[4:]))
    else: open(out, "w").write(globals()["build_" + what]())
```

```python
from common import *

ROWW = 9216; ROWD = 1152; SLOT = 36864
LDS_BYTES = 163840
XB0 = 2 * SLOT; XBW = 20480
FOLD = 4 * SLOT
NUNIT = 28
U_T1 = 22; U_S = 23
DIAG = False
VERBOSE = False
ZF = ' sc1'
ABL = set()
WS_DIAG = 80 << 20
PF = 6
S_WG, S_WU, S_WD, S_X, S_WS, S_DBG, S_T, S_CD, S_GW, S_SD = 8, 12, 16, 20, 24, 28, 32, 36, 40, 44
sW, sI, sJ, sODD = 48, 49, 50, 51
sGA, sGL, sSA, sSL = 52, 53, 54, 55
sDAo, sDLo, sDAp, sDLp = 56, 57, 58, 59
sUA, sUB, sUL = 60, 61, 62
sM0A, sM0L = 63, 64
sT0 = 65
sHXo, sHXp, sPARTp, sPARTs = 68, 69, 70, 71
sFoffP, sFbitP, sOBp = 72, 73, 74
sTG, sTGs, sTDo, sTDp, sTS = 75, 76, 77, 78, 79
sTrow, sCS, sCcol = 80, 81, 82
sA, sB, sC, sD, sE, sF = 84, 85, 86, 87, 88, 89
sSG = 90
sEA, sEB = 94, 95
sCP = 20
sXS = 3
sXB2, sXB3 = 83, 95
sXB, sTCH, sHST, sPST = 4, 5, 6, 7
vTD = 0; vL16 = 1; vWK = (2, 3)
vPGp = (4, 5); vPGs = 6; vPDp = (7, 8); vPDs = 9
vPOLL = 10; vZERO = 11; vOB = 12; vMISC = 13; vTG = 14; vDIAG = 15
vTMP = 16
vH = 24
vG = (96, 128); vU = 160; vUS = 192
DACC = [128, 144, 160, 176, 208, 224, 96, 112, 192]
vTACC = 192
vDGp, vDGs, vDDp, vDDs = 240, 244, 248, 252
aFR = 144; aHP = 176; aDUM = 248
PS = 8 * 18 * 2048
def vr(b, n=4): return f"v[{b}:{b+n-1}]"
def ar(b, n=4): return f"a[{b}:{b+n-1}]"
def SRD(s): return f"s[{s}:{s+3}]"

def unit_desc(u):
    if u < 4: return dict(kind="GUp", mat="GU"[u & 1], p=0, kh=u >> 1)
    if u < 16:
        p, r = divmod(u, 4)
        return dict(kind="GUp", mat="G" if r < 2 else "U", p=p, kh=r & 1)
    if u == 16: return dict(kind="GUs", mat="G")
    if u == 17: return dict(kind="GUs", mat="U")
    if u < 22: return dict(kind="Dp", ps=1, q=u - 18)
    if u == U_T1: return dict(kind="T")
    if u == U_S: return dict(kind="S")
    if u == NUNIT: return dict(kind="T")
    return dict(kind="Dp", ps=2, q=u - 24)

vTD_T = 16
vTR = 16

def dma_groups(u, slot=None):
    d = unit_desc(u); sb = (u % 4) * SLOT if slot is None else slot * SLOT
    k = d["kind"]
    if k == "T":
        g = []
        g.append(([f"s_lshl_b32 s{sT0}, s{sW}, 7", f"s_add_u32 s{sT0}, s{sT0}, s{sTrow}", f"s_add_u32 m0, s{sM0A}, {sb}"],
                  [f"buffer_load_dwordx4 v{vTD_T+q}, {SRD(S_T)}, s{sT0} offen{' offset:%d' % (1024*q) if q else ''} lds" for q in range(4)]))
        g.append(([f"s_add_u32 s{sT0+1}, s{sT0}, 512", f"s_add_u32 m0, s{sM0A}, {sb + 16384}"],
                  [f"buffer_load_dwordx4 v{vTD_T+q}, {SRD(S_T)}, s{sT0+1} offen{' offset:%d' % (1024*q) if q else ''} lds" for q in range(4)]))
        g.append(([f"s_add_u32 s{sT0+2}, s{sTrow}, 1024", f"s_add_u32 m0, s{sM0L}, {sb}"],
                  [f"buffer_load_dwordx4 v{vTD_T+4}, {SRD(S_T)}, s{sT0+2} offen lds"]))
        return g
    if k == "GUp":
        srd_ = S_WG if d["mat"] == "G" else S_WU
        c = 288 * d["kh"] * ROWW + 128 * d["p"]
        A, B, L = (sGA, c), (sGA, c + 128 * ROWW), (sGL, c); vo = vDGp
    elif k == "GUs":
        srd_ = S_WG if d["mat"] == "G" else S_WU
        A, B, L = (sSA, 0), (sSA, 256 * ROWW), (sSL, 0); vo = vDGs
    elif k == "Dp":
        srd_ = S_WD
        a, l = (sDAo, sDLo) if d["ps"] == 1 else (sDAp, sDLp)
        c = 128 * d["q"]
        A, B, L = (a, c), (a, c + 128 * ROWD), (l, c); vo = vDDp
    else:
        srd_ = S_WD
        A, B, L = (sUA, 0), (sUB, 0), (sUL, 0); vo = vDDs
    groups = []
    for gi, (base, c) in enumerate((A, B, L)):
        st = sT0 + gi
        pre = [f"s_add_u32 s{st}, s{base}, {c}"]
        pre.append(f"s_add_u32 m0, s{sM0A}, {sb + 16384 * gi}" if gi < 2 else f"s_add_u32 m0, s{sM0L}, {sb}")
        loads = [f"buffer_load_dwordx4 v{vo + q}, {SRD(srd_)}, s{st} offen{' offset:%d' % (1024*q) if q else ''} lds" for q in range(4 if gi < 2 else 1)]
        groups.append((pre, loads))
    return groups

def touch_ops(u):
    d = unit_desc(u); k = d["kind"]; ops = []
    def t(srd_, vo, base, c):
        ops.append((f"s_add_u32 s{sTCH}, s{base}, {c}", False))
        ops.append((f"buffer_load_dword a{aDUM}, v{vo}, {SRD(srd_)}, s{sTCH} offen", True))
    if k == "GUp": t(S_WG if d["mat"] == "G" else S_WU, vTG, sTG, 288 * d["kh"] * ROWW + 128 * d["p"])
    elif k == "GUs":
        srd_ = S_WG if d["mat"] == "G" else S_WU
        t(srd_, vTG, sTGs, 0); t(srd_, vTG, sTGs, 288 * ROWW)
    elif k == "Dp": t(S_WD, vTD, sTDo if d["ps"] == 1 else sTDp, 128 * d["q"])
    elif k == "S": t(S_WD, vTD, sTS, 0); t(S_WD, vTD, sTS, 288 * ROWD)
    return ops

def frag_reads(u, n):
    d = unit_desc(u); k = d["kind"]
    tr = "ds_read_b64_tr_b16"
    if k == "GUp":
        ks, hf = n >> 1, n & 1
        return [(0, 2, tr, vWK[hf], 2048 * ks), (2, 2, tr, vWK[hf], 2048 * ks + 512)]
    if k == "GUs": return [(0, 2, tr, vWK[0], 1024 * n), (2, 2, tr, vWK[0], 1024 * n + 256)]
    if k == "Dp":
        ks, hf = n >> 1, n & 1
        return [(0, 2, tr, vWK[hf], 2048 * ks), (2, 2, tr, vWK[hf], 2048 * ks + 1024)]
    if k == "T":
        return [(0, 4, "ds_read_b128", vTR + (n & 3), 4096 * (n >> 2))]
    ks = n % 18; par = n // 18
    R = (256 * par + 16 * ks) if ks < 16 else (512 + 32 * par + 16 * (ks - 16))
    return [(0, 2, tr, vWK[0], 64 * R), (2, 2, tr, vWK[0], 64 * R + 512)]

def unit_patterns(u):
    k = unit_desc(u)["kind"]
    return {"GUp": vPGp, "GUs": (vPGs,), "Dp": vPDp, "S": (vPDs,), "T": ()}[k]

def mfma(u, n):
    d = unit_desc(u); k = d["kind"]; gn = 36 * u + n
    A = ar(aFR + 4 * (gn % 8))
    if k == "GUp":
        ks, hf = n >> 1, n & 1; kk = 18 * d["kh"] + ks
        acc = (vG[d["p"] & 1] if d["mat"] == "G" else vU) + 16 * hf
        B = ar(4 * kk); first = kk == 0
    elif k == "GUs":
        acc = vG[0] if d["mat"] == "G" else vUS
        B = ar(4 * n); first = n == 0
    elif k == "Dp":
        ks, hf = n >> 1, n & 1; acc = DACC[2 * d["q"] + hf]
        if d["ps"] == 1: B = vr(vH + 4 * ks); first = ks == 0
        else: B = ar(aHP + 4 * ks); first = False
    elif k == "T":
        acc = vTACC; first = n == 0
        return f"v_mfma_f32_32x32x16_bf16 {vr(acc,16)}, {ar(4*n)}, {A}, {'0' if first else vr(acc,16)}"
    else:
        acc = DACC[8]; B = vr(vH + 4 * n) if n < 18 else ar(aHP + 4 * (n - 18)); first = n == 0
    return f"v_mfma_f32_32x32x16_bf16 {vr(acc,16)}, {A}, {B}, {'0' if first else vr(acc,16)}"

NLOG2E = "0xbfb8aa3b"
class Op:
    __slots__ = ("text", "cost", "deps", "nb", "tag", "at")
    def __init__(self, text, cost=1, deps=(), nb=0, tag=None):
        self.text, self.cost, self.deps, self.nb, self.tag, self.at = text, cost, list(deps), nb, tag, None
sPKC, sPK1 = 90, 92
_tmp_last = {}
def silu_chain(g0, n, nb):
    ops = []; last = {}
    pk = "pk" in ABL
    for e in range(0, n, 2):
        ta = vTMP + (e % 8); a = g0 + e
        prev = [(_tmp_last[t], 1) for t in (ta, ta + 1) if t in _tmp_last]
        if pk:
            m1 = Op(f"v_pk_mul_f32 v[{ta}:{ta+1}], v[{a}:{a+1}], s[{sPKC}:{sPKC+1}]", 1, prev, nb)
            e0 = Op(f"v_exp_f32 v{ta}, v{ta}", 2, [(m1, 1)], nb); e1 = Op(f"v_exp_f32 v{ta+1}, v{ta+1}", 2, [(m1, 1)], nb)
            ad = Op(f"v_pk_add_f32 v[{ta}:{ta+1}], v[{ta}:{ta+1}], s[{sPK1}:{sPK1+1}]", 1, [(e0, 2), (e1, 2)], nb)
            r0 = Op(f"v_rcp_f32 v{ta}, v{ta}", 2, [(ad, 1)], nb); r1 = Op(f"v_rcp_f32 v{ta+1}, v{ta+1}", 2, [(ad, 1)], nb)
            m2 = Op(f"v_pk_mul_f32 v[{a}:{a+1}], v[{a}:{a+1}], v[{ta}:{ta+1}]", 1, [(r0, 2), (r1, 2)], nb)
            ops += [m1, e0, e1, ad, r0, r1, m2]
            _tmp_last[ta] = m2; _tmp_last[ta + 1] = m2; last[e] = m2; last[e + 1] = m2
        else:
            for z in range(2):
                t = ta + z; g = a + z
                m1 = Op(f"v_mul_f32 v{t}, {NLOG2E}, v{g}", 1, [(_tmp_last[t], 1)] if t in _tmp_last else [], nb)
                ex = Op(f"v_exp_f32 v{t}, v{t}", 2, [(m1, 1)], nb)
                ad = Op(f"v_add_f32 v{t}, 1.0, v{t}", 1, [(ex, 2)], nb)
                rc = Op(f"v_rcp_f32 v{t}, v{t}", 2, [(ad, 1)], nb)
                m2 = Op(f"v_mul_f32 v{g}, v{g}, v{t}", 1, [(rc, 2)], nb)
                ops += [m1, ex, ad, rc, m2]
                _tmp_last[t] = m2; last[e + z] = m2
    return ops, last
def h_chain(g0, u0, tile, last, eoff, nb):
    ops = []; H = vH + 8 * tile; prevc = None
    for q in range(8):
        a = g0 + 2 * q
        if "pk" in ABL:
            h0 = Op(f"v_pk_mul_f32 v[{a}:{a+1}], v[{a}:{a+1}], v[{u0+2*q}:{u0+2*q+1}]", 1, [(last[eoff + 2*q], 1)], nb)
            hs = [h0]
        else:
            hs = [Op(f"v_mul_f32 v{a+z}, v{a+z}, v{u0+2*q+z}", 1, [(last[eoff + 2*q + z], 1)], nb) for z in range(2)]
        c = Op(f"v_cvt_pk_bf16_f32 v{H + q}, v{a}, v{a+1}", 1, [(h, 1) for h in hs] + ([(prevc, 1)] if prevc else []), nb,
               ("h", tile) if q == 7 else None)
        prevc = c
        ops += hs + [c]
    return ops
def h_store(tile, half):
    off = tile * 2048 + half * 1024
    return [f"s_add_u32 s{sHST}, s{sHXo}, {off & ~4095}",
            f"buffer_store_dwordx4 {vr(vH + 8*tile + 4*half)}, v{vL16}, {SRD(S_WS)}, s{sHST} offen offset:{off & 4095} sc1"]
vPST = vMISC
def epi_ops(tile):
    T = DACC[tile]
    return [(f"v_cvt_pk_bf16_f32 v{T + q}, v{T + 2*q}, v{T + 2*q + 1}", 1, ("e", tile) if q == 7 else None) for q in range(8)]
def p_store(tile, half):
    T = DACC[tile]
    if tile < 8: base, off = sPARTp, tile * 2048 + half * 1024
    else: base, off = sPARTs, half * 1024
    fl = "" if "plainst" in ABL else " sc1"
    return [f"s_add_u32 s{sPST}, s{base}, {off & ~4095}",
            f"buffer_store_dwordx4 {vr(T + 4*half)}, v{vPST}, {SRD(S_WS)}, s{sPST} offen offset:{off & 4095}{fl}"]

def stamp(e, idx):
    if not DIAG: return
    e(f"{'s_memtime' if DIAG == 2 else 's_memrealtime'} s[{96 + 2*(idx % 2)}:{97 + 2*(idx % 2)}]")
    e.pending_stamp = idx
def settle(e):
    if not DIAG: return
    idx = getattr(e, "pending_stamp", None)
    if idx is None: return
    e(f"v_writelane_b32 v{vDIAG}, s{96 + 2*(idx % 2)}, {idx}")
    e.pending_stamp = None

def pstamp(e, idx):
    if not DIAG: return
    e("s_memrealtime s[96:97]\ns_waitcnt lgkmcnt(0)")
    e(f"v_writelane_b32 v{vDIAG}, s96, {idx}")
def rowcalc(e, dst, vslot, sgrp, t0=16, t1=17):
    e(f"""
    s_lshl_b32 s{sA}, s{sI}, 5
    v_add_u32 v{t0}, s{sA}, v{vslot}          ; s
    s_cmp_eq_u32 s{sgrp}, 0
    s_cselect_b32 s{sA}, 0, 1024
    s_cmp_eq_u32 s{sgrp}, 3
    s_cselect_b32 s{sA}, 2048, s{sA}         ; base
    s_and_b32 s{sB}, s{sgrp}, 1
    v_sub_u32 v{t1}, s{sA}, v{t0}
    v_add_u32 v{dst}, s{sA}, v{t0}
    s_cmp_eq_u32 s{sB}, 1
    s_cselect_b64 vcc, -1, 0
    s_lshl_b32 s{sC}, s{sgrp}, 10
    s_sub_u32 s{sC}, s{sC}, 1536
    v_cndmask_b32 v{dst}, v{dst}, v{t1}, vcc
    v_mov_b32 v{t1}, s{sC}
    s_cmp_ge_u32 s{sgrp}, 2
    s_cselect_b32 s{sB}, 0, -1
    v_cmp_eq_u32 vcc, s{sB}, v{t0}
    s_nop 1
    v_cndmask_b32 v{dst}, v{dst}, v{t1}, vcc
    """)

def T_dma_addr(e, rowbase_in_tile=0):
    ops = []
    ops += [f"v_lshrrev_b32 v21, 7, v{vL16}",
            f"v_bfe_u32 v22, v{vL16}, 4, 3"]
    for q in range(4):
        ops += [f"v_add_u32 v23, {8*q}, v21", f"v_bfe_u32 v20, v23, 1, 3", f"v_xor_b32 v20, v20, v22",
                f"v_mul_u32_u24 v23, 1152, v23", f"v_lshl_add_u32 v{16+q}, v20, 4, v23"]
        if q: ops.append(f"v_subrev_u32 v{16+q}, {1024*q}, v{16+q}")
    ops += [f"s_lshl_b32 s{sE}, s{sW}, 3", f"v_add_u32 v23, s{sE}, v21", f"v_bfe_u32 v20, v23, 1, 3", f"v_xor_b32 v20, v20, v22",
            f"v_mul_u32_u24 v23, 1152, v23", f"v_lshl_add_u32 v20, v20, 4, v23"]
    return ops
def T_read_addr(slotbase):
    ops = [f"v_bfe_u32 v20, v{vL16}, 4, 5",
           f"v_lshrrev_b32 v21, 9, v{vL16}",
           f"v_lshrrev_b32 v22, 3, v20", f"v_lshlrev_b32 v22, 10, v22", f"v_and_b32 v23, 7, v20",
           f"v_lshl_add_u32 v22, v23, 7, v22", f"v_add_u32 v22, {slotbase}, v22",
           f"v_bfe_u32 v23, v20, 1, 3"]
    for q4 in range(4):
        ops += [f"v_add_u32 v20, {2*q4}, v21", f"v_xor_b32 v20, v20, v23", f"v_lshl_add_u32 v{16+q4}, v20, 4, v22"]
    return ops

def code_prefetch():
    return f"""
    s_getpc_b64 s[{S_T}:{S_T+1}]
    K1_pc:
    s_and_b32 s{S_T+1}, s{S_T+1}, 0xffff
    s_mov_b32 s{S_T+2}, K1_codeend-K1_pc
    s_mov_b32 s{S_T+3}, 0x20000
    s_lshr_b32 s{sA}, s2, 3
    s_mul_i32 s{sA}, s{sA}, {{NL}}
    v_add_u32 v3, s{sA}, v0
    v_lshlrev_b32 v3, 7, v3
    v_mov_b32 v4, 0x7ff00000
    v_cmp_gt_u32 vcc, {{NL}}, v0
    s_nop 1
    v_cndmask_b32 v3, v4, v3, vcc
    buffer_load_dword a{aDUM}, v3, {SRD(S_T)}, 0 offen
    """.replace("{NL}", str(CPF_LINES))
CPF_LINES = 20
PROBE_PTS = []
K2_LABELS = None
def prologue(e):
    e(f"""
    s_cmp_ge_u32 s2, 256
    s_cbranch_scc1 K1_end
    {("s_memtime s[100:101]" if DIAG == 2 else "s_memrealtime s[100:101]") if DIAG else ""}
    s_load_dwordx2 s[{S_X}:{S_X+1}], s[0:1], {KA_AX}
    s_load_dwordx2 s[{S_WG}:{S_WG+1}], s[0:1], {KA_WG}
    s_load_dwordx2 s[{S_WU}:{S_WU+1}], s[0:1], {KA_WU}
    s_load_dwordx2 s[{S_WD}:{S_WD+1}], s[0:1], {KA_WD}
    s_load_dwordx2 s[{S_WS}:{S_WS+1}], s[0:1], {KA_WS}
    s_load_dwordx2 s[{S_DBG}:{S_DBG+1}], s[0:1], {KA_DBG}
    s_load_dwordx2 s[{S_CD}:{S_CD+1}], s[0:1], {KA_CD}
    s_load_dwordx2 s[{S_SD}:{S_SD+1}], s[0:1], {KA_SD}
    s_load_dwordx2 s[{S_GW}:{S_GW+1}], s[0:1], {KA_GW}
    {code_prefetch() if "nocpf" not in ABL else ""}
    v_lshrrev_b32 v2, 6, v0
    v_and_b32 v0, 63, v0
    v_readfirstlane_b32 s{sW}, v2
    v_lshlrev_b32 v{vL16}, 4, v0
    s_and_b32 s{sA}, s2, 1
    s_lshl_b32 s{sA}, s{sA}, 3
    s_lshr_b32 s{sB}, s2, 3
    s_and_b32 s{sC}, s{sB}, 7
    s_add_u32 s{sI}, s{sA}, s{sC}
    s_and_b32 s{sA}, s2, 6
    s_lshl_b32 s{sA}, s{sA}, 1
    s_lshr_b32 s{sB}, s{sB}, 3
    s_add_u32 s{sJ}, s{sA}, s{sB}
    s_and_b32 s{sODD}, s{sJ}, 1
    """)
    if "nocpf" not in ABL: e.vm.append("cpf")
    e("v_lshrrev_b32 v21, 3, v0\nv_and_b32 v22, 7, v0")
    for q in range(4):
        e(f"v_add_u32 v18, {8*q}, v21")
        rowcalc(e, 19, 18, sW)
        e(f"""
        v_mul_u32_u24 v19, 1152, v19
        v_bfe_u32 v18, v18, 1, 3
        v_xor_b32 v18, v18, v22
        v_lshl_add_u32 v{96+q}, v18, 4, v19
        """)
    e(f"""
    s_mul_i32 s{sA}, s{sJ}, 288            ; F0
    s_lshl_b32 s{sB}, s{sODD}, 5
    s_add_u32 s{sA}, s{sA}, s{sB}          ; pairbase
    s_lshl_b32 s{sTG}, s{sA}, 1
    s_mul_i32 s{sB}, s{sW}, {32 * ROWW}
    s_add_u32 s{sGA}, s{sB}, s{sTG}
    s_mul_i32 s{sB}, s{sW}, {8 * ROWW}
    s_add_u32 s{sB}, s{sB}, {256 * ROWW}
    s_add_u32 s{sGL}, s{sB}, s{sTG}
    s_lshl_b32 s{sM0A}, s{sW}, 12
    s_lshl_b32 s{sM0L}, s{sW}, 10
    s_add_u32 s{sM0L}, s{sM0L}, 32768
    ; GU pair dma voffsets
    v_bfe_u32 v17, v0, 2, 1
    v_bfe_u32 v18, v0, 4, 1
    v_xor_b32 v17, v17, v18
    v_lshlrev_b32 v17, 6, v17
    v_and_b32 v18, 3, v0
    v_lshl_add_u32 v17, v18, 4, v17      ; colb
    s_mov_b32 s{sA}, {ROWW}
    v_mul_lo_u32 v18, v21, s{sA}
    v_add_u32 v{vDGp}, v18, v17
    """)
    for q in range(1, 4): e(f"v_add_u32 v{vDGp+q}, {q * (8 * ROWW - 1024)}, v{vDGp}")
    e(f"s_mul_i32 s{sXS}, s{sW}, {XBW}\ns_add_u32 s{sXS}, s{sXS}, {XB0}")
    e(f"""
    s_lshr_b32 s{sA}, s2, 3
    s_and_b32 s{sA}, s{sA}, 7
    s_mul_i32 s{sA}, s{sA}, 36
    s_mul_i32 s{sB}, s{sW}, 9
    s_add_u32 s{sA}, s{sA}, s{sB}
    v_add_u32 v16, s{sA}, v0
    s_mov_b32 s{sA}, {ROWW}
    v_mul_lo_u32 v17, v16, s{sA}
    v_mov_b32 v18, 0x7ff00000
    v_cmp_gt_u32 vcc, 9, v0
    s_nop 1
    v_cndmask_b32 v{vTG}, v18, v17, vcc
    """)
    e("s_waitcnt lgkmcnt(0)")
    if DIAG: e(f"v_mov_b32 v{vDIAG}, 0\nv_writelane_b32 v{vDIAG}, s100, 0")
    pstamp(e, 50)
    for s_, nb in ((S_X, 2048 * ROWD), (S_WG, 576 * ROWW), (S_WU, 576 * ROWW)): srd(e, s_, None, nb)
    def xdma_rot(pos):
        e(f"s_lshr_b32 s{sB}, s2, 6\ns_add_u32 s{sB}, s{sB}, {pos}\ns_cmp_ge_u32 s{sB}, 5\ns_cselect_b32 s{sC}, 5, 0\ns_sub_u32 s{sB}, s{sB}, s{sC}")
        e(f"s_lshl_b32 s{sA}, s{sB}, 7\ns_lshl_b32 s{sB}, s{sB}, 12\ns_add_u32 s{sB}, s{sB}, s{sXS}")
        for q in range(4):
            e(f"s_add_u32 m0, s{sB}, {q * 1024}\ns_nop 0")
            e.vmem(f"buffer_load_dwordx4 v{96+q}, {SRD(S_X)}, s{sA} offen lds", ("x", "A"))
    def udma(u):
        for pre, loads in dma_groups(u):
            for s in pre: e(s)
            e("s_nop 0")
            for s in loads: e.vmem(s, ("u", u))
    NET = next((int(a[2:]) for a in ABL if a.startswith("et")), 0)
    if "notouch" not in ABL:
        for u in range(NET):
            for t, isv in touch_ops(u): (e.vmem(t, "touch") if isv else e(t))
    for pos in range(5): xdma_rot(pos)
    udma(0); udma(1)
    if "notouch" not in ABL and "earlyt" in ABL:
        for u in range(max(NET, 2), PF):
            for t, isv in touch_ops(u): (e.vmem(t, "touch") if isv else e(t))
    pstamp(e, 51)
    e(f"""
    v_lshrrev_b32 v16, 5, v0             ; h
    v_bfe_u32 v17, v0, 4, 1              ; fb
    v_bfe_u32 v18, v0, 2, 2              ; r
    v_and_b32 v19, 3, v0                 ; c4
    v_lshlrev_b32 v20, 5, v17
    v_lshl_add_u32 v20, v19, 3, v20      ; 32 fb + 8 c4
    v_lshrrev_b32 v21, 1, v18
    v_lshlrev_b32 v21, 6, v21            ; 64*sw
    v_xor_b32 v22, 64, v21
    v_lshl_add_u32 v23, v16, 3, v18      ; 8h + r
    v_lshlrev_b32 v2, 7, v23
    v_add3_u32 v{vPGp[0]}, v2, v21, v20
    v_add3_u32 v{vPGp[1]}, v2, v22, v20
    v_and_b32 v16, 31, v0
    v_lshrrev_b32 v17, 5, v0
    v_lshrrev_b32 v18, 3, v16
    v_lshlrev_b32 v18, 10, v18
    v_and_b32 v19, 7, v16
    v_lshl_add_u32 v18, v19, 7, v18
    v_add_u32 v18, s{sXS}, v18
    v_bfe_u32 v19, v16, 1, 3
    """)
    for q4 in range(4):
        e(f"v_add_u32 v20, {2*q4}, v17\nv_xor_b32 v20, v20, v19\nv_lshl_add_u32 v{100+q4}, v20, 4, v18")
    pstamp(e, 52)
    e.wait(vm=("x", "A"))
    pstamp(e, 53)
    for kc in range(5):
        for q4 in range(4):
            e.lds(f"ds_read_b128 {ar(4 * (4*kc + q4))}, v{100+q4} offset:{kc * 4096}", ("xf", 4*kc + q4))
    for q in range(4): e(f"v_mov_b32 v{16+q}, v{96+q}\nv_mov_b32 v{20+q}, v{100+q}")
    e.wait(lg=("xf", 19))
    e(f"s_lshl_b32 s{sXB2}, s{sW}, 13\ns_add_u32 s{sXB2}, s{sXB2}, {3 * SLOT}\ns_lshl_b32 s{sXB3}, s{sW}, 12\ns_add_u32 s{sXB3}, s{sXB3}, {FOLD}")
    e(f"s_sub_u32 s{sA}, s{sXB2}, s{sXS}")
    for q in range(4): e(f"v_add_u32 v{20+q}, s{sA}, v{20+q}")
    stamp(e, 1)

def late_setup():
    L = []
    def a(txt):
        for x in txt.split("\n"):
            x = x.split(";")[0].strip()
            if x: L.append(x)
    for s_, nb in ((S_WD, 4608 * ROWD), (S_WS, WS_BYTES), (S_DBG, 256), (S_CD, 576 * ROWD), (S_SD, 576 * ROWD), (S_GW, 1152)):
        a(f"s_and_b32 s{s_+1}, s{s_+1}, 0xffff\ns_mov_b32 s{s_+2}, {nb}\ns_mov_b32 s{s_+3}, 0x20000")
    a(f"""
    s_lshr_b32 s{sA}, s2, 3
    s_and_b32 s{sA}, s{sA}, 7
    s_mul_i32 s{sA}, s{sA}, 36
    s_mul_i32 s{sB}, s{sW}, 9
    s_add_u32 s{sA}, s{sA}, s{sB}
    v_add_u32 v192, s{sA}, v0
    s_mov_b32 s{sA}, {ROWW}
    v_mul_lo_u32 v193, v192, s{sA}
    v_mul_u32_u24 v194, {ROWD}, v192
    v_mov_b32 v195, 0x7ff00000
    v_cmp_gt_u32 vcc, 9, v0
    s_nop 1
    v_cndmask_b32 v{vTG}, v195, v193, vcc
    v_cndmask_b32 v206, v195, v194, vcc
    """)
    L.append(("s_nop 0", "tg_ready"))
    a(f"""
    s_lshl_b32 s{sA}, s{sI}, 4
    s_add_u32 s{sA}, s{sA}, s{sJ}
    s_xor_b32 s{sD}, s{sA}, 1
    s_and_b32 s{sFoffP}, s{sD}, 63
    s_lshl_b32 s{sFoffP}, s{sFoffP}, 2
    s_lshr_b32 s{sFbitP}, s{sD}, 6
    s_lshl_b32 s{sB}, s{sD}, 7
    s_lshl_b32 s{sC}, s{sW}, 2
    s_add_u32 s{sB}, s{sB}, s{sC}
    s_add_u32 s{sOBp}, s{sB}, {WS_FLAG}
    s_and_b32 s{sB}, s{sA}, 63
    s_lshl_b32 s{sB}, s{sB}, 2
    s_lshr_b32 s{sC}, s{sA}, 6
    s_lshl_b32 s{sC}, 1, s{sC}
    v_mov_b32 v{vMISC}, s{sC}
    v_mov_b32 v{vPOLL}, s{sB}
    v_mov_b32 v{vZERO}, 0
    v_mov_b32 v192, 0x7ffffff0
    s_lshl_b32 s{sB}, s{sA}, 7
    s_add_u32 s{sB}, s{sB}, {WS_FLAG}
    s_lshl_b32 s{sC}, s{sW}, 2
    s_add_u32 s{sC}, s{sC}, s{sB}
    v_mov_b32 v{vOB}, s{sC}
    v_mov_b32 v193, s{sB}
    v_cmp_eq_u32 vcc, 0, v0
    s_lshl_b32 s{sC}, s{sW}, 6
    v_add_u32 v194, s{sC}, v0
    v_cndmask_b32 v{vOB}, v192, v{vOB}, vcc
    v_cmp_eq_u32 vcc, 0, v194
    v_mov_b32 v200, 0
    v_mov_b32 v201, 0
    v_cndmask_b32 v{vPOLL}, v192, v{vPOLL}, vcc
    v_cndmask_b32 v204, v192, v193, vcc
    v_mov_b32 v202, 0
    v_mov_b32 v203, 0
    """)
    L.append(("s_nop 0", "clr_ready"))
    a(f"""
    s_mul_i32 s{sB}, s{sW}, 18432
    s_mul_i32 s{sC}, s{sA}, 73728
    s_add_u32 s{sC}, s{sC}, s{sB}
    s_add_u32 s{sHXo}, s{sC}, {WS_HX}
    s_mul_i32 s{sC}, s{sD}, 73728
    s_add_u32 s{sC}, s{sC}, s{sB}
    s_add_u32 s{sHXp}, s{sC}, {WS_HX}
    s_lshr_b32 s{sB}, s{sI}, 1
    s_mul_i32 s{sB}, s{sB}, {8 * PS}
    s_mul_i32 s{sC}, s{sW}, {2 * PS}
    s_add_u32 s{sB}, s{sB}, s{sC}
    s_lshr_b32 s{sC}, s{sJ}, 1
    s_mul_i32 s{sC}, s{sC}, {18 * 2048}
    s_add_u32 s{sB}, s{sB}, s{sC}
    s_add_u32 s{sB}, s{sB}, {WS_PART}
    s_mul_i32 s{sC}, s{sODD}, {10 * 2048}
    s_add_u32 s{sPARTp}, s{sB}, s{sC}
    s_add_u32 s{sC}, s{sODD}, 8
    s_lshl_b32 s{sC}, s{sC}, 11
    s_add_u32 s{sPARTs}, s{sB}, s{sC}
    s_mul_i32 s{sA}, s{sJ}, 288
    s_lshl_b32 s{sB}, s{sODD}, 5
    s_add_u32 s{sB}, s{sA}, s{sB}
    s_xor_b32 s{sC}, s{sODD}, 1
    s_lshl_b32 s{sC}, s{sC}, 8
    s_add_u32 s{sC}, s{sA}, s{sC}
    s_xor_b32 s{sD}, s{sJ}, 1
    s_mul_i32 s{sD}, s{sD}, 288
    s_lshl_b32 s{sTGs}, s{sC}, 1
    s_mul_i32 s{sE}, s{sW}, {64 * ROWW}
    s_add_u32 s{sSA}, s{sE}, s{sTGs}
    s_mul_i32 s{sE}, s{sW}, {16 * ROWW}
    s_add_u32 s{sE}, s{sE}, {512 * ROWW}
    s_add_u32 s{sSL}, s{sE}, s{sTGs}
    s_mul_i32 s90, s{sODD}, 640
    s_mul_i32 s91, s{sODD}, 576
    s_xor_b32 s92, s{sODD}, 1
    s_lshl_b32 s93, s92, 9
    s_add_u32 s91, s91, s93
    s_mul_i32 s{sE}, s{sA}, {ROWD}
    s_add_u32 s{sTDo}, s{sE}, s90
    s_mul_i32 s{sE}, s{sD}, {ROWD}
    s_add_u32 s{sTDp}, s{sE}, s90
    s_and_b32 s{sE}, s{sJ}, 14
    s_mul_i32 s{sE}, s{sE}, {288 * ROWD}
    s_add_u32 s{sTS}, s{sE}, s91
    s_lshl_b32 s93, s92, 5
    s_add_u32 s93, s{sD}, s93
    s_lshl_b32 s94, s{sODD}, 8
    s_add_u32 s94, s{sD}, s94
    s_lshl_b32 s{sE}, s{sW}, 5
    s_add_u32 s{sF}, s{sB}, s{sE}
    s_mul_i32 s{sF}, s{sF}, {ROWD}
    s_add_u32 s{sDAo}, s{sF}, s90
    s_add_u32 s{sF}, s93, s{sE}
    s_mul_i32 s{sF}, s{sF}, {ROWD}
    s_add_u32 s{sDAp}, s{sF}, s90
    s_lshl_b32 s{sE}, s{sW}, 3
    s_add_u32 s{sF}, s{sC}, s{sE}
    s_mul_i32 s{sF}, s{sF}, {ROWD}
    s_add_u32 s{sDLo}, s{sF}, s90
    s_add_u32 s{sF}, s94, s{sE}
    s_mul_i32 s{sF}, s{sF}, {ROWD}
    s_add_u32 s{sDLp}, s{sF}, s90
    s_lshl_b32 s{sE}, s{sW}, 6
    s_add_u32 s{sF}, s{sB}, s{sE}
    s_mul_i32 s{sF}, s{sF}, {ROWD}
    s_add_u32 s{sUA}, s{sF}, s91
    s_add_u32 s{sF}, s93, s{sE}
    s_mul_i32 s{sF}, s{sF}, {ROWD}
    s_add_u32 s{sUB}, s{sF}, s91
    s_cmp_lt_u32 s{sW}, 2
    s_cselect_b32 s{sF}, s{sC}, s94
    s_and_b32 s{sE}, s{sW}, 1
    s_lshl_b32 s{sE}, s{sE}, 4
    s_add_u32 s{sF}, s{sF}, s{sE}
    s_mul_i32 s{sF}, s{sF}, {ROWD}
    s_add_u32 s{sUL}, s{sF}, s91
    s_cmp_ge_u32 s{sJ}, 9
    s_cselect_b32 s{sCS}, 1, 0
    s_cselect_b32 s{S_T}, s{S_SD}, s{S_CD}
    s_cselect_b32 s{S_T+1}, s{S_SD+1}, s{S_CD+1}
    s_mov_b32 s{S_T+2}, {576 * ROWD}
    s_mov_b32 s{S_T+3}, 0x20000
    s_lshl_b32 s{sB}, s{sCS}, 3
    s_sub_u32 s{sCcol}, s{sJ}, s{sB}
    s_mul_i32 s{sTrow}, s{sCcol}, {32 * ROWD}
    v_lshrrev_b32 v192, 5, v0
    v_bfe_u32 v193, v0, 4, 1
    v_bfe_u32 v194, v0, 2, 2
    v_and_b32 v195, 3, v0
    v_lshlrev_b32 v196, 5, v193
    v_lshl_add_u32 v196, v195, 3, v196
    v_lshrrev_b32 v197, 1, v194
    v_lshlrev_b32 v197, 6, v197
    v_xor_b32 v198, 64, v197
    v_lshl_add_u32 v199, v192, 3, v194
    v_lshl_add_u32 v{vPGs}, v199, 6, v196
    v_lshl_add_u32 v199, v192, 2, v194
    v_lshlrev_b32 v205, 7, v199
    v_add3_u32 v{vPDp[0]}, v205, v197, v196
    v_add3_u32 v{vPDp[1]}, v205, v198, v196
    v_lshl_add_u32 v{vPDs}, v199, 6, v196
    v_bfe_u32 v192, v0, 2, 1
    v_bfe_u32 v193, v0, 4, 1
    v_xor_b32 v192, v192, v193
    v_lshlrev_b32 v192, 6, v192
    v_lshl_add_u32 v192, v195, 4, v192
    v_lshrrev_b32 v193, 3, v0
    v_mul_u32_u24 v193, {ROWD}, v193
    v_add_u32 v{vDDp}, v193, v192
    v_lshrrev_b32 v192, 2, v0
    v_lshlrev_b32 v193, 4, v195
    s_mov_b32 s{sA}, {ROWW}
    v_mul_lo_u32 v194, v192, s{sA}
    v_add_u32 v{vDGs}, v194, v193
    v_mul_u32_u24 v194, {ROWD}, v192
    v_add_u32 v{vDDs}, v194, v193
    """)
    for q in range(1, 4):
        a(f"v_add_u32 v{vDDp+q}, {q * (8 * ROWD - 1024)}, v{vDDp}")
        a(f"v_add_u32 v{vDGs+q}, {q * (16 * ROWW - 1024)}, v{vDGs}")
        a(f"v_add_u32 v{vDDs+q}, {q * (16 * ROWD - 1024)}, v{vDDs}")
    a(f"v_mov_b32 v{vTD}, v206")
    L.append(("s_nop 0", "late_done"))
    return [(x, 1) if isinstance(x, str) else (x[0], 1, x[1]) for x in L]

vR = 24; vO = 56; vP = 64; vM = 68; vFA = 72; vFB = 73; vFC = 74; vFD = 75
def fold_write_ops(acc=vTACC):
    ops = [f"s_lshl_b32 s{sE}, s{sW}, 12", f"s_add_u32 s{sE}, s{sE}, {FOLD}", f"v_add_u32 v21, s{sE}, v{vL16}"]
    w = [f"ds_write_b128 v21, {vr(acc + 4*z)} offset:{1024*z}" for z in range(4)]
    return ops, w
def fold_setup_ops():
    ops = [f"s_lshr_b32 s{sE}, s{sW}, 1", f"s_lshl_b32 s{sE}, s{sE}, 11", f"s_add_u32 s{sE}, s{sE}, {FOLD}",
           f"v_add_u32 v{vFB}, s{sE}, v{vL16}",
           f"s_and_b32 s{sE}, s{sW}, 1", f"s_lshl_b32 s{sF}, s{sCS}, 1", f"s_or_b32 s{sE}, s{sE}, s{sF}"]
    masks = [0b1100, 0b1010, 0b0110, 0b0000]
    neg = {0: (2, 3), 1: (1, 3), 2: (1, 2), 3: ()}
    for g in range(4):
        m = sum(1 << i for i in neg[g])
        ops += [f"s_lshr_b32 s{sF}, {m}, s{sE}", f"s_bitcmp1_b32 s{sF}, 0", f"s_cselect_b32 s{sSG+g}, 0xbf800000, 1.0"]
    ops += [f"s_cmp_eq_u32 s{sE}, 0", f"s_cselect_b32 s{sEA}, 1.0, 0", f"s_cselect_b32 s{sEB}, 1.0, 0",
            f"s_cmp_eq_u32 s{sE}, 3", f"s_cselect_b32 s{sEA}, 0xbf800000, s{sEA}", f"s_cselect_b32 s{sEB}, 1.0, s{sEB}"]
    return ops
def fold_reads():
    return [(f"ds_read_b128 {vr(vR + 8*g + 4*z)}, v{vFB} offset:{4096*g + 1024*z}", ("fr", g, z)) for g in range(4) for z in range(2)]
def fold_math(signs=None):
    if signs is None: signs = [f"s{sSG+g}" for g in range(4)]
    ops = []
    for r in range(8):
        R = [vR + 8*g + r for g in range(4)]
        if r == 0:
            ops += [f"v_mul_f32 v{vFD}, {signs[2]}, v{R[2]}", f"v_fma_f32 v{vFD}, {signs[3]}, v{R[3]}, v{vFD}",
                    f"v_mul_f32 v{vFD}, v{vFC}, v{vFD}",
                    f"v_fma_f32 v{vO}, {signs[0]}, v{R[0]}, v{vFD}", f"v_fma_f32 v{vO}, {signs[1]}, v{R[1]}, v{vO}"]
        else:
            ops += [f"v_mul_f32 v{vO+r}, {signs[0]}, v{R[0]}"] + [f"v_fma_f32 v{vO+r}, {signs[g]}, v{R[g]}, v{vO+r}" for g in range(1, 4)]
    for q in range(4): ops.append(f"v_cvt_pk_bf16_f32 v{vP+q}, v{vO+2*q}, v{vO+2*q+1}")
    ops += ["s_nop 1", f"v_permlane32_swap_b32 v{vP}, v{vP+2}", f"v_permlane32_swap_b32 v{vP+1}, v{vP+3}"]
    return ops
def fold_mask_ops():
    return [f"s_lshr_b32 s{sE}, s{sW}, 1", f"s_or_b32 s{sE}, s{sE}, s{sI}", f"s_cmp_eq_u32 s{sE}, 0", f"s_cselect_b32 s{sE}, 512, 0",
            f"v_cmp_gt_u32 vcc, s{sE}, v{vL16}", f"v_mov_b32 v{vFC}, 1.0", "s_nop 0", f"v_cndmask_b32 v{vFC}, v{vFC}, v{vZERO}, vcc"]
def z_addr_ops():
    return [f"s_and_b32 s{sE}, s{sW}, 1", f"s_lshl_b32 s{sE}, s{sE}, 1", f"s_add_u32 s{sE}, s{sE}, s{sCS}",
            f"s_mul_i32 s{sC}, s{sE}, {18*33*1024}", f"s_lshl_b32 s{sE}, s{sI}, 1", f"s_lshr_b32 s{sF}, s{sW}, 1", f"s_add_u32 s{sE}, s{sE}, s{sF}",
            f"s_lshl_b32 s{sE}, s{sE}, 10", f"s_add_u32 s{sC}, s{sC}, s{sE}", f"s_add_u32 s{sC}, s{sC}, {WS_Z}",
            f"s_mul_i32 s{sE}, s{sCcol}, {33*1024}", f"v_add_u32 v{vFA}, s{sE}, v{vL16}",
            f"v_bfe_u32 v{vM}, v{vL16}, 4, 5", f"s_lshl_b32 s{sE}, s{sCcol}, 5", f"v_add_u32 v{vM}, s{sE}, v{vM}",
            f"v_sub_u32 v{vM+1}, 576, v{vM}", f"v_lshrrev_b32 v{vM+2}, 5, v{vM+1}", f"v_mul_u32_u24 v{vM+2}, {33*1024}, v{vM+2}",
            f"v_and_b32 v{vM+1}, 31, v{vM+1}", f"v_lshlrev_b32 v{vM+1}, 4, v{vM+1}", f"v_and_b32 v{vM+3}, 512, v{vL16}",
            f"v_add3_u32 v{vFB}, v{vM+1}, v{vM+2}, v{vM+3}",
            f"v_cmp_eq_u32 vcc, 0, v{vM}", f"v_mov_b32 v{vM+1}, 0x7ff00000", "s_nop 0", f"v_cndmask_b32 v{vFB}, v{vFB}, v{vM+1}, vcc",
            f"s_cmp_eq_u32 s{sCS}, 1", f"s_cselect_b32 s{sD}, 0x80008000, 0"]
def z_store_ops():
    ops = [(f"buffer_store_dwordx4 {vr(vP)}, v{vFA}, {SRD(S_WS)}, s{sC} offen{ZF}", "vm")]
    ops += [(f"v_xor_b32 v{vM+q}, s{sD}, v{vP+q}", None) for q in range(4)]
    ops += [(f"buffer_store_dwordx4 {vr(vM)}, v{vFB}, {SRD(S_WS)}, s{sC} offen{ZF}", "vm")]
    return ops
def z512_ops(lbl):
    return f"""
    s_lshr_b32 s{sE}, s{sW}, 1
    s_or_b32 s{sE}, s{sE}, s{sI}
    s_cmp_eq_u32 s{sE}, 0
    s_cbranch_scc0 {lbl}
    v_mul_f32 v{vO}, s{sEA}, v{vR + 16}
    v_fma_f32 v{vO}, s{sEB}, v{vR + 24}, v{vO}
    v_cmp_gt_u32 vcc, 512, v{vL16}
    v_mov_b32 v{vO+1}, 0
    s_nop 0
    v_cndmask_b32 v{vO}, v{vO+1}, v{vO}, vcc
    v_cvt_pk_bf16_f32 v{vO+4}, v{vO}, v{vO+1}
    v_mov_b32 v{vO+5}, 0
    v_mov_b32 v{vO+6}, 0
    v_mov_b32 v{vO+7}, 0
    s_add_u32 s{sE}, s{sC}, {32 * 1024}
    buffer_store_dwordx4 {vr(vO+4)}, v{vFA}, {SRD(S_WS)}, s{sE} offen{ZF}
    s_nop 1
    v_xor_b32 v{vO+4}, s{sD}, v{vO+4}
    buffer_store_dwordx4 {vr(vO+4)}, v{vFB}, {SRD(S_WS)}, s{sE} offen{ZF}
    {lbl}:
    """

def gen_main(e):
    def set_work(u):
        pats = unit_patterns(u); sb = (u % 4) * SLOT
        for i, p in enumerate(pats):
            e(f"v_add_u32 v{vWK[i]}, {sb}, v{p}" if sb else f"v_mov_b32 v{vWK[i]}, v{p}")
    def reads(u, n):
        gn = 36 * u + n; b = aFR + 4 * (gn % 8); c = 0
        for (do, nr, ins, va, off) in frag_reads(u, n):
            e.lds(f"{ins} {ar(b + do, nr)}, v{va} offset:{off}", ("f", gn)); c += 1
        return c
    if "pk" in ABL: e(f"s_mov_b32 s{sPKC}, {NLOG2E}\ns_mov_b32 s{sPKC+1}, {NLOG2E}\ns_mov_b32 s{sPK1}, 1.0\ns_mov_b32 s{sPK1+1}, 1.0")
    e.wait(vm=("u", 0)); e("s_barrier")
    if DIAG: e("s_waitcnt lgkmcnt(0)"); settle(e); stamp(e, 2)
    set_work(0)
    for n in range(6): reads(0, n)

    queue = []
    def add(ops, gslot):
        prev = None
        merged = []
        for o in ops:
            if not isinstance(o, Op):
                if isinstance(o, str): o = (o, 1)
                if o[0].startswith("s_cselect") and merged and not isinstance(merged[-1], Op):
                    p_ = merged[-1]
                    assert p_[0].split("\n")[0].startswith(("s_cmp", "s_bitcmp")), p_
                    merged[-1] = (p_[0] + "\n" + o[0], p_[1] + 1) + tuple(p_[2:]); continue
            merged.append(o)
        for o in merged:
            if isinstance(o, Op): queue.append(o); continue
            op = Op(o[0], o[1], [(prev, 1)] if prev else [], gslot, o[2] if len(o) > 2 else None)
            queue.append(op); prev = op
    done = set()
    def ready(o):
        n = len(e.l)
        return all(d.at is not None and n - d.at >= dist for d, dist in o.deps)
    def emit(o):
        queue.remove(o); o.at = len(e.l); e(o.text)
        if o.tag: done.add(o.tag)
        return o.cost
    def fill(gs, room):
        used = 0
        while True:
            for o in queue[:40]:
                if o.nb <= gs and (o.cost <= room - used or (o.cost > 2 and used == 0)) and ready(o):
                    used += emit(o); break
            else: return used
    def force(o):
        for d, dist in o.deps:
            if d.at is None: force(d)
        while not ready(o): e("s_nop 0")
        emit(o)
    def drain_until(tag):
        while tag not in done:
            tgt = next(o for o in queue if o.tag == tag)
            force(tgt)
    def pop(): force(queue[0])
    G = lambda u, n: 36 * u + n
    P_early = []
    MT = []
    add(late_setup(), G(0, 0))
    def xb_dma(u_, kc, slots):
        base = (f"s{sXB2}", (kc - 5) * 4096) if kc < 7 else (f"s{sXB3}", 0)
        P_early.append((u_, slots[0] - 1, f"s_movk_i32 s{sXB}, {128 * kc}", None))
        for q in range(4):
            P_early.append((u_, slots[q] - 1, f"s_add_u32 m0, {base[0]}, {base[1] + q * 1024}", None))
            P_early.append((u_, slots[q], f"buffer_load_dwordx4 v{16+q}, {SRD(S_X)}, s{sXB} offen lds", ("x", kc)))
    xb_dma(0, 5, [1, 2, 3, 4]); xb_dma(0, 6, [5, 6, 7, 8]); xb_dma(0, 7, [9, 10, 11, 12]); xb_dma(1, 8, [7, 8, 9, 10])
    _tmp_last.clear()
    for p in range(4):
        ops, last = silu_chain(vG[p & 1], 32, G(3, 3) if p == 0 else G(4*p + 2, 3)); add(ops, 0)
        add(h_chain(vG[p & 1], vU, 2*p, last, 0, G(4*p + 4, 3)), 0)
        add(h_chain(vG[p & 1] + 16, vU + 16, 2*p + 1, last, 16, G(4*p + 4, 3)), 0)
    ops, last = silu_chain(vG[0], 16, G(17, 3)); add(ops, 0); add(h_chain(vG[0], vUS, 8, last, 0, G(18, 3)), 0)
    deadlines = {G(6, 0): [("h", 0), ("h", 1)], G(10, 0): [("h", 2), ("h", 3)], G(14, 0): [("h", 4), ("h", 5)], G(18, 0): [("h", 6), ("h", 7)], G(18, 32): [("h", 8)]}
    post = {}
    def P(u, n, text, tag=None): post.setdefault((u, n), []).append((text, tag))
    for (u_, n_, t_, g_) in P_early: P(u_, n_, t_, g_)
    pre = {}
    def PRE(u, n, fn): pre.setdefault((u, n), []).append(fn)
    PRE(1, 6, lambda: drain_until("clr_ready"))
    P(1, 30, f"buffer_store_dwordx4 v[200:203], v204, {SRD(S_WS)}, 0 offen sc1", "clr")
    PRE(0, 33, lambda: drain_until("tg_ready"))
    PRE(3, 0, lambda: drain_until("late_done"))
    def sched_dma(u, tgt, slots):
        g = dma_groups(tgt); i = 0
        for pre_, loads in g:
            for s_ in pre_: P(u, slots[i], s_)
            i += 1
            for s_ in loads: P(u, slots[i], s_, ("u", tgt)); i += 1
    STD = [1, 2, 4, 6, 8, 10, 11, 13, 15, 17, 19, 20]
    TWO_A = [1, 2, 3, 4, 5, 7, 8, 9, 10, 11, 13, 14]; TWO_B = [16, 17, 19, 21, 23, 25, 26, 27, 28, 29, 30, 31]
    sched_dma(0, 2, [13, 14, 15, 16, 17, 19, 20, 21, 22, 23, 25, 26])
    if "ramp1" not in ABL and "ramp3" not in ABL:
        sched_dma(2, 3, [0, 1, 2, 3, 4, 5, 6, 7, 9, 10, 11, 12]); sched_dma(2, 4, TWO_B)
        sched_dma(3, 5, TWO_A); sched_dma(3, 6, TWO_B)
        sched_dma(4, 7, STD)
        first_std = 5
    elif "ramp3" in ABL:
        sched_dma(1, 4, [22, 23, 24, 25, 26, 27, 28, 29, 30, 31, 32, 34])
        sched_dma(2, 3, [0, 1, 2, 3, 4, 5, 6, 7, 9, 10, 11, 12])
        sched_dma(3, 5, TWO_A); sched_dma(3, 6, TWO_B)
        first_std = 4
    else:
        sched_dma(1, 4, [12, 13, 15, 17, 19, 21, 22, 24, 26, 27, 28, 29])
        sched_dma(2, 3, [0, 1, 2, 3, 4, 5, 6, 7, 9, 10, 11, 12]); sched_dma(2, 5, TWO_B)
        first_std = 3
    for u in range(first_std, NUNIT - 3):
        if u + 3 == U_T1:
            for k_, s_ in enumerate(T_dma_addr(None)): P(u, k_ // 3, s_)
            sched_dma(u, u + 3, [11, 12, 13, 14, 15, 17, 18, 19, 20, 21, 23, 24])
        else:
            sched_dma(u, u + 3, STD)
    if "notouch" not in ABL:
        NET = next((int(a[2:]) for a in ABL if a.startswith("et")), 0)
        for k_, u in enumerate(range(max(NET, 2), PF) if "earlyt" not in ABL else []):
            for t, isv in touch_ops(u): P(0, 34 if k_ < 2 else 35, t, "touch" if isv else None)
        PFL = next((int(a[3:]) for a in ABL if a.startswith("pfl")), 20)
        cnt_ = {}
        for v in range(PF, NUNIT):
            u = max(1, v - PFL)
            while cnt_.get(u, 0) >= 2: u += 1
            k_ = cnt_.get(u, 0); cnt_[u] = k_ + 1
            sl = (31 + k_) if u in (1, 2) else (22 + 2 * k_)
            for t, isv in touch_ops(v): P(u, sl, t, "touch" if isv else None)
    PRE(1, 0, lambda: e.wait(vm=("x", 7)))
    for k_ in range(8):
        kc = 5 + k_ // 4; q4 = k_ % 4
        P(1, k_ // 4, f"ds_read_b128 {ar(4 * (4*kc + q4))}, v{20+q4} offset:{(kc - 5) * 4096}", ("lds", ("xf", 4*kc + q4)))
    P(1, 2, f"s_sub_u32 s{sXB}, s{sXB3}, s{sXB2}")
    for q4 in range(4): P(1, 2, f"v_add_u32 v{20+q4}, s{sXB}, v{20+q4}")
    for q4 in range(4): P(1, 3, f"ds_read_b128 {ar(4 * (28 + q4))}, v{20+q4}", ("lds", ("xf", 28 + q4)))
    PRE(1, 6, lambda: e.wait(lg=("xf", 31)))
    PRE(2, 8, lambda: e.wait(vm=("x", 8)))
    for q4 in range(4): P(2, 8, f"ds_read_b128 {ar(4 * (32 + q4))}, v{20+q4}", ("lds", ("xf", 32 + q4)))
    P(4, 34, f"buffer_atomic_or v{vMISC}, v{vPOLL}, {SRD(S_DBG)}, 0 offen", "clrbit")
    P(8, 24, f"buffer_load_dword v{vPOLL}, v{vZERO}, {SRD(S_DBG)}, s{sFoffP} offen sc1", "pollc")
    def chk_c():
        e.wait(vm="pollc"); e(f"v_readfirstlane_b32 s{sE}, v{vPOLL}\ns_nop 3\ns_bitcmp1_b32 s{sE}, s{sFbitP}\ns_cbranch_scc0 K1_spinc\nK1_spinc_done:")
    PRE(11, 6, chk_c)
    if "notouch" not in ABL:
        tt = [f"s_lshr_b32 s{sE}, s2, 3", f"s_and_b32 s{sE}, s{sE}, 7", f"s_mul_i32 s{sE}, s{sE}, 36", f"s_mul_i32 s{sC}, s{sW}, 9",
              f"s_add_u32 s{sE}, s{sE}, s{sC}", f"s_lshl_b32 s{sE}, s{sE}, 7", f"v_lshlrev_b32 v{vMISC}, 3, v{vL16}",
              f"v_add_u32 v{vMISC}, s{sE}, v{vMISC}", f"v_cmp_gt_u32 vcc, 144, v{vL16}", f"v_mov_b32 v{vPOLL}, 0x7ff00000", "s_nop 0",
              f"v_cndmask_b32 v{vMISC}, v{vPOLL}, v{vMISC}, vcc"]
        for k_, s_ in enumerate(tt): P(12, 26 + k_ // 2, s_)
        P(13, 27, f"buffer_load_dword a{aDUM}, v{vMISC}, {SRD(S_T)}, s{sTrow} offen", "touch")
        P(16, 26, f"s_cmp_eq_u32 s{sJ}, 0\ns_cselect_b32 s{sTCH}, {8 * 32 * ROWD}, 0\ns_cmp_gt_u32 s{sJ}, 1\ns_cselect_b32 s{sTCH}, 0x7ff00000, s{sTCH}")
        P(16, 27, f"buffer_load_dword a{aDUM}, v{vMISC}, {SRD(S_SD)}, s{sTCH} offen", "touch")
    if "notouch" not in ABL and "nomt" not in ABL:
        mt = [f"s_lshr_b32 s{sE}, s{sW}, 1\ns_lshl_b32 s{sE}, s{sE}, 3\ns_add_u32 s{sE}, s{sE}, {KA_CS}\ns_load_dwordx2 s[{S_DBG}:{S_DBG+1}], s[0:1], s{sE}",
              f"v_lshrrev_b32 v24, 4, v{vL16}", f"v_mul_u32_u24 v25, 57, v24", f"v_lshrrev_b32 v25, 9, v25",
              f"v_mul_u32_u24 v26, 9, v25", f"v_sub_u32 v26, v24, v26", f"s_lshl_b32 s{sE}, s2, 2", f"s_and_b32 s{sC}, s{sW}, 1",
              f"s_lshl_b32 s{sC}, s{sC}, 1", f"s_add_u32 s{sE}, s{sE}, s{sC}", f"v_add_u32 v25, s{sE}, v25", f"v_lshlrev_b32 v25, 12, v25",
              f"v_lshl_add_u32 v25, v26, 7, v25", f"v_mov_b32 v26, 0x7ff00000", f"v_cmp_gt_u32 vcc, 18, v24", "s_nop 1",
              f"v_cndmask_b32 v25, v26, v25, vcc"]
        for k_, s_ in enumerate(mt): P(25, 8 + k_, s_)
        P(25, 34, f"s_and_b32 s{S_DBG+1}, s{S_DBG+1}, 0xffff\ns_mov_b32 s{S_DBG+2}, {2048 * 4096}")
        MT.append(f"buffer_load_dword a{aDUM}, v25, {SRD(S_DBG)}, 0 offen")
    if "nocpf" not in ABL:
        c2 = [f"s_getpc_b64 s[{4}:{5}]\nK1_pc3:\ns_sub_u32 s4, s4, K1_pc3-K1_pc\ns_subb_u32 s5, s5, 0\ns_mov_b32 s{sCP}, s4\ns_and_b32 s{sCP+1}, s5, 0xffff\ns_mov_b32 s{sCP+2}, K1_codeend-K1_pc\ns_mov_b32 s{sCP+3}, 0x20000",
              f"s_lshr_b32 s{sE}, s2, 3", f"s_mul_i32 s{sE}, s{sE}, {CPF_LINES}", f"v_lshrrev_b32 v192, 4, v{vL16}", f"v_add_u32 v193, s{sE}, v192",
              f"v_lshlrev_b32 v193, 7, v193", f"v_mov_b32 v194, 0x7ff00000", f"v_cmp_gt_u32 vcc, {CPF_LINES}, v192", "s_nop 1", f"v_cndmask_b32 v193, v194, v193, vcc"]
        for k_, s_ in enumerate(c2): P(11, 23 + k_, s_)
        P(11, 34, f"s_cmp_eq_u32 s{sW}, 0\ns_cselect_b32 s{sE}, 0, 0x7ff00000")
        P(11, 35, f"buffer_load_dword a{aDUM}, v193, {SRD(sCP)}, s{sE} offen", "touch")
    hs = [(t, h) for t in range(9) for h in range(2)]
    hplan = [(6, 25), (7, 25), (8, 25), (9, 25), (10, 25), (11, 25), (12, 25), (13, 25), (14, 25), (14, 31), (15, 25), (15, 31),
             (17, 23), (17, 29), (17, 34), (18, 23), (18, 33), (19, 4)]
    for (t, h), (u, n) in zip(hs, hplan):
        a, b = h_store(t, h); P(u, n, a); P(u, n, b, ("hst", t))
        need = ("h", t)
        PRE(u, n, (lambda need=need: drain_until(need)))
    def mkflag(tag, val):
        def f():
            e.wait(vm=tag); e(f"v_mov_b32 v{vMISC}, {val}")
            e.vmem(f"buffer_store_dword v{vMISC}, v{vOB}, {SRD(S_WS)}, 0 offen sc1", ("flag", val))
        return f
    PRE(19, 9, mkflag(("hst", 7), 1)); PRE(20, 0, mkflag(("hst", 8), 2))
    def mkchk(tag, val, lbl):
        def f():
            e.wait(vm=tag)
            e(f"v_readfirstlane_b32 s{sE}, v{vPOLL}\ns_nop 3\ns_cmp_ge_u32 s{sE}, {val}\ns_cbranch_scc0 {lbl}\n{lbl}_done:")
        return f
    P(20, 22, f"buffer_load_dword v{vPOLL}, v{vZERO}, {SRD(S_WS)}, s{sOBp} offen sc1", "poll1")
    PRE(21, 12, mkchk("poll1", 1, "K1_spin"))
    P(22, 0, f"buffer_load_dword v{vPOLL}, v{vZERO}, {SRD(S_WS)}, s{sOBp} offen sc1", "poll2")
    PRE(22, 33, mkchk("poll2", 2, "K1_spin2"))
    hpl = [(21, 21 + 2*k_) for k_ in range(8)] + [(22, 21 + 2*k_) for k_ in range(8)] + [(23, 1), (23, 3)]
    for k_, (u, n) in enumerate(hpl):
        P(u, min(n, 35), f"s_add_u32 s{sD}, s{sHXp}, {(k_ * 1024) & ~4095}")
        P(u, min(n, 35), f"buffer_load_dwordx4 {ar(aHP + 4*k_)}, v{vL16}, {SRD(S_WS)}, s{sD} offen offset:{(k_ * 1024) & 4095} sc1", ("hp", k_))
    PRE(U_S, 17, lambda: e.wait(vm=("hp", 7)))
    PRE(U_S, 25, lambda: e.wait(vm=("hp", 15)))
    PRE(U_S, 33, lambda: e.wait(vm=("hp", 17)))
    for k_, s_ in enumerate(T_read_addr((U_T1 % 4) * SLOT)): P(21, 8 + k_ // 2, s_)
    pst = [f"v_bfe_u32 v20, v{vL16}, 4, 1", f"v_mul_u32_u24 v20, {PS}, v20" if PS < (1 << 24) else None,
           f"v_bfe_u32 v21, v{vL16}, 5, 4", f"s_and_b32 s{sE}, s{sI}, 1", f"s_lshl_b32 s{sE}, s{sE}, 4", f"v_add_u32 v21, s{sE}, v21",
           f"v_lshlrev_b32 v21, 4, v21", f"v_and_b32 v22, 512, v{vL16}", f"v_add3_u32 v{vPST}, v20, v21, v22"]
    for k_, s_ in enumerate(pst): P(22, 8 + k_, s_)
    if DIAG and "probe" in ABL:
        def mk(idx):
            def f():
                e(f"s_memrealtime s[96:97]\ns_waitcnt lgkmcnt(0)\nv_writelane_b32 v{vDIAG}, s96, {idx}")
            return f
        pts = PROBE_PTS
        for k_, (u_, n_) in enumerate(pts):
            pre.setdefault((u_, n_), []).insert(0, mk(44 + k_))
    if "nocpf" not in ABL and K2_LABELS:
        k2s, k2e = K2_LABELS
        cp = [f"s_getpc_b64 s[{S_T}:{S_T+1}]\nK1_pc2:\ns_add_u32 s{S_T}, s{S_T}, {k2s}-K1_pc2\ns_addc_u32 s{S_T+1}, s{S_T+1}, 0\ns_and_b32 s{S_T+1}, s{S_T+1}, 0xffff\ns_mov_b32 s{S_T+2}, {k2e}-{k2s}",
              f"s_lshr_b32 s{sE}, s2, 3", f"s_lshl_b32 s{sE}, s{sE}, 9", f"v_lshlrev_b32 v20, 3, v{vL16}", f"v_add_u32 v20, s{sE}, v20",
              f"v_mov_b32 v21, 0x7ff00000", f"v_cmp_gt_u32 vcc, 64, v{vL16}", "s_nop 1", f"v_cndmask_b32 v20, v21, v20, vcc"]
        for k_, s_ in enumerate(cp): P(23, 4 + k_, s_)
        P(23, 24, f"buffer_load_dword a{aDUM}, v20, {SRD(S_T)}, 0 offen", "touch")
    a_, w_ = fold_write_ops()
    def t_write():
        for s_ in a_: e(s_)
        e("s_nop 7")
        for s_ in w_: e.lds(s_, "fw")
    PRE(U_S, 0, t_write)
    fo = []
    fo += fold_setup_ops() + fold_mask_ops()
    add(fo, G(24, 0))
    add([("s_nop 0", 1, "fsetup")], G(24, 0)); queue[-1].deps = [(queue[-2], 1)]
    PRE(24, 9, lambda: drain_until("fsetup"))
    frs = fold_reads()
    for k_, (s_, tg) in enumerate(frs): P(24, 9 + k_, s_, ("lds", tg))
    PRE(24, 19, lambda: e.wait(lg=("fr", 3, 1)))
    add(z_addr_ops(), G(24, 17)); za_last = queue[-1]; add(fold_math(), G(24, 19))
    zs = z_store_ops()
    add([("s_nop 0", 1, "zready")], G(24, 19)); queue[-1].deps = [(queue[-2], 1), (za_last, 1)]
    def z_out():
        drain_until("zready")
        for s_, k_ in zs: (e.vmem(s_, "zst") if k_ else e(s_))
        e(z512_ops("K1_noz512"))
    PRE(25, 2, z_out)
    apx = {}
    def apx_dma():
        appendix_dma(e); apx["vmidx"] = len(e.vm)
    PRE(25, 6, apx_dma)
    for k_, s_ in enumerate(T_read_addr(APX_SLOT * SLOT)): P(26, 1 + k_ // 2, s_)
    add(epi_ops(8), G(25, 4))
    for q in range(3): add(epi_ops(2*q), G(25 + q, 4)); add(epi_ops(2*q + 1), G(25 + q, 4))
    pplan = {8: [(25, 12), (25, 17)], 0: [(25, 22), (25, 27)], 1: [(25, 32), (26, 6)], 2: [(26, 12), (26, 18)], 3: [(26, 24), (26, 30)],
             4: [(27, 8), (27, 14)], 5: [(27, 20), (27, 26)]}
    for t, pl in pplan.items():
        for h, (u, n) in enumerate(pl):
            a, b = p_store(t, h); P(u, n, a); P(u, n, b, ("pst", t))
            PRE(u, n, (lambda t=t: drain_until(("e", t))))

    def slot(u, n, last_path=None):
        gs = G(u, n)
        if gs in deadlines:
            n0 = len(e.l)
            for tg_ in deadlines[gs]: drain_until(tg_)
            if VERBOSE: print("deadline", u, n, "forced", len(e.l) - n0)
        cost = 0
        for fn in pre.get((u, n), []): fn()
        nxt = u + 1 < NUNIT or last_path == "A"
        if n % 3 == 0:
            if n == 33 and nxt:
                nvm = e.vm_count([("u", u + 1)]) if u + 1 < NUNIT else len(e.vm) - apx["vmidx"]
                e(f"s_waitcnt vmcnt({min(nvm, 63)}) lgkmcnt(0)")
                settle(e); e("s_barrier"); stamp(e, 4 + u)
                if u + 1 < NUNIT: set_work(u + 1)
            else:
                e.wait(lg=[("f", gs), ("f", gs + 1), ("f", gs + 2)])
            cost += 1
        e(mfma(u, n))
        if n <= 29: cost += reads(u, n + 6)
        elif n >= 33 and nxt:
            cost += reads(u + 1, 2*(n - 33)); cost += reads(u + 1, 2*(n - 33) + 1)
        for s_, tg in post.get((u, n), []):
            if s_ is None: continue
            if isinstance(tg, tuple) and tg[0] == "lds": e.lds(s_, tg[1])
            elif tg is not None: e.vmem(s_, tg)
            else: e(s_)
            cost += 1
        if n == 32: return
        fill(gs, 5 - cost)
    for u in range(NUNIT):
        for n in range(36):
            if u == NUNIT - 1 and n == 33: break
            slot(u, n)
    e(f"s_cmp_gt_u32 s{sJ}, 2\ns_cbranch_scc1 K1_tailN")
    sv_vm, sv_lg, sv_pend = list(e.vm), list(e.lg), getattr(e, "pending_stamp", None)
    assert not queue, [o.text for o in queue]
    for n in (33, 34, 35): slot(NUNIT - 1, n, "A")
    add(epi_ops(6), G(NUNIT, 3)); add(epi_ops(7), G(NUNIT, 3))
    for t, pl in {6: [(NUNIT, 10), (NUNIT, 16)], 7: [(NUNIT, 22), (NUNIT, 28)]}.items():
        for h, (u, n) in enumerate(pl):
            a, b = p_store(t, h); P(u, n, a); P(u, n, b, ("pst", t))
            PRE(u, n, (lambda t=t: drain_until(("e", t))))
    for n in range(36):
        gs = G(NUNIT, n)
        cost = 0
        for fn in pre.get((NUNIT, n), []): fn()
        if n % 3 == 0: e.wait(lg=[("f", gs), ("f", gs + 1), ("f", gs + 2)]); cost += 1
        e(mfma(NUNIT, n))
        if n <= 29: cost += reads(NUNIT, n + 6)
        for s_, tg in post.get((NUNIT, n), []):
            (e.vmem(s_, tg) if tg is not None else e(s_)); cost += 1
        fill(gs, 5 - cost)
    appendix_post(e)
    e("s_branch K1_fin")
    e("K1_tailN:")
    e.vm, e.lg = sv_vm, sv_lg; e.pending_stamp = sv_pend
    for n in (33, 34, 35): slot(NUNIT - 1, n, "N")
    e("s_nop 7\ns_nop 7")
    for t in (6, 7):
        for o in epi_ops(t): e(o[0])
        for h in range(2):
            a, b = p_store(t, h); e(a); e.vmem(b, ("pst", t))
    for s_ in MT: e.vmem(s_, "touch")

APX_SLOT = 0
def appendix_dma(e):
    sb = APX_SLOT * SLOT
    e(f"s_cmp_gt_u32 s{sJ}, 2\ns_cbranch_scc1 K1_apx_nodma")
    for s_ in T_dma_addr(None): e(s_)
    e(f"""
    s_cmp_eq_u32 s{sJ}, 2
    s_cselect_b32 s{S_T}, s{S_GW}, s{S_SD}
    s_cselect_b32 s{S_T+1}, s{S_GW+1}, s{S_SD+1}
    s_mov_b32 s{sF}, {576 * ROWD}
    s_cselect_b32 s{S_T+2}, 1152, s{sF}
    s_cmp_eq_u32 s{sJ}, 0
    s_cselect_b32 s{sCcol}, 8, 0
    s_mov_b32 s{sCS}, 1
    s_mul_i32 s{sTrow}, s{sCcol}, {32 * ROWD}
    v_add_u32 v21, {288 * ROWD}, v{vL16}
    """)
    u = U_T1
    for gi, (pre_, loads) in enumerate(dma_groups(u, slot=APX_SLOT)):
        for s_ in pre_: e(s_)
        e("s_nop 0")
        for q, s_ in enumerate(loads):
            special = (gi < 2 and q == 0) or gi == 2
            if not special: e(s_); continue
            lbl = f"K1_apx_n{gi}"
            e(f"s_cmp_eq_u32 s{sJ}, 1\ns_cbranch_scc0 {lbl}")
            if gi == 2: e(f"s_cmp_eq_u32 s{sW}, 0\ns_cbranch_scc0 {lbl}")
            st = sT0 + gi
            e(f"s_mov_b64 exec, 0xff\nbuffer_load_dwordx4 v21, {SRD(S_CD)}, s83 offen lds" if False else "")
            e(f"s_mov_b64 exec, 0xff")
            e(f"buffer_load_dwordx4 v21, {SRD(S_CD)}, s{st} offen lds")
            e(f"s_not_b64 exec, exec")
            e(s_)
            e(f"s_mov_b64 exec, -1\ns_branch {lbl}_d\n{lbl}:")
            e(s_)
            e(f"{lbl}_d:")
    e("K1_apx_nodma:")

def appendix_post(e):
    e("s_nop 7\ns_nop 7")
    a_, w_ = fold_write_ops()
    for s_ in a_ + w_: e(s_)
    e(f"s_cmp_eq_u32 s{sJ}, 2\ns_cbranch_scc1 K1_gate")
    e("s_waitcnt lgkmcnt(0)\ns_barrier")
    for s_ in fold_setup_ops() + fold_mask_ops(): e(s_)
    for s_, tg in fold_reads(): e(s_)
    vS = 76; vE = 80
    e(f"s_and_b32 s{sE}, s{sW}, 1")
    neg = {0: (), 1: (1,), 2: (1,), 3: ()}
    e(f"""
    v_bfe_u32 v84, v{vL16}, 4, 5
    s_cmp_eq_u32 s{sJ}, 1
    s_cselect_b32 s{sF}, 0, -1
    v_cmp_eq_u32 vcc, s{sF}, v84
    s_mov_b64 s[98:99], vcc
    """ if False else f"""
    v_bfe_u32 v84, v{vL16}, 4, 5
    s_cmp_eq_u32 s{sJ}, 1
    s_cselect_b32 s{sF}, 0, -1
    v_cmp_eq_u32 vcc, s{sF}, v84
    """)
    for g in range(4):
        if g in (1, 2):
            e(f"s_cmp_eq_u32 s{sE}, 1\ns_cselect_b32 s{sF}, 0xbf800000, 1.0")
        else:
            e(f"s_mov_b32 s{sF}, 1.0")
        e(f"v_mov_b32 v{vS+g}, s{sSG+g}\nv_mov_b32 v85, s{sF}\nv_cndmask_b32 v{vS+g}, v{vS+g}, v85, vcc")
    e(f"s_cmp_eq_u32 s{sE}, 0\ns_cselect_b32 s{sF}, 1.0, 0\nv_mov_b32 v85, s{sF}")
    e(f"v_mov_b32 v{vE}, s{sEA}\nv_mov_b32 v{vE+1}, s{sEB}\nv_cndmask_b32 v{vE}, v{vE}, v85, vcc\nv_cndmask_b32 v{vE+1}, v{vE+1}, v85, vcc")
    e(f"v_mov_b32 v86, 0\nv_mov_b32 v87, -1\nv_cndmask_b32 v86, v86, v87, vcc")
    e("s_waitcnt lgkmcnt(0)")
    for s_ in fold_math([f"v{vS+g}" for g in range(4)]): e(s_)
    for s_ in z_addr_ops(): e(s_)
    e(f"""
    v_and_b32 v88, 512, v{vL16}
    v_add_u32 v88, {9 * 33 * 1024}, v88
    v_mov_b32 v89, 0x7ff00000
    v_cmp_eq_u32 vcc, -1, v86
    s_nop 1
    v_cndmask_b32 v88, v89, v88, vcc
    s_sub_u32 s{sF}, s{sC}, {18 * 33 * 1024}  ; same (p, ks) in the cosine matrix
    """)
    e(f"buffer_store_dwordx4 {vr(vP)}, v88, {SRD(S_WS)}, s{sF} offen{ZF}")
    for q in range(4): e(f"v_cndmask_b32 v{vO+q}, v{vP+q}, v{vZERO}, vcc")
    for q in range(4): e(f"v_cndmask_b32 v{vO+4+q}, v{vZERO}, v{vZERO}, vcc")
    e(f"buffer_store_dwordx4 {vr(vO)}, v{vFA}, {SRD(S_WS)}, s{sC} offen{ZF}")
    e(f"buffer_store_dwordx4 {vr(vO+4)}, v88, {SRD(S_WS)}, s{sC} offen{ZF}")
    for q in range(4): e(f"v_xor_b32 v{vM+q}, s{sD}, v{vP+q}")
    e(f"buffer_store_dwordx4 {vr(vM)}, v{vFB}, {SRD(S_WS)}, s{sC} offen{ZF}")
    e(f"""
    s_lshr_b32 s{sE}, s{sW}, 1
    s_or_b32 s{sE}, s{sE}, s{sI}
    s_cmp_eq_u32 s{sE}, 0
    s_cbranch_scc0 K1_fin
    v_mul_f32 v{vO}, v{vE}, v{vR + 16}
    v_fma_f32 v{vO}, v{vE+1}, v{vR + 24}, v{vO}
    v_cmp_gt_u32 vcc, 512, v{vL16}
    v_mov_b32 v{vO+1}, 0
    s_nop 0
    v_cndmask_b32 v{vO}, v{vO+1}, v{vO}, vcc
    v_cvt_pk_bf16_f32 v{vO+4}, v{vO}, v{vO+1}
    v_mov_b32 v{vO+5}, 0
    v_mov_b32 v{vO+6}, 0
    v_mov_b32 v{vO+7}, 0
    s_add_u32 s{sE}, s{sC}, {32 * 1024}
    s_add_u32 s{sF}, s{sF}, {32 * 1024}
    v_cmp_eq_u32 vcc, -1, v86
    s_nop 1
    v_cndmask_b32 v{vM}, v{vO+4}, v{vZERO}, vcc
    v_mov_b32 v{vM+1}, 0
    v_mov_b32 v{vM+2}, 0
    v_mov_b32 v{vM+3}, 0
    buffer_store_dwordx4 {vr(vO+4)}, v88, {SRD(S_WS)}, s{sF} offen{ZF}
    buffer_store_dwordx4 {vr(vM)}, v{vFA}, {SRD(S_WS)}, s{sE} offen{ZF}
    v_mov_b32 v{vR}, 0
    v_mov_b32 v{vR+1}, 0
    v_mov_b32 v{vR+2}, 0
    v_mov_b32 v{vR+3}, 0
    buffer_store_dwordx4 {vr(vR)}, v88, {SRD(S_WS)}, s{sE} offen{ZF}
    s_nop 1
    v_xor_b32 v{vO+4}, s{sD}, v{vO+4}
    s_nop 0
    buffer_store_dwordx4 {vr(vO+4)}, v{vFB}, {SRD(S_WS)}, s{sE} offen{ZF}
    s_branch K1_fin
    K1_gate:
    """)
    e(f"""
    v_bfe_u32 v18, v{vL16}, 4, 5
    v_lshrrev_b32 v19, 3, v18
    v_lshlrev_b32 v19, 10, v19
    v_bfe_u32 v20, v18, 2, 1
    v_lshl_add_u32 v19, v20, 9, v19
    v_and_b32 v20, 3, v18
    v_lshl_add_u32 v19, v20, 2, v19
    s_lshl_b32 s{sE}, s{sW}, 12
    s_add_u32 s{sE}, s{sE}, {FOLD}
    v_add_u32 v19, s{sE}, v19
    s_waitcnt lgkmcnt(0)
    ds_read_b32 v22, v19
    """)
    rowcalc(e, 19, 18, sW)
    e(f"""
    v_lshlrev_b32 v19, 2, v19
    v_mov_b32 v20, 0x7ff00000
    v_cmp_gt_u32 vcc, 512, v{vL16}
    s_waitcnt lgkmcnt(0)
    v_mul_f32 v21, {NLOG2E}, v22
    v_exp_f32 v21, v21
    v_cndmask_b32 v19, v20, v19, vcc
    v_add_f32 v21, 1.0, v21
    v_rcp_f32 v21, v21
    s_mov_b32 s{sE}, {WS_G}
    s_nop 0
    buffer_store_dword v21, v19, {SRD(S_WS)}, s{sE} offen{ZF}
    """)

def gen_k1(name="k1_kernel"):
    e = Emit()
    e.l.append(kbegin(name).rstrip("\n"))
    prologue(e)
    gen_main(e)
    e("K1_fin:")
    if DIAG: e("s_waitcnt lgkmcnt(0)"); settle(e); stamp(e, 40); e("s_waitcnt lgkmcnt(0)"); settle(e)
    e("s_waitcnt vmcnt(0)")
    if DIAG:
        stamp(e, 41); e("s_waitcnt lgkmcnt(0)"); settle(e)
        e(f"s_lshl_b32 s{sA}, s2, 2\ns_add_u32 s{sA}, s{sA}, s{sW}\ns_lshl_b32 s{sA}, s{sA}, 8\ns_add_u32 s{sA}, s{sA}, {WS_DIAG}")
        e(f"v_lshrrev_b32 v14, 2, v{vL16}")
        e(f"buffer_store_dword v{vDIAG}, v14, {SRD(S_WS)}, s{sA} offen")
        e("s_waitcnt vmcnt(0)")
    e("K1_end:")
    e("s_endpgm")
    for nm, srd_, so, test in (("K1_spin", S_WS, sOBp, f"s_cmp_ge_u32 s{sE}, 1"), ("K1_spin2", S_WS, sOBp, f"s_cmp_ge_u32 s{sE}, 2"), ("K1_spinc", S_DBG, sFoffP, f"s_bitcmp1_b32 s{sE}, s{sFbitP}")):
        e(f"""
        {nm}:
        s_mov_b32 s{sD}, 0
        {nm}_loop:
        s_sleep 4
        buffer_load_dword v{vPOLL}, v{vZERO}, {SRD(srd_)}, s{so} offen sc1
        s_waitcnt vmcnt(0)
        v_readfirstlane_b32 s{sE}, v{vPOLL}
        s_nop 3
        {test}
        s_cbranch_scc1 {nm}_done
        s_add_u32 s{sD}, s{sD}, 1
        s_cmp_lt_u32 s{sD}, 0x40000
        s_cbranch_scc1 {nm}_loop
        s_branch {nm}_done
        """)
    e("K1_codeend:")
    return e.text() + kdesc(name, 256, 252, 102)
if __name__ == "__main__":
    print(gen_k1())
```

```python
import sys, os
sys.path.insert(0, os.path.dirname(os.path.abspath(__file__)))
from common import *
import k1, ka, k2, k1v2, k2v2
def header(launches):
    s = ""
    for (k, g, b, lds) in launches:
        s += f"; @launch kernel={k} grid=({g},1,1) block=({b},1,1) lds={lds}\n"
    s += '.amdgcn_target "amdgcn-amd-amdhsa--gfx950"\n.text\n'
    return s
def build_k1_only():
    return header([("k1_kernel", 256, 256, k1.LDS_BYTES)]) + k1.gen_k1()
def build_k1_diag():
    k1.DIAG = True
    return build_k1_only()
def build_k1_diag2():
    k1.DIAG = 2
    return build_k1_only()
TOP = open(os.path.join(os.path.dirname(os.path.abspath(__file__)), "top_comment.txt")).read()
def build_v1():
    return TOP + header([("ka_kernel", 170, 256, ka.LDS_BYTES), ("k1_kernel", 256, 256, k1.LDS_BYTES), ("k2_kernel", 192, 384, k2.LDS_BYTES)]) + ka.gen_ka() + k1.gen_k1() + k2.gen_k2()
def build_v2():
    return TOP + header([("k1_kernel", 256, 256, k1v2.LDS_BYTES), ("k2_kernel", 192, 384, k2.LDS_BYTES)]) + k1v2.gen_k1() + k2.gen_k2()
def build_v3():
    k1v2.K2_LABELS = ("k2_kernel", "K2_codeend")
    return TOP + header([("k1_kernel", 256, 256, k1v2.LDS_BYTES), ("k2_kernel", 198, 384, k2v2.LDS_BYTES)]) + k1v2.gen_k1() + k2v2.gen_k2()
def build_v3d():
    k2v2.DIAG = True; k1v2.DIAG = 1
    return build_v3()
def build_full(name):
    k2v2.DIAG = True; k1v2.DIAG = 1
    k1v2.ABL = set(name.split("+")) - {"base"}
    for a in k1v2.ABL:
        if a.startswith("pf") and not a.startswith("pfl"): k1v2.PF = int(a[2:])
    if "zplain" in k1v2.ABL: k1v2.ZF = ""
    return build_v3()
def build_rel(name):
    k1v2.ABL = set(name.split("+")) - {"base"}
    for a in k1v2.ABL:
        if a.startswith("pf") and not a.startswith("pfl"): k1v2.PF = int(a[2:])
    if "zplain" in k1v2.ABL: k1v2.ZF = ""
    k2v2.ABL = k1v2.ABL
    return build_v3()
def build_probe(spec):
    k1v2.DIAG = 1; k1v2.ABL = {"probe"}
    k1v2.PROBE_PTS = [tuple(int(x) for x in p.split(".")) for p in spec.split(",")]
    k1v2.K2_LABELS = None
    return header([("k1_kernel", 256, 256, k1v2.LDS_BYTES)]) + k1v2.gen_k1()
def build_k2abl(name):
    k2v2.DIAG = True; k1v2.DIAG = 1
    k2v2.ABL = set(name.split("+")) - {"base"}
    return build_v3()
def build_k1v2(name):
    k1v2.DIAG = 1
    k1v2.ABL = set(name.split("+")) - {"base"}
    for a in k1v2.ABL:
        if a.startswith("pf") and not a.startswith("pfl"): k1v2.PF = int(a[2:])
    return header([("k1_kernel", 256, 256, k1v2.LDS_BYTES)]) + k1v2.gen_k1()
def build_abl(name):
    k1.DIAG = 1
    k1.ABL = set(name.split("+")) - {"base"}
    for a in k1.ABL:
        if a.startswith("pf"): k1.PF = int(a[2:])
    return build_k1_only()
if __name__ == "__main__":
    what = sys.argv[1]; out = sys.argv[2]
    if what.startswith("probe:"): open(out, "w").write(build_probe(what[6:]))
    elif what.startswith("rel:"): open(out, "w").write(build_rel(what[4:]))
    elif what.startswith("full:"): open(out, "w").write(build_full(what[5:]))
    elif what.startswith("k2abl:"): open(out, "w").write(build_k2abl(what[6:]))
    elif what.startswith("k1v2:"): open(out, "w").write(build_k1v2(what[5:]))
    elif what.startswith("abl:"): open(out, "w").write(build_abl(what[4:]))
    else: open(out, "w").write(globals()["build_" + what]())
```

```python
from common import *

ROWW = 9216; ROWD = 1152; SLOT = 36864
LDS_BYTES = 163840
XB0 = 2 * SLOT; XBW = 20480
FOLD = 4 * SLOT
NUNIT = 28
U_T1 = 22; U_S = 23
DIAG = False
VERBOSE = False
ZF = ' sc1'
ABL = set()
WS_DIAG = 80 << 20
PF = 6
S_WG, S_WU, S_WD, S_X, S_WS, S_DBG, S_T, S_CD, S_GW, S_SD = 8, 12, 16, 20, 24, 28, 32, 36, 40, 44
sW, sI, sJ, sODD = 48, 49, 50, 51
sGA, sGL, sSA, sSL = 52, 53, 54, 55
sDAo, sDLo, sDAp, sDLp = 56, 57, 58, 59
sUA, sUB, sUL = 60, 61, 62
sM0A, sM0L = 63, 64
sT0 = 65
sHXo, sHXp, sPARTp, sPARTs = 68, 69, 70, 71
sFoffP, sFbitP, sOBp = 72, 73, 74
sTG, sTGs, sTDo, sTDp, sTS = 75, 76, 77, 78, 79
sTrow, sCS, sCcol = 80, 81, 82
sA, sB, sC, sD, sE, sF = 84, 85, 86, 87, 88, 89
sSG = 90
sEA, sEB = 94, 95
sCP = 20
sXS = 3
sXB2, sXB3 = 83, 95
sXB, sTCH, sHST, sPST = 4, 5, 6, 7
vTD = 0; vL16 = 1; vWK = (2, 3)
vPGp = (4, 5); vPGs = 6; vPDp = (7, 8); vPDs = 9
vPOLL = 10; vZERO = 11; vOB = 12; vMISC = 13; vTG = 14; vDIAG = 15
vTMP = 16
vH = 24
vG = (96, 128); vU = 160; vUS = 192
DACC = [128, 144, 160, 176, 208, 224, 96, 112, 192]
vTACC = 192
vDGp, vDGs, vDDp, vDDs = 240, 244, 248, 252
aFR = 144; aHP = 176; aDUM = 248
PS = 8 * 18 * 2048
def vr(b, n=4): return f"v[{b}:{b+n-1}]"
def ar(b, n=4): return f"a[{b}:{b+n-1}]"
def SRD(s): return f"s[{s}:{s+3}]"

def unit_desc(u):
    if u < 4: return dict(kind="GUp", mat="GU"[u & 1], p=0, kh=u >> 1)
    if u < 16:
        p, r = divmod(u, 4)
        return dict(kind="GUp", mat="G" if r < 2 else "U", p=p, kh=r & 1)
    if u == 16: return dict(kind="GUs", mat="G")
    if u == 17: return dict(kind="GUs", mat="U")
    if u < 22: return dict(kind="Dp", ps=1, q=u - 18)
    if u == U_T1: return dict(kind="T")
    if u == U_S: return dict(kind="S")
    if u == NUNIT: return dict(kind="T")
    return dict(kind="Dp", ps=2, q=u - 24)

vTD_T = 16
vTR = 16

def dma_groups(u, slot=None):
    d = unit_desc(u); sb = (u % 4) * SLOT if slot is None else slot * SLOT
    k = d["kind"]
    if k == "T":
        g = []
        g.append(([f"s_lshl_b32 s{sT0}, s{sW}, 7", f"s_add_u32 s{sT0}, s{sT0}, s{sTrow}", f"s_add_u32 m0, s{sM0A}, {sb}"],
                  [f"buffer_load_dwordx4 v{vTD_T+q}, {SRD(S_T)}, s{sT0} offen{' offset:%d' % (1024*q) if q else ''} lds" for q in range(4)]))
        g.append(([f"s_add_u32 s{sT0+1}, s{sT0}, 512", f"s_add_u32 m0, s{sM0A}, {sb + 16384}"],
                  [f"buffer_load_dwordx4 v{vTD_T+q}, {SRD(S_T)}, s{sT0+1} offen{' offset:%d' % (1024*q) if q else ''} lds" for q in range(4)]))
        g.append(([f"s_add_u32 s{sT0+2}, s{sTrow}, 1024", f"s_add_u32 m0, s{sM0L}, {sb}"],
                  [f"buffer_load_dwordx4 v{vTD_T+4}, {SRD(S_T)}, s{sT0+2} offen lds"]))
        return g
    if k == "GUp":
        srd_ = S_WG if d["mat"] == "G" else S_WU
        c = 288 * d["kh"] * ROWW + 128 * d["p"]
        A, B, L = (sGA, c), (sGA, c + 128 * ROWW), (sGL, c); vo = vDGp
    elif k == "GUs":
        srd_ = S_WG if d["mat"] == "G" else S_WU
        A, B, L = (sSA, 0), (sSA, 256 * ROWW), (sSL, 0); vo = vDGs
    elif k == "Dp":
        srd_ = S_WD
        a, l = (sDAo, sDLo) if d["ps"] == 1 else (sDAp, sDLp)
        c = 128 * d["q"]
        A, B, L = (a, c), (a, c + 128 * ROWD), (l, c); vo = vDDp
    else:
        srd_ = S_WD
        A, B, L = (sUA, 0), (sUB, 0), (sUL, 0); vo = vDDs
    groups = []
    for gi, (base, c) in enumerate((A, B, L)):
        st = sT0 + gi
        pre = [f"s_add_u32 s{st}, s{base}, {c}"]
        pre.append(f"s_add_u32 m0, s{sM0A}, {sb + 16384 * gi}" if gi < 2 else f"s_add_u32 m0, s{sM0L}, {sb}")
        loads = [f"buffer_load_dwordx4 v{vo + q}, {SRD(srd_)}, s{st} offen{' offset:%d' % (1024*q) if q else ''} lds" for q in range(4 if gi < 2 else 1)]
        groups.append((pre, loads))
    return groups

def touch_ops(u):
    d = unit_desc(u); k = d["kind"]; ops = []
    def t(srd_, vo, base, c):
        ops.append((f"s_add_u32 s{sTCH}, s{base}, {c}", False))
        ops.append((f"buffer_load_dword a{aDUM}, v{vo}, {SRD(srd_)}, s{sTCH} offen", True))
    if k == "GUp": t(S_WG if d["mat"] == "G" else S_WU, vTG, sTG, 288 * d["kh"] * ROWW + 128 * d["p"])
    elif k == "GUs":
        srd_ = S_WG if d["mat"] == "G" else S_WU
        t(srd_, vTG, sTGs, 0); t(srd_, vTG, sTGs, 288 * ROWW)
    elif k == "Dp": t(S_WD, vTD, sTDo if d["ps"] == 1 else sTDp, 128 * d["q"])
    elif k == "S": t(S_WD, vTD, sTS, 0); t(S_WD, vTD, sTS, 288 * ROWD)
    return ops

def frag_reads(u, n):
    d = unit_desc(u); k = d["kind"]
    tr = "ds_read_b64_tr_b16"
    if k == "GUp":
        ks, hf = n >> 1, n & 1
        return [(0, 2, tr, vWK[hf], 2048 * ks), (2, 2, tr, vWK[hf], 2048 * ks + 512)]
    if k == "GUs": return [(0, 2, tr, vWK[0], 1024 * n), (2, 2, tr, vWK[0], 1024 * n + 256)]
    if k == "Dp":
        ks, hf = n >> 1, n & 1
        return [(0, 2, tr, vWK[hf], 2048 * ks), (2, 2, tr, vWK[hf], 2048 * ks + 1024)]
    if k == "T":
        return [(0, 4, "ds_read_b128", vTR + (n & 3), 4096 * (n >> 2))]
    ks = n % 18; par = n // 18
    R = (256 * par + 16 * ks) if ks < 16 else (512 + 32 * par + 16 * (ks - 16))
    return [(0, 2, tr, vWK[0], 64 * R), (2, 2, tr, vWK[0], 64 * R + 512)]

def unit_patterns(u):
    k = unit_desc(u)["kind"]
    return {"GUp": vPGp, "GUs": (vPGs,), "Dp": vPDp, "S": (vPDs,), "T": ()}[k]

def mfma(u, n):
    d = unit_desc(u); k = d["kind"]; gn = 36 * u + n
    A = ar(aFR + 4 * (gn % 8))
    if k == "GUp":
        ks, hf = n >> 1, n & 1; kk = 18 * d["kh"] + ks
        acc = (vG[d["p"] & 1] if d["mat"] == "G" else vU) + 16 * hf
        B = ar(4 * kk); first = kk == 0
    elif k == "GUs":
        acc = vG[0] if d["mat"] == "G" else vUS
        B = ar(4 * n); first = n == 0
    elif k == "Dp":
        ks, hf = n >> 1, n & 1; acc = DACC[2 * d["q"] + hf]
        if d["ps"] == 1: B = vr(vH + 4 * ks); first = ks == 0
        else: B = ar(aHP + 4 * ks); first = False
    elif k == "T":
        acc = vTACC; first = n == 0
        return f"v_mfma_f32_32x32x16_bf16 {vr(acc,16)}, {ar(4*n)}, {A}, {'0' if first else vr(acc,16)}"
    else:
        acc = DACC[8]; B = vr(vH + 4 * n) if n < 18 else ar(aHP + 4 * (n - 18)); first = n == 0
    return f"v_mfma_f32_32x32x16_bf16 {vr(acc,16)}, {A}, {B}, {'0' if first else vr(acc,16)}"

NLOG2E = "0xbfb8aa3b"
class Op:
    __slots__ = ("text", "cost", "deps", "nb", "tag", "at")
    def __init__(self, text, cost=1, deps=(), nb=0, tag=None):
        self.text, self.cost, self.deps, self.nb, self.tag, self.at = text, cost, list(deps), nb, tag, None
sPKC, sPK1 = 90, 92
_tmp_last = {}
def silu_chain(g0, n, nb):
    ops = []; last = {}
    pk = "pk" in ABL
    for e in range(0, n, 2):
        ta = vTMP + (e % 8); a = g0 + e
        prev = [(_tmp_last[t], 1) for t in (ta, ta + 1) if t in _tmp_last]
        if pk:
            m1 = Op(f"v_pk_mul_f32 v[{ta}:{ta+1}], v[{a}:{a+1}], s[{sPKC}:{sPKC+1}]", 1, prev, nb)
            e0 = Op(f"v_exp_f32 v{ta}, v{ta}", 2, [(m1, 1)], nb); e1 = Op(f"v_exp_f32 v{ta+1}, v{ta+1}", 2, [(m1, 1)], nb)
            ad = Op(f"v_pk_add_f32 v[{ta}:{ta+1}], v[{ta}:{ta+1}], s[{sPK1}:{sPK1+1}]", 1, [(e0, 2), (e1, 2)], nb)
            r0 = Op(f"v_rcp_f32 v{ta}, v{ta}", 2, [(ad, 1)], nb); r1 = Op(f"v_rcp_f32 v{ta+1}, v{ta+1}", 2, [(ad, 1)], nb)
            m2 = Op(f"v_pk_mul_f32 v[{a}:{a+1}], v[{a}:{a+1}], v[{ta}:{ta+1}]", 1, [(r0, 2), (r1, 2)], nb)
            ops += [m1, e0, e1, ad, r0, r1, m2]
            _tmp_last[ta] = m2; _tmp_last[ta + 1] = m2; last[e] = m2; last[e + 1] = m2
        else:
            for z in range(2):
                t = ta + z; g = a + z
                m1 = Op(f"v_mul_f32 v{t}, {NLOG2E}, v{g}", 1, [(_tmp_last[t], 1)] if t in _tmp_last else [], nb)
                ex = Op(f"v_exp_f32 v{t}, v{t}", 2, [(m1, 1)], nb)
                ad = Op(f"v_add_f32 v{t}, 1.0, v{t}", 1, [(ex, 2)], nb)
                rc = Op(f"v_rcp_f32 v{t}, v{t}", 2, [(ad, 1)], nb)
                m2 = Op(f"v_mul_f32 v{g}, v{g}, v{t}", 1, [(rc, 2)], nb)
                ops += [m1, ex, ad, rc, m2]
                _tmp_last[t] = m2; last[e + z] = m2
    return ops, last
def h_chain(g0, u0, tile, last, eoff, nb):
    ops = []; H = vH + 8 * tile; prevc = None
    for q in range(8):
        a = g0 + 2 * q
        if "pk" in ABL:
            h0 = Op(f"v_pk_mul_f32 v[{a}:{a+1}], v[{a}:{a+1}], v[{u0+2*q}:{u0+2*q+1}]", 1, [(last[eoff + 2*q], 1)], nb)
            hs = [h0]
        else:
            hs = [Op(f"v_mul_f32 v{a+z}, v{a+z}, v{u0+2*q+z}", 1, [(last[eoff + 2*q + z], 1)], nb) for z in range(2)]
        c = Op(f"v_cvt_pk_bf16_f32 v{H + q}, v{a}, v{a+1}", 1, [(h, 1) for h in hs] + ([(prevc, 1)] if prevc else []), nb,
               ("h", tile) if q == 7 else None)
        prevc = c
        ops += hs + [c]
    return ops
def h_store(tile, half):
    off = tile * 2048 + half * 1024
    return [f"s_add_u32 s{sHST}, s{sHXo}, {off & ~4095}",
            f"buffer_store_dwordx4 {vr(vH + 8*tile + 4*half)}, v{vL16}, {SRD(S_WS)}, s{sHST} offen offset:{off & 4095} sc1"]
vPST = vMISC
def epi_ops(tile):
    T = DACC[tile]
    return [(f"v_cvt_pk_bf16_f32 v{T + q}, v{T + 2*q}, v{T + 2*q + 1}", 1, ("e", tile) if q == 7 else None) for q in range(8)]
def p_store(tile, half):
    T = DACC[tile]
    if tile < 8: base, off = sPARTp, tile * 2048 + half * 1024
    else: base, off = sPARTs, half * 1024
    fl = "" if "plainst" in ABL else " sc1"
    return [f"s_add_u32 s{sPST}, s{base}, {off & ~4095}",
            f"buffer_store_dwordx4 {vr(T + 4*half)}, v{vPST}, {SRD(S_WS)}, s{sPST} offen offset:{off & 4095}{fl}"]

def stamp(e, idx):
    if not DIAG: return
    e(f"{'s_memtime' if DIAG == 2 else 's_memrealtime'} s[{96 + 2*(idx % 2)}:{97 + 2*(idx % 2)}]")
    e.pending_stamp = idx
def settle(e):
    if not DIAG: return
    idx = getattr(e, "pending_stamp", None)
    if idx is None: return
    e(f"v_writelane_b32 v{vDIAG}, s{96 + 2*(idx % 2)}, {idx}")
    e.pending_stamp = None

def pstamp(e, idx):
    if not DIAG: return
    e("s_memrealtime s[96:97]\ns_waitcnt lgkmcnt(0)")
    e(f"v_writelane_b32 v{vDIAG}, s96, {idx}")
def rowcalc(e, dst, vslot, sgrp, t0=16, t1=17):
    e(f"""
    s_lshl_b32 s{sA}, s{sI}, 5
    v_add_u32 v{t0}, s{sA}, v{vslot}          ; s
    s_cmp_eq_u32 s{sgrp}, 0
    s_cselect_b32 s{sA}, 0, 1024
    s_cmp_eq_u32 s{sgrp}, 3
    s_cselect_b32 s{sA}, 2048, s{sA}         ; base
    s_and_b32 s{sB}, s{sgrp}, 1
    v_sub_u32 v{t1}, s{sA}, v{t0}
    v_add_u32 v{dst}, s{sA}, v{t0}
    s_cmp_eq_u32 s{sB}, 1
    s_cselect_b64 vcc, -1, 0
    s_lshl_b32 s{sC}, s{sgrp}, 10
    s_sub_u32 s{sC}, s{sC}, 1536
    v_cndmask_b32 v{dst}, v{dst}, v{t1}, vcc
    v_mov_b32 v{t1}, s{sC}
    s_cmp_ge_u32 s{sgrp}, 2
    s_cselect_b32 s{sB}, 0, -1
    v_cmp_eq_u32 vcc, s{sB}, v{t0}
    s_nop 1
    v_cndmask_b32 v{dst}, v{dst}, v{t1}, vcc
    """)

def T_dma_addr(e, rowbase_in_tile=0):
    ops = []
    ops += [f"v_lshrrev_b32 v21, 7, v{vL16}",
            f"v_bfe_u32 v22, v{vL16}, 4, 3"]
    for q in range(4):
        ops += [f"v_add_u32 v23, {8*q}, v21", f"v_bfe_u32 v20, v23, 1, 3", f"v_xor_b32 v20, v20, v22",
                f"v_mul_u32_u24 v23, 1152, v23", f"v_lshl_add_u32 v{16+q}, v20, 4, v23"]
        if q: ops.append(f"v_subrev_u32 v{16+q}, {1024*q}, v{16+q}")
    ops += [f"s_lshl_b32 s{sE}, s{sW}, 3", f"v_add_u32 v23, s{sE}, v21", f"v_bfe_u32 v20, v23, 1, 3", f"v_xor_b32 v20, v20, v22",
            f"v_mul_u32_u24 v23, 1152, v23", f"v_lshl_add_u32 v20, v20, 4, v23"]
    return ops
def T_read_addr(slotbase):
    ops = [f"v_bfe_u32 v20, v{vL16}, 4, 5",
           f"v_lshrrev_b32 v21, 9, v{vL16}",
           f"v_lshrrev_b32 v22, 3, v20", f"v_lshlrev_b32 v22, 10, v22", f"v_and_b32 v23, 7, v20",
           f"v_lshl_add_u32 v22, v23, 7, v22", f"v_add_u32 v22, {slotbase}, v22",
           f"v_bfe_u32 v23, v20, 1, 3"]
    for q4 in range(4):
        ops += [f"v_add_u32 v20, {2*q4}, v21", f"v_xor_b32 v20, v20, v23", f"v_lshl_add_u32 v{16+q4}, v20, 4, v22"]
    return ops

def code_prefetch():
    return f"""
    s_getpc_b64 s[{S_T}:{S_T+1}]
    K1_pc:
    s_and_b32 s{S_T+1}, s{S_T+1}, 0xffff
    s_mov_b32 s{S_T+2}, K1_codeend-K1_pc
    s_mov_b32 s{S_T+3}, 0x20000
    s_lshr_b32 s{sA}, s2, 3
    s_mul_i32 s{sA}, s{sA}, {{NL}}
    v_add_u32 v3, s{sA}, v0
    v_lshlrev_b32 v3, 7, v3
    v_mov_b32 v4, 0x7ff00000
    v_cmp_gt_u32 vcc, {{NL}}, v0
    s_nop 1
    v_cndmask_b32 v3, v4, v3, vcc
    buffer_load_dword a{aDUM}, v3, {SRD(S_T)}, 0 offen
    """.replace("{NL}", str(CPF_LINES))
CPF_LINES = 20
PROBE_PTS = []
K2_LABELS = None
def prologue(e):
    e(f"""
    s_cmp_ge_u32 s2, 256
    s_cbranch_scc1 K1_end
    {("s_memtime s[100:101]" if DIAG == 2 else "s_memrealtime s[100:101]") if DIAG else ""}
    s_load_dwordx2 s[{S_X}:{S_X+1}], s[0:1], {KA_AX}
    s_load_dwordx2 s[{S_WG}:{S_WG+1}], s[0:1], {KA_WG}
    s_load_dwordx2 s[{S_WU}:{S_WU+1}], s[0:1], {KA_WU}
    s_load_dwordx2 s[{S_WD}:{S_WD+1}], s[0:1], {KA_WD}
    s_load_dwordx2 s[{S_WS}:{S_WS+1}], s[0:1], {KA_WS}
    s_load_dwordx2 s[{S_DBG}:{S_DBG+1}], s[0:1], {KA_DBG}
    s_load_dwordx2 s[{S_CD}:{S_CD+1}], s[0:1], {KA_CD}
    s_load_dwordx2 s[{S_SD}:{S_SD+1}], s[0:1], {KA_SD}
    s_load_dwordx2 s[{S_GW}:{S_GW+1}], s[0:1], {KA_GW}
    {code_prefetch() if "nocpf" not in ABL else ""}
    v_lshrrev_b32 v2, 6, v0
    v_and_b32 v0, 63, v0
    v_readfirstlane_b32 s{sW}, v2
    v_lshlrev_b32 v{vL16}, 4, v0
    s_and_b32 s{sA}, s2, 1
    s_lshl_b32 s{sA}, s{sA}, 3
    s_lshr_b32 s{sB}, s2, 3
    s_and_b32 s{sC}, s{sB}, 7
    s_add_u32 s{sI}, s{sA}, s{sC}
    s_and_b32 s{sA}, s2, 6
    s_lshl_b32 s{sA}, s{sA}, 1
    s_lshr_b32 s{sB}, s{sB}, 3
    s_add_u32 s{sJ}, s{sA}, s{sB}
    s_and_b32 s{sODD}, s{sJ}, 1
    """)
    if "nocpf" not in ABL: e.vm.append("cpf")
    e("v_lshrrev_b32 v21, 3, v0\nv_and_b32 v22, 7, v0")
    rowcalc(e, 19, 21, sW)
    e(f"""
    s_and_b32 s{sB}, s{sW}, 1
    s_cmp_eq_u32 s{sB}, 1
    s_cselect_b32 s{sB}, -1, 1
    s_mul_i32 s{sB}, s{sB}, {8 * 1152}           ; byte step between the 8-row pieces
    s_lshl_b32 s{sA}, s{sI}, 5
    v_add_u32 v16, s{sA}, v21                    ; s (piece 0)
    s_cmp_eq_u32 s{sW}, 0
    s_cselect_b32 s{sA}, 0, 1024
    s_cmp_eq_u32 s{sW}, 3
    s_cselect_b32 s{sA}, 2048, s{sA}
    v_sub_u32 v17, s{sA}, v16
    v_add_u32 v18, s{sA}, v16
    s_cmp_lt_i32 s{sB}, 0
    s_cselect_b64 vcc, -1, 0
    v_mul_u32_u24 v19, 1152, v19
    v_lshrrev_b32 v20, 1, v21
    v_cndmask_b32 v17, v18, v17, vcc
    v_mul_u32_u24 v17, 1152, v17
    v_xor_b32 v23, v20, v22
    v_lshl_add_u32 v96, v23, 4, v19
    v_xor_b32 v18, 4, v23
    v_add_u32 v17, s{sB}, v17
    v_lshl_add_u32 v97, v18, 4, v17
    v_add_u32 v17, s{sB}, v17
    v_lshl_add_u32 v98, v23, 4, v17
    v_add_u32 v17, s{sB}, v17
    v_lshl_add_u32 v99, v18, 4, v17
    """)
    e(f"""
    s_mul_i32 s{sA}, s{sJ}, 288            ; F0
    s_lshl_b32 s{sB}, s{sODD}, 5
    s_add_u32 s{sA}, s{sA}, s{sB}          ; pairbase
    s_lshl_b32 s{sTG}, s{sA}, 1
    s_mul_i32 s{sB}, s{sW}, {32 * ROWW}
    s_add_u32 s{sGA}, s{sB}, s{sTG}
    s_mul_i32 s{sB}, s{sW}, {8 * ROWW}
    s_add_u32 s{sB}, s{sB}, {256 * ROWW}
    s_add_u32 s{sGL}, s{sB}, s{sTG}
    s_lshl_b32 s{sM0A}, s{sW}, 12
    s_lshl_b32 s{sM0L}, s{sW}, 10
    s_add_u32 s{sM0L}, s{sM0L}, 32768
    ; GU pair dma voffsets
    v_bfe_u32 v17, v0, 2, 1
    v_bfe_u32 v18, v0, 4, 1
    v_xor_b32 v17, v17, v18
    v_lshlrev_b32 v17, 6, v17
    v_and_b32 v18, 3, v0
    v_lshl_add_u32 v17, v18, 4, v17      ; colb
    s_mov_b32 s{sA}, {ROWW}
    v_mul_lo_u32 v18, v21, s{sA}
    v_add_u32 v{vDGp}, v18, v17
    """)
    for q in range(1, 4): e(f"v_add_u32 v{vDGp+q}, {q * (8 * ROWW - 1024)}, v{vDGp}")
    e(f"s_mul_i32 s{sXS}, s{sW}, {XBW}\ns_add_u32 s{sXS}, s{sXS}, {XB0}")
    e(f"""
    s_lshr_b32 s{sA}, s2, 3
    s_and_b32 s{sA}, s{sA}, 7
    s_mul_i32 s{sA}, s{sA}, 36
    s_mul_i32 s{sB}, s{sW}, 9
    s_add_u32 s{sA}, s{sA}, s{sB}
    v_add_u32 v16, s{sA}, v0
    s_mov_b32 s{sA}, {ROWW}
    v_mul_lo_u32 v17, v16, s{sA}
    v_mov_b32 v18, 0x7ff00000
    v_cmp_gt_u32 vcc, 9, v0
    s_nop 1
    v_cndmask_b32 v{vTG}, v18, v17, vcc
    """)
    e("s_waitcnt lgkmcnt(0)")
    if DIAG: e(f"v_mov_b32 v{vDIAG}, 0\nv_writelane_b32 v{vDIAG}, s100, 0")
    pstamp(e, 50)
    for s_, nb in ((S_X, 2048 * ROWD), (S_WG, 576 * ROWW), (S_WU, 576 * ROWW)): srd(e, s_, None, nb)
    def xdma_rot(pos):
        e(f"s_lshr_b32 s{sB}, s2, 6\ns_add_u32 s{sB}, s{sB}, {pos}\ns_cmp_ge_u32 s{sB}, 5\ns_cselect_b32 s{sC}, 5, 0\ns_sub_u32 s{sB}, s{sB}, s{sC}")
        e(f"s_lshl_b32 s{sA}, s{sB}, 7\ns_lshl_b32 s{sB}, s{sB}, 12\ns_add_u32 s{sB}, s{sB}, s{sXS}")
        for q in range(4):
            e(f"s_add_u32 m0, s{sB}, {q * 1024}\ns_nop 0")
            e.vmem(f"buffer_load_dwordx4 v{96+q}, {SRD(S_X)}, s{sA} offen lds", ("x", "A"))
    def udma(u):
        for pre, loads in dma_groups(u):
            for s in pre: e(s)
            e("s_nop 0")
            for s in loads: e.vmem(s, ("u", u))
    NET = next((int(a[2:]) for a in ABL if a.startswith("et")), 0)
    if "notouch" not in ABL:
        for u in range(NET):
            for t, isv in touch_ops(u): (e.vmem(t, "touch") if isv else e(t))
    for pos in range(5): xdma_rot(pos)
    udma(0); udma(1)
    if "notouch" not in ABL and "earlyt" in ABL:
        for u in range(max(NET, 2), PF):
            for t, isv in touch_ops(u): (e.vmem(t, "touch") if isv else e(t))
    pstamp(e, 51)
    e(f"""
    v_lshrrev_b32 v16, 5, v0             ; h
    v_bfe_u32 v17, v0, 4, 1              ; fb
    v_bfe_u32 v18, v0, 2, 2              ; r
    v_and_b32 v19, 3, v0                 ; c4
    v_lshlrev_b32 v20, 5, v17
    v_lshl_add_u32 v20, v19, 3, v20      ; 32 fb + 8 c4
    v_lshrrev_b32 v21, 1, v18
    v_lshlrev_b32 v21, 6, v21            ; 64*sw
    v_xor_b32 v22, 64, v21
    v_lshl_add_u32 v23, v16, 3, v18      ; 8h + r
    v_lshlrev_b32 v2, 7, v23
    v_add3_u32 v{vPGp[0]}, v2, v21, v20
    v_add3_u32 v{vPGp[1]}, v2, v22, v20
    v_and_b32 v16, 31, v0
    v_lshrrev_b32 v17, 5, v0
    v_lshrrev_b32 v18, 3, v16
    v_lshlrev_b32 v18, 10, v18
    v_and_b32 v19, 7, v16
    v_lshl_add_u32 v18, v19, 7, v18
    v_add_u32 v18, s{sXS}, v18
    v_bfe_u32 v19, v16, 1, 3
    """)
    for q4 in range(4):
        e(f"v_add_u32 v20, {2*q4}, v17\nv_xor_b32 v20, v20, v19\nv_lshl_add_u32 v{100+q4}, v20, 4, v18")
    pstamp(e, 52)
    e.wait(vm=("x", "A"))
    pstamp(e, 53)
    for kc in range(5):
        for q4 in range(4):
            e.lds(f"ds_read_b128 {ar(4 * (4*kc + q4))}, v{100+q4} offset:{kc * 4096}", ("xf", 4*kc + q4))
    for q in range(4): e(f"v_mov_b32 v{16+q}, v{96+q}\nv_mov_b32 v{20+q}, v{100+q}")
    e.wait(lg=("xf", 19))
    e(f"s_lshl_b32 s{sXB2}, s{sW}, 13\ns_add_u32 s{sXB2}, s{sXB2}, {3 * SLOT}\ns_lshl_b32 s{sXB3}, s{sW}, 12\ns_add_u32 s{sXB3}, s{sXB3}, {FOLD}")
    e(f"s_sub_u32 s{sA}, s{sXB2}, s{sXS}")
    for q in range(4): e(f"v_add_u32 v{20+q}, s{sA}, v{20+q}")
    stamp(e, 1)

def late_setup():
    L = []
    def a(txt):
        for x in txt.split("\n"):
            x = x.split(";")[0].strip()
            if x: L.append(x)
    for s_, nb in ((S_WD, 4608 * ROWD), (S_WS, WS_BYTES), (S_DBG, 256), (S_CD, 576 * ROWD), (S_SD, 576 * ROWD), (S_GW, 1152)):
        a(f"s_and_b32 s{s_+1}, s{s_+1}, 0xffff\ns_mov_b32 s{s_+2}, {nb}\ns_mov_b32 s{s_+3}, 0x20000")
    a(f"""
    s_lshr_b32 s{sA}, s2, 3
    s_and_b32 s{sA}, s{sA}, 7
    s_mul_i32 s{sA}, s{sA}, 36
    s_mul_i32 s{sB}, s{sW}, 9
    s_add_u32 s{sA}, s{sA}, s{sB}
    v_add_u32 v192, s{sA}, v0
    s_mov_b32 s{sA}, {ROWW}
    v_mul_lo_u32 v193, v192, s{sA}
    v_mul_u32_u24 v194, {ROWD}, v192
    v_mov_b32 v195, 0x7ff00000
    v_cmp_gt_u32 vcc, 9, v0
    s_nop 1
    v_cndmask_b32 v{vTG}, v195, v193, vcc
    v_cndmask_b32 v206, v195, v194, vcc
    """)
    L.append(("s_nop 0", "tg_ready"))
    a(f"""
    s_lshl_b32 s{sA}, s{sI}, 4
    s_add_u32 s{sA}, s{sA}, s{sJ}
    s_xor_b32 s{sD}, s{sA}, 1
    s_and_b32 s{sFoffP}, s{sD}, 63
    s_lshl_b32 s{sFoffP}, s{sFoffP}, 2
    s_lshr_b32 s{sFbitP}, s{sD}, 6
    s_lshl_b32 s{sB}, s{sD}, 7
    s_lshl_b32 s{sC}, s{sW}, 2
    s_add_u32 s{sB}, s{sB}, s{sC}
    s_add_u32 s{sOBp}, s{sB}, {WS_FLAG}
    s_and_b32 s{sB}, s{sA}, 63
    s_lshl_b32 s{sB}, s{sB}, 2
    s_lshr_b32 s{sC}, s{sA}, 6
    s_lshl_b32 s{sC}, 1, s{sC}
    v_mov_b32 v{vMISC}, s{sC}
    v_mov_b32 v{vPOLL}, s{sB}
    v_mov_b32 v{vZERO}, 0
    v_mov_b32 v192, 0x7ffffff0
    s_lshl_b32 s{sB}, s{sA}, 7
    s_add_u32 s{sB}, s{sB}, {WS_FLAG}
    s_lshl_b32 s{sC}, s{sW}, 2
    s_add_u32 s{sC}, s{sC}, s{sB}
    v_mov_b32 v{vOB}, s{sC}
    v_mov_b32 v193, s{sB}
    v_cmp_eq_u32 vcc, 0, v0
    s_lshl_b32 s{sC}, s{sW}, 6
    v_add_u32 v194, s{sC}, v0
    v_cndmask_b32 v{vOB}, v192, v{vOB}, vcc
    v_cmp_eq_u32 vcc, 0, v194
    v_mov_b32 v200, 0
    v_mov_b32 v201, 0
    v_cndmask_b32 v{vPOLL}, v192, v{vPOLL}, vcc
    v_cndmask_b32 v204, v192, v193, vcc
    v_mov_b32 v202, 0
    v_mov_b32 v203, 0
    """)
    L.append(("s_nop 0", "clr_ready"))
    a(f"""
    s_mul_i32 s{sB}, s{sW}, 18432
    s_mul_i32 s{sC}, s{sA}, 73728
    s_add_u32 s{sC}, s{sC}, s{sB}
    s_add_u32 s{sHXo}, s{sC}, {WS_HX}
    s_mul_i32 s{sC}, s{sD}, 73728
    s_add_u32 s{sC}, s{sC}, s{sB}
    s_add_u32 s{sHXp}, s{sC}, {WS_HX}
    s_lshr_b32 s{sB}, s{sI}, 1
    s_mul_i32 s{sB}, s{sB}, {8 * PS}
    s_mul_i32 s{sC}, s{sW}, {2 * PS}
    s_add_u32 s{sB}, s{sB}, s{sC}
    s_lshr_b32 s{sC}, s{sJ}, 1
    s_mul_i32 s{sC}, s{sC}, {18 * 2048}
    s_add_u32 s{sB}, s{sB}, s{sC}
    s_add_u32 s{sB}, s{sB}, {WS_PART}
    s_mul_i32 s{sC}, s{sODD}, {10 * 2048}
    s_add_u32 s{sPARTp}, s{sB}, s{sC}
    s_add_u32 s{sC}, s{sODD}, 8
    s_lshl_b32 s{sC}, s{sC}, 11
    s_add_u32 s{sPARTs}, s{sB}, s{sC}
    s_mul_i32 s{sA}, s{sJ}, 288
    s_lshl_b32 s{sB}, s{sODD}, 5
    s_add_u32 s{sB}, s{sA}, s{sB}
    s_xor_b32 s{sC}, s{sODD}, 1
    s_lshl_b32 s{sC}, s{sC}, 8
    s_add_u32 s{sC}, s{sA}, s{sC}
    s_xor_b32 s{sD}, s{sJ}, 1
    s_mul_i32 s{sD}, s{sD}, 288
    s_lshl_b32 s{sTGs}, s{sC}, 1
    s_mul_i32 s{sE}, s{sW}, {64 * ROWW}
    s_add_u32 s{sSA}, s{sE}, s{sTGs}
    s_mul_i32 s{sE}, s{sW}, {16 * ROWW}
    s_add_u32 s{sE}, s{sE}, {512 * ROWW}
    s_add_u32 s{sSL}, s{sE}, s{sTGs}
    s_mul_i32 s90, s{sODD}, 640
    s_mul_i32 s91, s{sODD}, 576
    s_xor_b32 s92, s{sODD}, 1
    s_lshl_b32 s93, s92, 9
    s_add_u32 s91, s91, s93
    s_mul_i32 s{sE}, s{sA}, {ROWD}
    s_add_u32 s{sTDo}, s{sE}, s90
    s_mul_i32 s{sE}, s{sD}, {ROWD}
    s_add_u32 s{sTDp}, s{sE}, s90
    s_and_b32 s{sE}, s{sJ}, 14
    s_mul_i32 s{sE}, s{sE}, {288 * ROWD}
    s_add_u32 s{sTS}, s{sE}, s91
    s_lshl_b32 s93, s92, 5
    s_add_u32 s93, s{sD}, s93
    s_lshl_b32 s94, s{sODD}, 8
    s_add_u32 s94, s{sD}, s94
    s_lshl_b32 s{sE}, s{sW}, 5
    s_add_u32 s{sF}, s{sB}, s{sE}
    s_mul_i32 s{sF}, s{sF}, {ROWD}
    s_add_u32 s{sDAo}, s{sF}, s90
    s_add_u32 s{sF}, s93, s{sE}
    s_mul_i32 s{sF}, s{sF}, {ROWD}
    s_add_u32 s{sDAp}, s{sF}, s90
    s_lshl_b32 s{sE}, s{sW}, 3
    s_add_u32 s{sF}, s{sC}, s{sE}
    s_mul_i32 s{sF}, s{sF}, {ROWD}
    s_add_u32 s{sDLo}, s{sF}, s90
    s_add_u32 s{sF}, s94, s{sE}
    s_mul_i32 s{sF}, s{sF}, {ROWD}
    s_add_u32 s{sDLp}, s{sF}, s90
    s_lshl_b32 s{sE}, s{sW}, 6
    s_add_u32 s{sF}, s{sB}, s{sE}
    s_mul_i32 s{sF}, s{sF}, {ROWD}
    s_add_u32 s{sUA}, s{sF}, s91
    s_add_u32 s{sF}, s93, s{sE}
    s_mul_i32 s{sF}, s{sF}, {ROWD}
    s_add_u32 s{sUB}, s{sF}, s91
    s_cmp_lt_u32 s{sW}, 2
    s_cselect_b32 s{sF}, s{sC}, s94
    s_and_b32 s{sE}, s{sW}, 1
    s_lshl_b32 s{sE}, s{sE}, 4
    s_add_u32 s{sF}, s{sF}, s{sE}
    s_mul_i32 s{sF}, s{sF}, {ROWD}
    s_add_u32 s{sUL}, s{sF}, s91
    s_cmp_ge_u32 s{sJ}, 9
    s_cselect_b32 s{sCS}, 1, 0
    s_cselect_b32 s{S_T}, s{S_SD}, s{S_CD}
    s_cselect_b32 s{S_T+1}, s{S_SD+1}, s{S_CD+1}
    s_mov_b32 s{S_T+2}, {576 * ROWD}
    s_mov_b32 s{S_T+3}, 0x20000
    s_lshl_b32 s{sB}, s{sCS}, 3
    s_sub_u32 s{sCcol}, s{sJ}, s{sB}
    s_mul_i32 s{sTrow}, s{sCcol}, {32 * ROWD}
    v_lshrrev_b32 v192, 5, v0
    v_bfe_u32 v193, v0, 4, 1
    v_bfe_u32 v194, v0, 2, 2
    v_and_b32 v195, 3, v0
    v_lshlrev_b32 v196, 5, v193
    v_lshl_add_u32 v196, v195, 3, v196
    v_lshrrev_b32 v197, 1, v194
    v_lshlrev_b32 v197, 6, v197
    v_xor_b32 v198, 64, v197
    v_lshl_add_u32 v199, v192, 3, v194
    v_lshl_add_u32 v{vPGs}, v199, 6, v196
    v_lshl_add_u32 v199, v192, 2, v194
    v_lshlrev_b32 v205, 7, v199
    v_add3_u32 v{vPDp[0]}, v205, v197, v196
    v_add3_u32 v{vPDp[1]}, v205, v198, v196
    v_lshl_add_u32 v{vPDs}, v199, 6, v196
    v_bfe_u32 v192, v0, 2, 1
    v_bfe_u32 v193, v0, 4, 1
    v_xor_b32 v192, v192, v193
    v_lshlrev_b32 v192, 6, v192
    v_lshl_add_u32 v192, v195, 4, v192
    v_lshrrev_b32 v193, 3, v0
    v_mul_u32_u24 v193, {ROWD}, v193
    v_add_u32 v{vDDp}, v193, v192
    v_lshrrev_b32 v192, 2, v0
    v_lshlrev_b32 v193, 4, v195
    s_mov_b32 s{sA}, {ROWW}
    v_mul_lo_u32 v194, v192, s{sA}
    v_add_u32 v{vDGs}, v194, v193
    v_mul_u32_u24 v194, {ROWD}, v192
    v_add_u32 v{vDDs}, v194, v193
    """)
    for q in range(1, 4):
        a(f"v_add_u32 v{vDDp+q}, {q * (8 * ROWD - 1024)}, v{vDDp}")
        a(f"v_add_u32 v{vDGs+q}, {q * (16 * ROWW - 1024)}, v{vDGs}")
        a(f"v_add_u32 v{vDDs+q}, {q * (16 * ROWD - 1024)}, v{vDDs}")
    a(f"v_mov_b32 v{vTD}, v206")
    L.append(("s_nop 0", "late_done"))
    return [(x, 1) if isinstance(x, str) else (x[0], 1, x[1]) for x in L]

vR = 24; vO = 56; vP = 64; vM = 68; vFA = 72; vFB = 73; vFC = 74; vFD = 75
def fold_write_ops(acc=vTACC):
    ops = [f"s_lshl_b32 s{sE}, s{sW}, 12", f"s_add_u32 s{sE}, s{sE}, {FOLD}", f"v_add_u32 v21, s{sE}, v{vL16}"]
    w = [f"ds_write_b128 v21, {vr(acc + 4*z)} offset:{1024*z}" for z in range(4)]
    return ops, w
def fold_setup_ops():
    ops = [f"s_lshr_b32 s{sE}, s{sW}, 1", f"s_lshl_b32 s{sE}, s{sE}, 11", f"s_add_u32 s{sE}, s{sE}, {FOLD}",
           f"v_add_u32 v{vFB}, s{sE}, v{vL16}",
           f"s_and_b32 s{sE}, s{sW}, 1", f"s_lshl_b32 s{sF}, s{sCS}, 1", f"s_or_b32 s{sE}, s{sE}, s{sF}"]
    masks = [0b1100, 0b1010, 0b0110, 0b0000]
    neg = {0: (2, 3), 1: (1, 3), 2: (1, 2), 3: ()}
    for g in range(4):
        m = sum(1 << i for i in neg[g])
        ops += [f"s_lshr_b32 s{sF}, {m}, s{sE}", f"s_bitcmp1_b32 s{sF}, 0", f"s_cselect_b32 s{sSG+g}, 0xbf800000, 1.0"]
    ops += [f"s_cmp_eq_u32 s{sE}, 0", f"s_cselect_b32 s{sEA}, 1.0, 0", f"s_cselect_b32 s{sEB}, 1.0, 0",
            f"s_cmp_eq_u32 s{sE}, 3", f"s_cselect_b32 s{sEA}, 0xbf800000, s{sEA}", f"s_cselect_b32 s{sEB}, 1.0, s{sEB}"]
    return ops
def fold_reads():
    return [(f"ds_read_b128 {vr(vR + 8*g + 4*z)}, v{vFB} offset:{4096*g + 1024*z}", ("fr", g, z)) for g in range(4) for z in range(2)]
def fold_math(signs=None):
    if signs is None: signs = [f"s{sSG+g}" for g in range(4)]
    ops = []
    for r in range(8):
        R = [vR + 8*g + r for g in range(4)]
        if r == 0:
            ops += [f"v_mul_f32 v{vFD}, {signs[2]}, v{R[2]}", f"v_fma_f32 v{vFD}, {signs[3]}, v{R[3]}, v{vFD}",
                    f"v_mul_f32 v{vFD}, v{vFC}, v{vFD}",
                    f"v_fma_f32 v{vO}, {signs[0]}, v{R[0]}, v{vFD}", f"v_fma_f32 v{vO}, {signs[1]}, v{R[1]}, v{vO}"]
        else:
            ops += [f"v_mul_f32 v{vO+r}, {signs[0]}, v{R[0]}"] + [f"v_fma_f32 v{vO+r}, {signs[g]}, v{R[g]}, v{vO+r}" for g in range(1, 4)]
    for q in range(4): ops.append(f"v_cvt_pk_bf16_f32 v{vP+q}, v{vO+2*q}, v{vO+2*q+1}")
    ops += ["s_nop 1", f"v_permlane32_swap_b32 v{vP}, v{vP+2}", f"v_permlane32_swap_b32 v{vP+1}, v{vP+3}"]
    return ops
def fold_mask_ops():
    return [f"s_lshr_b32 s{sE}, s{sW}, 1", f"s_or_b32 s{sE}, s{sE}, s{sI}", f"s_cmp_eq_u32 s{sE}, 0", f"s_cselect_b32 s{sE}, 512, 0",
            f"v_cmp_gt_u32 vcc, s{sE}, v{vL16}", f"v_mov_b32 v{vFC}, 1.0", "s_nop 0", f"v_cndmask_b32 v{vFC}, v{vFC}, v{vZERO}, vcc"]
def z_addr_ops():
    return [f"s_and_b32 s{sE}, s{sW}, 1", f"s_lshl_b32 s{sE}, s{sE}, 1", f"s_add_u32 s{sE}, s{sE}, s{sCS}",
            f"s_mul_i32 s{sC}, s{sE}, {18*33*1024}", f"s_lshl_b32 s{sE}, s{sI}, 1", f"s_lshr_b32 s{sF}, s{sW}, 1", f"s_add_u32 s{sE}, s{sE}, s{sF}",
            f"s_lshl_b32 s{sE}, s{sE}, 10", f"s_add_u32 s{sC}, s{sC}, s{sE}", f"s_add_u32 s{sC}, s{sC}, {WS_Z}",
            f"s_mul_i32 s{sE}, s{sCcol}, {33*1024}", f"v_add_u32 v{vFA}, s{sE}, v{vL16}",
            f"v_bfe_u32 v{vM}, v{vL16}, 4, 5", f"s_lshl_b32 s{sE}, s{sCcol}, 5", f"v_add_u32 v{vM}, s{sE}, v{vM}",
            f"v_sub_u32 v{vM+1}, 576, v{vM}", f"v_lshrrev_b32 v{vM+2}, 5, v{vM+1}", f"v_mul_u32_u24 v{vM+2}, {33*1024}, v{vM+2}",
            f"v_and_b32 v{vM+1}, 31, v{vM+1}", f"v_lshlrev_b32 v{vM+1}, 4, v{vM+1}", f"v_and_b32 v{vM+3}, 512, v{vL16}",
            f"v_add3_u32 v{vFB}, v{vM+1}, v{vM+2}, v{vM+3}",
            f"v_cmp_eq_u32 vcc, 0, v{vM}", f"v_mov_b32 v{vM+1}, 0x7ff00000", "s_nop 0", f"v_cndmask_b32 v{vFB}, v{vFB}, v{vM+1}, vcc",
            f"s_cmp_eq_u32 s{sCS}, 1", f"s_cselect_b32 s{sD}, 0x80008000, 0"]
def z_store_ops():
    ops = [(f"buffer_store_dwordx4 {vr(vP)}, v{vFA}, {SRD(S_WS)}, s{sC} offen{ZF}", "vm")]
    ops += [(f"v_xor_b32 v{vM+q}, s{sD}, v{vP+q}", None) for q in range(4)]
    ops += [(f"buffer_store_dwordx4 {vr(vM)}, v{vFB}, {SRD(S_WS)}, s{sC} offen{ZF}", "vm")]
    return ops
def z512_ops(lbl):
    return f"""
    s_lshr_b32 s{sE}, s{sW}, 1
    s_or_b32 s{sE}, s{sE}, s{sI}
    s_cmp_eq_u32 s{sE}, 0
    s_cbranch_scc0 {lbl}
    v_mul_f32 v{vO}, s{sEA}, v{vR + 16}
    v_fma_f32 v{vO}, s{sEB}, v{vR + 24}, v{vO}
    v_cmp_gt_u32 vcc, 512, v{vL16}
    v_mov_b32 v{vO+1}, 0
    s_nop 0
    v_cndmask_b32 v{vO}, v{vO+1}, v{vO}, vcc
    v_cvt_pk_bf16_f32 v{vO+4}, v{vO}, v{vO+1}
    v_mov_b32 v{vO+5}, 0
    v_mov_b32 v{vO+6}, 0
    v_mov_b32 v{vO+7}, 0
    s_add_u32 s{sE}, s{sC}, {32 * 1024}
    buffer_store_dwordx4 {vr(vO+4)}, v{vFA}, {SRD(S_WS)}, s{sE} offen{ZF}
    s_nop 1
    v_xor_b32 v{vO+4}, s{sD}, v{vO+4}
    buffer_store_dwordx4 {vr(vO+4)}, v{vFB}, {SRD(S_WS)}, s{sE} offen{ZF}
    {lbl}:
    """

def gen_main(e):
    def set_work(u):
        pats = unit_patterns(u); sb = (u % 4) * SLOT
        for i, p in enumerate(pats):
            e(f"v_add_u32 v{vWK[i]}, {sb}, v{p}" if sb else f"v_mov_b32 v{vWK[i]}, v{p}")
    def reads(u, n):
        gn = 36 * u + n; b = aFR + 4 * (gn % 8); c = 0
        for (do, nr, ins, va, off) in frag_reads(u, n):
            e.lds(f"{ins} {ar(b + do, nr)}, v{va} offset:{off}", ("f", gn)); c += 1
        return c
    if "pk" in ABL: e(f"s_mov_b32 s{sPKC}, {NLOG2E}\ns_mov_b32 s{sPKC+1}, {NLOG2E}\ns_mov_b32 s{sPK1}, 1.0\ns_mov_b32 s{sPK1+1}, 1.0")
    e.wait(vm=("u", 0)); e("s_barrier")
    if DIAG: e("s_waitcnt lgkmcnt(0)"); settle(e); stamp(e, 2)
    set_work(0)
    for n in range(6): reads(0, n)

    queue = []
    def add(ops, gslot):
        prev = None
        merged = []
        for o in ops:
            if not isinstance(o, Op):
                if isinstance(o, str): o = (o, 1)
                if o[0].startswith("s_cselect") and merged and not isinstance(merged[-1], Op):
                    p_ = merged[-1]
                    assert p_[0].split("\n")[0].startswith(("s_cmp", "s_bitcmp")), p_
                    merged[-1] = (p_[0] + "\n" + o[0], p_[1] + 1) + tuple(p_[2:]); continue
            merged.append(o)
        for o in merged:
            if isinstance(o, Op): queue.append(o); continue
            op = Op(o[0], o[1], [(prev, 1)] if prev else [], gslot, o[2] if len(o) > 2 else None)
            queue.append(op); prev = op
    done = set()
    def ready(o):
        n = len(e.l)
        return all(d.at is not None and n - d.at >= dist for d, dist in o.deps)
    def emit(o):
        queue.remove(o); o.at = len(e.l); e(o.text)
        if o.tag: done.add(o.tag)
        return o.cost
    def fill(gs, room):
        used = 0
        while True:
            for o in queue[:40]:
                if o.nb <= gs and (o.cost <= room - used or (o.cost > 2 and used == 0)) and ready(o):
                    used += emit(o); break
            else: return used
    def force(o):
        for d, dist in o.deps:
            if d.at is None: force(d)
        while not ready(o): e("s_nop 0")
        emit(o)
    def drain_until(tag):
        while tag not in done:
            tgt = next(o for o in queue if o.tag == tag)
            force(tgt)
    def pop(): force(queue[0])
    G = lambda u, n: 36 * u + n
    P_early = []
    MT = []
    add(late_setup(), G(0, 0))
    def xb_dma(u_, kc, slots):
        base = (f"s{sXB2}", (kc - 5) * 4096) if kc < 7 else (f"s{sXB3}", 0)
        P_early.append((u_, slots[0] - 1, f"s_movk_i32 s{sXB}, {128 * kc}", None))
        for q in range(4):
            P_early.append((u_, slots[q] - 1, f"s_add_u32 m0, {base[0]}, {base[1] + q * 1024}", None))
            P_early.append((u_, slots[q], f"buffer_load_dwordx4 v{16+q}, {SRD(S_X)}, s{sXB} offen lds", ("x", kc)))
    xb_dma(0, 5, [1, 2, 3, 4]); xb_dma(0, 6, [5, 6, 7, 8]); xb_dma(0, 7, [9, 10, 11, 12]); xb_dma(1, 8, [7, 8, 9, 10])
    _tmp_last.clear()
    for p in range(4):
        ops, last = silu_chain(vG[p & 1], 32, G(3, 3) if p == 0 else G(4*p + 2, 3)); add(ops, 0)
        add(h_chain(vG[p & 1], vU, 2*p, last, 0, G(4*p + 4, 3)), 0)
        add(h_chain(vG[p & 1] + 16, vU + 16, 2*p + 1, last, 16, G(4*p + 4, 3)), 0)
    ops, last = silu_chain(vG[0], 16, G(17, 3)); add(ops, 0); add(h_chain(vG[0], vUS, 8, last, 0, G(18, 3)), 0)
    deadlines = {G(6, 0): [("h", 0), ("h", 1)], G(10, 0): [("h", 2), ("h", 3)], G(14, 0): [("h", 4), ("h", 5)], G(18, 0): [("h", 6), ("h", 7)], G(18, 32): [("h", 8)]}
    post = {}
    def P(u, n, text, tag=None): post.setdefault((u, n), []).append((text, tag))
    for (u_, n_, t_, g_) in P_early: P(u_, n_, t_, g_)
    pre = {}
    def PRE(u, n, fn): pre.setdefault((u, n), []).append(fn)
    PRE(1, 6, lambda: drain_until("clr_ready"))
    P(1, 30, f"buffer_store_dwordx4 v[200:203], v204, {SRD(S_WS)}, 0 offen sc1", "clr")
    PRE(0, 33, lambda: drain_until("tg_ready"))
    PRE(3, 0, lambda: drain_until("late_done"))
    def sched_dma(u, tgt, slots):
        g = dma_groups(tgt); i = 0
        for pre_, loads in g:
            for s_ in pre_: P(u, slots[i], s_)
            i += 1
            for s_ in loads: P(u, slots[i], s_, ("u", tgt)); i += 1
    STD = [1, 2, 4, 6, 8, 10, 11, 13, 15, 17, 19, 20]
    TWO_A = [1, 2, 3, 4, 5, 7, 8, 9, 10, 11, 13, 14]; TWO_B = [16, 17, 19, 21, 23, 25, 26, 27, 28, 29, 30, 31]
    sched_dma(0, 2, [13, 14, 15, 16, 17, 19, 20, 21, 22, 23, 25, 26])
    if "ramp1" not in ABL and "ramp3" not in ABL:
        sched_dma(2, 3, [0, 1, 2, 3, 4, 5, 6, 7, 9, 10, 11, 12]); sched_dma(2, 4, TWO_B)
        sched_dma(3, 5, TWO_A); sched_dma(3, 6, TWO_B)
        sched_dma(4, 7, STD)
        first_std = 5
    elif "ramp3" in ABL:
        sched_dma(1, 4, [22, 23, 24, 25, 26, 27, 28, 29, 30, 31, 32, 34])
        sched_dma(2, 3, [0, 1, 2, 3, 4, 5, 6, 7, 9, 10, 11, 12])
        sched_dma(3, 5, TWO_A); sched_dma(3, 6, TWO_B)
        first_std = 4
    else:
        sched_dma(1, 4, [12, 13, 15, 17, 19, 21, 22, 24, 26, 27, 28, 29])
        sched_dma(2, 3, [0, 1, 2, 3, 4, 5, 6, 7, 9, 10, 11, 12]); sched_dma(2, 5, TWO_B)
        first_std = 3
    for u in range(first_std, NUNIT - 3):
        if u + 3 == U_T1:
            for k_, s_ in enumerate(T_dma_addr(None)): P(u, k_ // 3, s_)
            sched_dma(u, u + 3, [11, 12, 13, 14, 15, 17, 18, 19, 20, 21, 23, 24])
        else:
            sched_dma(u, u + 3, STD)
    if "notouch" not in ABL:
        NET = next((int(a[2:]) for a in ABL if a.startswith("et")), 0)
        for k_, u in enumerate(range(max(NET, 2), PF) if "earlyt" not in ABL else []):
            for t, isv in touch_ops(u): P(0, 34 if k_ < 2 else 35, t, "touch" if isv else None)
        PFL = next((int(a[3:]) for a in ABL if a.startswith("pfl")), 20)
        cnt_ = {}
        for v in range(PF, NUNIT):
            u = max(1, v - PFL)
            while cnt_.get(u, 0) >= 2: u += 1
            k_ = cnt_.get(u, 0); cnt_[u] = k_ + 1
            sl = (31 + k_) if u in (1, 2) else (22 + 2 * k_)
            for t, isv in touch_ops(v): P(u, sl, t, "touch" if isv else None)
    PRE(1, 0, lambda: e.wait(vm=("x", 7)))
    for k_ in range(8):
        kc = 5 + k_ // 4; q4 = k_ % 4
        P(1, k_ // 4, f"ds_read_b128 {ar(4 * (4*kc + q4))}, v{20+q4} offset:{(kc - 5) * 4096}", ("lds", ("xf", 4*kc + q4)))
    P(1, 2, f"s_sub_u32 s{sXB}, s{sXB3}, s{sXB2}")
    for q4 in range(4): P(1, 2, f"v_add_u32 v{20+q4}, s{sXB}, v{20+q4}")
    for q4 in range(4): P(1, 3, f"ds_read_b128 {ar(4 * (28 + q4))}, v{20+q4}", ("lds", ("xf", 28 + q4)))
    PRE(1, 6, lambda: e.wait(lg=("xf", 31)))
    PRE(2, 8, lambda: e.wait(vm=("x", 8)))
    for q4 in range(4): P(2, 8, f"ds_read_b128 {ar(4 * (32 + q4))}, v{20+q4}", ("lds", ("xf", 32 + q4)))
    P(4, 34, f"buffer_atomic_or v{vMISC}, v{vPOLL}, {SRD(S_DBG)}, 0 offen", "clrbit")
    P(8, 24, f"buffer_load_dword v{vPOLL}, v{vZERO}, {SRD(S_DBG)}, s{sFoffP} offen sc1", "pollc")
    def chk_c():
        e.wait(vm="pollc"); e(f"v_readfirstlane_b32 s{sE}, v{vPOLL}\ns_nop 3\ns_bitcmp1_b32 s{sE}, s{sFbitP}\ns_cbranch_scc0 K1_spinc\nK1_spinc_done:")
    PRE(11, 6, chk_c)
    if "notouch" not in ABL:
        tt = [f"s_lshr_b32 s{sE}, s2, 3", f"s_and_b32 s{sE}, s{sE}, 7", f"s_mul_i32 s{sE}, s{sE}, 36", f"s_mul_i32 s{sC}, s{sW}, 9",
              f"s_add_u32 s{sE}, s{sE}, s{sC}", f"s_lshl_b32 s{sE}, s{sE}, 7", f"v_lshlrev_b32 v{vMISC}, 3, v{vL16}",
              f"v_add_u32 v{vMISC}, s{sE}, v{vMISC}", f"v_cmp_gt_u32 vcc, 144, v{vL16}", f"v_mov_b32 v{vPOLL}, 0x7ff00000", "s_nop 0",
              f"v_cndmask_b32 v{vMISC}, v{vPOLL}, v{vMISC}, vcc"]
        for k_, s_ in enumerate(tt): P(12, 26 + k_ // 2, s_)
        P(13, 27, f"buffer_load_dword a{aDUM}, v{vMISC}, {SRD(S_T)}, s{sTrow} offen", "touch")
        P(16, 26, f"s_cmp_eq_u32 s{sJ}, 0\ns_cselect_b32 s{sTCH}, {8 * 32 * ROWD}, 0\ns_cmp_gt_u32 s{sJ}, 1\ns_cselect_b32 s{sTCH}, 0x7ff00000, s{sTCH}")
        P(16, 27, f"buffer_load_dword a{aDUM}, v{vMISC}, {SRD(S_SD)}, s{sTCH} offen", "touch")
    if "notouch" not in ABL and "nomt" not in ABL:
        mt = [f"s_lshr_b32 s{sE}, s{sW}, 1\ns_lshl_b32 s{sE}, s{sE}, 3\ns_add_u32 s{sE}, s{sE}, {KA_CS}\ns_load_dwordx2 s[{S_DBG}:{S_DBG+1}], s[0:1], s{sE}",
              f"v_lshrrev_b32 v24, 4, v{vL16}", f"v_mul_u32_u24 v25, 57, v24", f"v_lshrrev_b32 v25, 9, v25",
              f"v_mul_u32_u24 v26, 9, v25", f"v_sub_u32 v26, v24, v26", f"s_lshl_b32 s{sE}, s2, 2", f"s_and_b32 s{sC}, s{sW}, 1",
              f"s_lshl_b32 s{sC}, s{sC}, 1", f"s_add_u32 s{sE}, s{sE}, s{sC}", f"v_add_u32 v25, s{sE}, v25", f"v_lshlrev_b32 v25, 12, v25",
              f"v_lshl_add_u32 v25, v26, 7, v25", f"v_mov_b32 v26, 0x7ff00000", f"v_cmp_gt_u32 vcc, 18, v24", "s_nop 1",
              f"v_cndmask_b32 v25, v26, v25, vcc"]
        for k_, s_ in enumerate(mt): P(25, 8 + k_, s_)
        P(25, 34, f"s_and_b32 s{S_DBG+1}, s{S_DBG+1}, 0xffff\ns_mov_b32 s{S_DBG+2}, {2048 * 4096}")
        MT.append(f"buffer_load_dword a{aDUM}, v25, {SRD(S_DBG)}, 0 offen")
    if "nocpf" not in ABL:
        c2 = [f"s_getpc_b64 s[{4}:{5}]\nK1_pc3:\ns_sub_u32 s4, s4, K1_pc3-K1_pc\ns_subb_u32 s5, s5, 0\ns_mov_b32 s{sCP}, s4\ns_and_b32 s{sCP+1}, s5, 0xffff\ns_mov_b32 s{sCP+2}, K1_codeend-K1_pc\ns_mov_b32 s{sCP+3}, 0x20000",
              f"s_lshr_b32 s{sE}, s2, 3", f"s_mul_i32 s{sE}, s{sE}, {CPF_LINES}", f"v_lshrrev_b32 v192, 4, v{vL16}", f"v_add_u32 v193, s{sE}, v192",
              f"v_lshlrev_b32 v193, 7, v193", f"v_mov_b32 v194, 0x7ff00000", f"v_cmp_gt_u32 vcc, {CPF_LINES}, v192", "s_nop 1", f"v_cndmask_b32 v193, v194, v193, vcc"]
        for k_, s_ in enumerate(c2): P(11, 23 + k_, s_)
        P(11, 34, f"s_cmp_eq_u32 s{sW}, 0\ns_cselect_b32 s{sE}, 0, 0x7ff00000")
        P(11, 35, f"buffer_load_dword a{aDUM}, v193, {SRD(sCP)}, s{sE} offen", "touch")
    hs = [(t, h) for t in range(9) for h in range(2)]
    hplan = [(6, 25), (7, 25), (8, 25), (9, 25), (10, 25), (11, 25), (12, 25), (13, 25), (14, 25), (14, 31), (15, 25), (15, 31),
             (17, 23), (17, 29), (17, 34), (18, 23), (18, 33), (19, 4)]
    for (t, h), (u, n) in zip(hs, hplan):
        a, b = h_store(t, h); P(u, n, a); P(u, n, b, ("hst", t))
        need = ("h", t)
        PRE(u, n, (lambda need=need: drain_until(need)))
    def mkflag(tag, val):
        def f():
            e.wait(vm=tag); e(f"v_mov_b32 v{vMISC}, {val}")
            e.vmem(f"buffer_store_dword v{vMISC}, v{vOB}, {SRD(S_WS)}, 0 offen sc1", ("flag", val))
        return f
    PRE(19, 9, mkflag(("hst", 7), 1)); PRE(20, 0, mkflag(("hst", 8), 2))
    def mkchk(tag, val, lbl):
        def f():
            e.wait(vm=tag)
            e(f"v_readfirstlane_b32 s{sE}, v{vPOLL}\ns_nop 3\ns_cmp_ge_u32 s{sE}, {val}\ns_cbranch_scc0 {lbl}\n{lbl}_done:")
        return f
    P(20, 22, f"buffer_load_dword v{vPOLL}, v{vZERO}, {SRD(S_WS)}, s{sOBp} offen sc1", "poll1")
    PRE(21, 12, mkchk("poll1", 1, "K1_spin"))
    P(22, 0, f"buffer_load_dword v{vPOLL}, v{vZERO}, {SRD(S_WS)}, s{sOBp} offen sc1", "poll2")
    PRE(22, 33, mkchk("poll2", 2, "K1_spin2"))
    hpl = [(21, 21 + 2*k_) for k_ in range(8)] + [(22, 21 + 2*k_) for k_ in range(8)] + [(23, 1), (23, 3)]
    for k_, (u, n) in enumerate(hpl):
        P(u, min(n, 35), f"s_add_u32 s{sD}, s{sHXp}, {(k_ * 1024) & ~4095}")
        P(u, min(n, 35), f"buffer_load_dwordx4 {ar(aHP + 4*k_)}, v{vL16}, {SRD(S_WS)}, s{sD} offen offset:{(k_ * 1024) & 4095} sc1", ("hp", k_))
    PRE(U_S, 17, lambda: e.wait(vm=("hp", 7)))
    PRE(U_S, 25, lambda: e.wait(vm=("hp", 15)))
    PRE(U_S, 33, lambda: e.wait(vm=("hp", 17)))
    for k_, s_ in enumerate(T_read_addr((U_T1 % 4) * SLOT)): P(21, 8 + k_ // 2, s_)
    pst = [f"v_bfe_u32 v20, v{vL16}, 4, 1", f"v_mul_u32_u24 v20, {PS}, v20" if PS < (1 << 24) else None,
           f"v_bfe_u32 v21, v{vL16}, 5, 4", f"s_and_b32 s{sE}, s{sI}, 1", f"s_lshl_b32 s{sE}, s{sE}, 4", f"v_add_u32 v21, s{sE}, v21",
           f"v_lshlrev_b32 v21, 4, v21", f"v_and_b32 v22, 512, v{vL16}", f"v_add3_u32 v{vPST}, v20, v21, v22"]
    for k_, s_ in enumerate(pst): P(22, 8 + k_, s_)
    if DIAG and "probe" in ABL:
        def mk(idx):
            def f():
                e(f"s_memrealtime s[96:97]\ns_waitcnt lgkmcnt(0)\nv_writelane_b32 v{vDIAG}, s96, {idx}")
            return f
        pts = PROBE_PTS
        for k_, (u_, n_) in enumerate(pts):
            pre.setdefault((u_, n_), []).insert(0, mk(44 + k_))
    if "nocpf" not in ABL and K2_LABELS:
        k2s, k2e = K2_LABELS
        cp = [f"s_getpc_b64 s[{S_T}:{S_T+1}]\nK1_pc2:\ns_add_u32 s{S_T}, s{S_T}, {k2s}-K1_pc2\ns_addc_u32 s{S_T+1}, s{S_T+1}, 0\ns_and_b32 s{S_T+1}, s{S_T+1}, 0xffff\ns_mov_b32 s{S_T+2}, {k2e}-{k2s}",
              f"s_lshr_b32 s{sE}, s2, 3", f"s_lshl_b32 s{sE}, s{sE}, 9", f"v_lshlrev_b32 v20, 3, v{vL16}", f"v_add_u32 v20, s{sE}, v20",
              f"v_mov_b32 v21, 0x7ff00000", f"v_cmp_gt_u32 vcc, 64, v{vL16}", "s_nop 1", f"v_cndmask_b32 v20, v21, v20, vcc"]
        for k_, s_ in enumerate(cp): P(23, 4 + k_, s_)
        P(23, 24, f"buffer_load_dword a{aDUM}, v20, {SRD(S_T)}, 0 offen", "touch")
    a_, w_ = fold_write_ops()
    def t_write():
        for s_ in a_: e(s_)
        e("s_nop 7")
        for s_ in w_: e.lds(s_, "fw")
    PRE(U_S, 0, t_write)
    fo = []
    fo += fold_setup_ops() + fold_mask_ops()
    add(fo, G(24, 0))
    add([("s_nop 0", 1, "fsetup")], G(24, 0)); queue[-1].deps = [(queue[-2], 1)]
    PRE(24, 9, lambda: drain_until("fsetup"))
    frs = fold_reads()
    for k_, (s_, tg) in enumerate(frs): P(24, 9 + k_, s_, ("lds", tg))
    PRE(24, 19, lambda: e.wait(lg=("fr", 3, 1)))
    add(z_addr_ops(), G(24, 17)); za_last = queue[-1]; add(fold_math(), G(24, 19))
    zs = z_store_ops()
    add([("s_nop 0", 1, "zready")], G(24, 19)); queue[-1].deps = [(queue[-2], 1), (za_last, 1)]
    def z_out():
        drain_until("zready")
        for s_, k_ in zs: (e.vmem(s_, "zst") if k_ else e(s_))
        e(z512_ops("K1_noz512"))
    PRE(25, 2, z_out)
    apx = {}
    def apx_dma():
        appendix_dma(e); apx["vmidx"] = len(e.vm)
    PRE(25, 6, apx_dma)
    for k_, s_ in enumerate(T_read_addr(APX_SLOT * SLOT)): P(26, 1 + k_ // 2, s_)
    if "oldp" in ABL:
        add(epi_ops(8), G(25, 4))
        pplan = {8: [(25, 12), (25, 17)], 0: [(25, 22), (25, 27)], 1: [(25, 32), (26, 6)], 2: [(26, 12), (26, 18)], 3: [(26, 24), (26, 30)],
                 4: [(27, 8), (27, 14)], 5: [(27, 20), (27, 26)]}
    else:
        add(epi_ops(8), G(24, 3))
        pplan = {8: [(24, 24), (24, 31)], 0: [(25, 12), (25, 19)], 1: [(25, 26), (25, 33)], 2: [(26, 8), (26, 16)], 3: [(26, 24), (26, 32)],
                 4: [(27, 8), (27, 15)], 5: [(27, 22), (27, 29)]}
    for q in range(3): add(epi_ops(2*q), G(25 + q, 4)); add(epi_ops(2*q + 1), G(25 + q, 4))
    for t, pl in pplan.items():
        for h, (u, n) in enumerate(pl):
            a, b = p_store(t, h); P(u, n, a); P(u, n, b, ("pst", t))
            PRE(u, n, (lambda t=t: drain_until(("e", t))))

    def slot(u, n, last_path=None):
        gs = G(u, n)
        if gs in deadlines:
            n0 = len(e.l)
            for tg_ in deadlines[gs]: drain_until(tg_)
            if VERBOSE: print("deadline", u, n, "forced", len(e.l) - n0)
        cost = 0
        for fn in pre.get((u, n), []): fn()
        nxt = u + 1 < NUNIT or last_path == "A"
        if n % 3 == 0:
            if n == 33 and nxt:
                nvm = e.vm_count([("u", u + 1)]) if u + 1 < NUNIT else len(e.vm) - apx["vmidx"]
                e(f"s_waitcnt vmcnt({min(nvm, 63)}) lgkmcnt(0)")
                settle(e); e("s_barrier"); stamp(e, 4 + u)
                if u + 1 < NUNIT: set_work(u + 1)
            else:
                e.wait(lg=[("f", gs), ("f", gs + 1), ("f", gs + 2)])
            cost += 1
        e(mfma(u, n))
        if n <= 29: cost += reads(u, n + 6)
        elif n >= 33 and nxt:
            cost += reads(u + 1, 2*(n - 33)); cost += reads(u + 1, 2*(n - 33) + 1)
        for s_, tg in post.get((u, n), []):
            if s_ is None: continue
            if isinstance(tg, tuple) and tg[0] == "lds": e.lds(s_, tg[1])
            elif tg is not None: e.vmem(s_, tg)
            else: e(s_)
            cost += 1
        if n == 32: return
        fill(gs, 5 - cost)
    for u in range(NUNIT):
        for n in range(36):
            if u == NUNIT - 1 and n == 33: break
            slot(u, n)
    e(f"s_cmp_gt_u32 s{sJ}, 2\ns_cbranch_scc1 K1_tailN")
    sv_vm, sv_lg, sv_pend = list(e.vm), list(e.lg), getattr(e, "pending_stamp", None)
    assert not queue, [o.text for o in queue]
    for n in (33, 34, 35): slot(NUNIT - 1, n, "A")
    add(epi_ops(6), G(NUNIT, 3)); add(epi_ops(7), G(NUNIT, 3))
    for t, pl in {6: [(NUNIT, 10), (NUNIT, 16)], 7: [(NUNIT, 22), (NUNIT, 28)]}.items():
        for h, (u, n) in enumerate(pl):
            a, b = p_store(t, h); P(u, n, a); P(u, n, b, ("pst", t))
            PRE(u, n, (lambda t=t: drain_until(("e", t))))
    for n in range(36):
        gs = G(NUNIT, n)
        cost = 0
        for fn in pre.get((NUNIT, n), []): fn()
        if n % 3 == 0: e.wait(lg=[("f", gs), ("f", gs + 1), ("f", gs + 2)]); cost += 1
        e(mfma(NUNIT, n))
        if n <= 29: cost += reads(NUNIT, n + 6)
        for s_, tg in post.get((NUNIT, n), []):
            (e.vmem(s_, tg) if tg is not None else e(s_)); cost += 1
        fill(gs, 5 - cost)
    appendix_post(e)
    e("s_branch K1_fin")
    e("K1_tailN:")
    e.vm, e.lg = sv_vm, sv_lg; e.pending_stamp = sv_pend
    for n in (33, 34, 35): slot(NUNIT - 1, n, "N")
    e("s_nop 7\ns_nop 7")
    for t in (6, 7):
        for o in epi_ops(t): e(o[0])
        for h in range(2):
            a, b = p_store(t, h); e(a); e.vmem(b, ("pst", t))
    for s_ in MT: e.vmem(s_, "touch")

APX_SLOT = 0
def appendix_dma(e):
    sb = APX_SLOT * SLOT
    e(f"s_cmp_gt_u32 s{sJ}, 2\ns_cbranch_scc1 K1_apx_nodma")
    for s_ in T_dma_addr(None): e(s_)
    e(f"""
    s_cmp_eq_u32 s{sJ}, 2
    s_cselect_b32 s{S_T}, s{S_GW}, s{S_SD}
    s_cselect_b32 s{S_T+1}, s{S_GW+1}, s{S_SD+1}
    s_mov_b32 s{sF}, {576 * ROWD}
    s_cselect_b32 s{S_T+2}, 1152, s{sF}
    s_cmp_eq_u32 s{sJ}, 0
    s_cselect_b32 s{sCcol}, 8, 0
    s_mov_b32 s{sCS}, 1
    s_mul_i32 s{sTrow}, s{sCcol}, {32 * ROWD}
    v_add_u32 v21, {288 * ROWD}, v{vL16}
    """)
    u = U_T1
    for gi, (pre_, loads) in enumerate(dma_groups(u, slot=APX_SLOT)):
        for s_ in pre_: e(s_)
        e("s_nop 0")
        for q, s_ in enumerate(loads):
            special = (gi < 2 and q == 0) or gi == 2
            if not special: e(s_); continue
            lbl = f"K1_apx_n{gi}"
            e(f"s_cmp_eq_u32 s{sJ}, 1\ns_cbranch_scc0 {lbl}")
            if gi == 2: e(f"s_cmp_eq_u32 s{sW}, 0\ns_cbranch_scc0 {lbl}")
            st = sT0 + gi
            e(f"s_mov_b64 exec, 0xff\nbuffer_load_dwordx4 v21, {SRD(S_CD)}, s83 offen lds" if False else "")
            e(f"s_mov_b64 exec, 0xff")
            e(f"buffer_load_dwordx4 v21, {SRD(S_CD)}, s{st} offen lds")
            e(f"s_not_b64 exec, exec")
            e(s_)
            e(f"s_mov_b64 exec, -1\ns_branch {lbl}_d\n{lbl}:")
            e(s_)
            e(f"{lbl}_d:")
    e("K1_apx_nodma:")

def appendix_post(e):
    e("s_nop 7\ns_nop 7")
    a_, w_ = fold_write_ops()
    for s_ in a_ + w_: e(s_)
    e(f"s_cmp_eq_u32 s{sJ}, 2\ns_cbranch_scc1 K1_gate")
    e("s_waitcnt lgkmcnt(0)\ns_barrier")
    for s_ in fold_setup_ops() + fold_mask_ops(): e(s_)
    for s_, tg in fold_reads(): e(s_)
    vS = 76; vE = 80
    e(f"s_and_b32 s{sE}, s{sW}, 1")
    neg = {0: (), 1: (1,), 2: (1,), 3: ()}
    e(f"""
    v_bfe_u32 v84, v{vL16}, 4, 5
    s_cmp_eq_u32 s{sJ}, 1
    s_cselect_b32 s{sF}, 0, -1
    v_cmp_eq_u32 vcc, s{sF}, v84
    s_mov_b64 s[98:99], vcc
    """ if False else f"""
    v_bfe_u32 v84, v{vL16}, 4, 5
    s_cmp_eq_u32 s{sJ}, 1
    s_cselect_b32 s{sF}, 0, -1
    v_cmp_eq_u32 vcc, s{sF}, v84
    """)
    for g in range(4):
        if g in (1, 2):
            e(f"s_cmp_eq_u32 s{sE}, 1\ns_cselect_b32 s{sF}, 0xbf800000, 1.0")
        else:
            e(f"s_mov_b32 s{sF}, 1.0")
        e(f"v_mov_b32 v{vS+g}, s{sSG+g}\nv_mov_b32 v85, s{sF}\nv_cndmask_b32 v{vS+g}, v{vS+g}, v85, vcc")
    e(f"s_cmp_eq_u32 s{sE}, 0\ns_cselect_b32 s{sF}, 1.0, 0\nv_mov_b32 v85, s{sF}")
    e(f"v_mov_b32 v{vE}, s{sEA}\nv_mov_b32 v{vE+1}, s{sEB}\nv_cndmask_b32 v{vE}, v{vE}, v85, vcc\nv_cndmask_b32 v{vE+1}, v{vE+1}, v85, vcc")
    e(f"v_mov_b32 v86, 0\nv_mov_b32 v87, -1\nv_cndmask_b32 v86, v86, v87, vcc")
    e("s_waitcnt lgkmcnt(0)")
    for s_ in fold_math([f"v{vS+g}" for g in range(4)]): e(s_)
    for s_ in z_addr_ops(): e(s_)
    e(f"""
    v_and_b32 v88, 512, v{vL16}
    v_add_u32 v88, {9 * 33 * 1024}, v88
    v_mov_b32 v89, 0x7ff00000
    v_cmp_eq_u32 vcc, -1, v86
    s_nop 1
    v_cndmask_b32 v88, v89, v88, vcc
    s_sub_u32 s{sF}, s{sC}, {18 * 33 * 1024}  ; same (p, ks) in the cosine matrix
    """)
    e(f"buffer_store_dwordx4 {vr(vP)}, v88, {SRD(S_WS)}, s{sF} offen{ZF}")
    for q in range(4): e(f"v_cndmask_b32 v{vO+q}, v{vP+q}, v{vZERO}, vcc")
    for q in range(4): e(f"v_cndmask_b32 v{vO+4+q}, v{vZERO}, v{vZERO}, vcc")
    e(f"buffer_store_dwordx4 {vr(vO)}, v{vFA}, {SRD(S_WS)}, s{sC} offen{ZF}")
    e(f"buffer_store_dwordx4 {vr(vO+4)}, v88, {SRD(S_WS)}, s{sC} offen{ZF}")
    for q in range(4): e(f"v_xor_b32 v{vM+q}, s{sD}, v{vP+q}")
    e(f"buffer_store_dwordx4 {vr(vM)}, v{vFB}, {SRD(S_WS)}, s{sC} offen{ZF}")
    e(f"""
    s_lshr_b32 s{sE}, s{sW}, 1
    s_or_b32 s{sE}, s{sE}, s{sI}
    s_cmp_eq_u32 s{sE}, 0
    s_cbranch_scc0 K1_fin
    v_mul_f32 v{vO}, v{vE}, v{vR + 16}
    v_fma_f32 v{vO}, v{vE+1}, v{vR + 24}, v{vO}
    v_cmp_gt_u32 vcc, 512, v{vL16}
    v_mov_b32 v{vO+1}, 0
    s_nop 0
    v_cndmask_b32 v{vO}, v{vO+1}, v{vO}, vcc
    v_cvt_pk_bf16_f32 v{vO+4}, v{vO}, v{vO+1}
    v_mov_b32 v{vO+5}, 0
    v_mov_b32 v{vO+6}, 0
    v_mov_b32 v{vO+7}, 0
    s_add_u32 s{sE}, s{sC}, {32 * 1024}
    s_add_u32 s{sF}, s{sF}, {32 * 1024}
    v_cmp_eq_u32 vcc, -1, v86
    s_nop 1
    v_cndmask_b32 v{vM}, v{vO+4}, v{vZERO}, vcc
    v_mov_b32 v{vM+1}, 0
    v_mov_b32 v{vM+2}, 0
    v_mov_b32 v{vM+3}, 0
    buffer_store_dwordx4 {vr(vO+4)}, v88, {SRD(S_WS)}, s{sF} offen{ZF}
    buffer_store_dwordx4 {vr(vM)}, v{vFA}, {SRD(S_WS)}, s{sE} offen{ZF}
    v_mov_b32 v{vR}, 0
    v_mov_b32 v{vR+1}, 0
    v_mov_b32 v{vR+2}, 0
    v_mov_b32 v{vR+3}, 0
    buffer_store_dwordx4 {vr(vR)}, v88, {SRD(S_WS)}, s{sE} offen{ZF}
    s_nop 1
    v_xor_b32 v{vO+4}, s{sD}, v{vO+4}
    s_nop 0
    buffer_store_dwordx4 {vr(vO+4)}, v{vFB}, {SRD(S_WS)}, s{sE} offen{ZF}
    s_branch K1_fin
    K1_gate:
    """)
    e(f"""
    v_bfe_u32 v18, v{vL16}, 4, 5
    v_lshrrev_b32 v19, 3, v18
    v_lshlrev_b32 v19, 10, v19
    v_bfe_u32 v20, v18, 2, 1
    v_lshl_add_u32 v19, v20, 9, v19
    v_and_b32 v20, 3, v18
    v_lshl_add_u32 v19, v20, 2, v19
    s_lshl_b32 s{sE}, s{sW}, 12
    s_add_u32 s{sE}, s{sE}, {FOLD}
    v_add_u32 v19, s{sE}, v19
    s_waitcnt lgkmcnt(0)
    ds_read_b32 v22, v19
    """)
    rowcalc(e, 19, 18, sW)
    e(f"""
    v_lshlrev_b32 v19, 2, v19
    v_mov_b32 v20, 0x7ff00000
    v_cmp_gt_u32 vcc, 512, v{vL16}
    s_waitcnt lgkmcnt(0)
    v_mul_f32 v21, {NLOG2E}, v22
    v_exp_f32 v21, v21
    v_cndmask_b32 v19, v20, v19, vcc
    v_add_f32 v21, 1.0, v21
    v_rcp_f32 v21, v21
    s_mov_b32 s{sE}, {WS_G}
    s_nop 0
    buffer_store_dword v21, v19, {SRD(S_WS)}, s{sE} offen{ZF}
    """)

def gen_k1(name="k1_kernel"):
    e = Emit()
    e.l.append(kbegin(name).rstrip("\n"))
    prologue(e)
    gen_main(e)
    e("K1_fin:")
    if DIAG: e("s_waitcnt lgkmcnt(0)"); settle(e); stamp(e, 40); e("s_waitcnt lgkmcnt(0)"); settle(e)
    e("s_waitcnt vmcnt(0)")
    if DIAG:
        stamp(e, 41); e("s_waitcnt lgkmcnt(0)"); settle(e)
        e(f"s_lshl_b32 s{sA}, s2, 2\ns_add_u32 s{sA}, s{sA}, s{sW}\ns_lshl_b32 s{sA}, s{sA}, 8\ns_add_u32 s{sA}, s{sA}, {WS_DIAG}")
        e(f"v_lshrrev_b32 v14, 2, v{vL16}")
        e(f"buffer_store_dword v{vDIAG}, v14, {SRD(S_WS)}, s{sA} offen")
        e("s_waitcnt vmcnt(0)")
    e("K1_end:")
    e("s_endpgm")
    for nm, srd_, so, test in (("K1_spin", S_WS, sOBp, f"s_cmp_ge_u32 s{sE}, 1"), ("K1_spin2", S_WS, sOBp, f"s_cmp_ge_u32 s{sE}, 2"), ("K1_spinc", S_DBG, sFoffP, f"s_bitcmp1_b32 s{sE}, s{sFbitP}")):
        e(f"""
        {nm}:
        s_mov_b32 s{sD}, 0
        {nm}_loop:
        s_sleep 4
        buffer_load_dword v{vPOLL}, v{vZERO}, {SRD(srd_)}, s{so} offen sc1
        s_waitcnt vmcnt(0)
        v_readfirstlane_b32 s{sE}, v{vPOLL}
        s_nop 3
        {test}
        s_cbranch_scc1 {nm}_done
        s_add_u32 s{sD}, s{sD}, 1
        s_cmp_lt_u32 s{sD}, 0x40000
        s_cbranch_scc1 {nm}_loop
        s_branch {nm}_done
        """)
    e("K1_codeend:")
    return e.text() + kdesc(name, 256, 252, 102)
if __name__ == "__main__":
    print(gen_k1())
```

```python
from common import *
S_CS, S_SS, S_WS, S_OUT = 8, 12, 16, 20
sW, sP, sFAM, sBETA, sE, sCSW, sGOUT, sS0 = 32, 33, 34, 35, 36, 37, 38, 39
NW = 6
MB = 36864
XCH = 2 * MB
R512 = XCH + 6 * 4096
LDS_BYTES = R512
PS = 8 * 18 * 2048
DIAG = False
ABL = set()
WS_DIAG2 = 84 << 20
def vr(b, n=4): return f"v[{b}:{b+n-1}]"
def SRD(s): return f"s[{s}:{s+3}]"

def OF():
    return ' sc1' if 'osc1' in ABL else (' nt' if 'ont' in ABL else (' sc0 sc1' if 'osys' in ABL else ''))
def gen_k2(name="k2_kernel"):
    e = Emit()
    e.l.append(kbegin(name).rstrip("\n"))
    def st(idx):
        if DIAG: e(f"s_memrealtime s[70:71]\ns_waitcnt lgkmcnt(0)\nv_writelane_b32 v255, s70, {idx}")
    e(f"""
    s_cmp_ge_u32 s2, 198
    s_cbranch_scc1 K2_end
    s_load_dwordx2 s[{S_CS}:{S_CS+1}], s[0:1], {KA_CS}
    s_load_dwordx2 s[{S_SS}:{S_SS+1}], s[0:1], {KA_SS}
    s_load_dwordx2 s[{S_WS}:{S_WS+1}], s[0:1], {KA_WS}
    s_load_dwordx2 s[{S_OUT}:{S_OUT+1}], s[0:1], {KA_OUT}
    s_getpc_b64 s[24:25]
    K2_pc:
    s_and_b32 s25, s25, 0xffff
    s_mov_b32 s26, K2_codeend-K2_pc
    s_mov_b32 s27, 0x20000
    s_lshr_b32 s40, s2, 3
    s_lshl_b32 s40, s40, 2
    v_add_u32 v3, s40, v0
    v_lshlrev_b32 v3, 7, v3
    v_mov_b32 v4, 0x7ff00000
    v_cmp_gt_u32 vcc, 4, v0
    s_nop 1
    v_cndmask_b32 v3, v4, v3, vcc
    buffer_load_dword v252, v3, s[24:27], 0 offen
    v_lshrrev_b32 v2, 6, v0
    v_and_b32 v0, 63, v0
    v_readfirstlane_b32 s{sW}, v2
    v_lshlrev_b32 v1, 4, v0
    s_and_b32 s{sP}, s2, 1
    s_bfe_u32 s40, s2, 0x10001           ; eh
    s_bfe_u32 s{sFAM}, s2, 0x10002
    s_lshr_b32 s41, s2, 3                ; q
    s_and_b32 s{sBETA}, s41, 7
    s_lshr_b32 s41, s41, 3               ; 0..2
    s_mul_i32 s40, s40, 3
    s_add_u32 s40, s40, s41              ; E group
    s_sub_u32 s42, s2, 192
    s_cmp_ge_u32 s2, 192
    s_cselect_b32 s40, s42, s40
    s_cselect_b32 s{sP}, 0, s{sP}
    s_cselect_b32 s{sBETA}, 0, s{sBETA}
    s_cselect_b32 s{sFAM}, 2, s{sFAM}
    s_mul_i32 s40, s40, 3
    s_lshr_b32 s41, s{sW}, 1
    s_add_u32 s{sE}, s40, s41            ; E
    s_and_b32 s{sCSW}, s{sW}, 1          ; cs
    s_sub_u32 s41, 3, s{sFAM}
    s_cmp_eq_u32 s{sCSW}, 0
    s_cselect_b32 s{sGOUT}, s{sFAM}, s41
    s_add_u32 s41, s{sCSW}, 2
    s_cmp_eq_u32 s{sFAM}, 2
    s_cselect_b32 s{sGOUT}, s41, s{sGOUT}
    s_lshl_b32 s{sS0}, s{sBETA}, 6
    s_add_u32 s{sS0}, s{sS0}, s{sP}      ; 64 beta + p
    """)
    if DIAG: e("v_mov_b32 v255, 0"); st(0)
    e("v_lshrrev_b32 v3, 3, v0\nv_and_b32 v4, 7, v0")
    e(f"s_cmp_eq_u32 s{sFAM}, 1\ns_cselect_b32 s42, 1024, 0\ns_cselect_b32 s43, -1, 1")
    e(f"s_cmp_eq_u32 s{sFAM}, 2\ns_cselect_b32 s42, 512, s42\ns_cselect_b32 s43, 0, s43")
    for q in range(4):
        e(f"""
        v_add_u32 v5, {8*q}, v3
        v_lshl_add_u32 v6, v5, 1, s{sS0}
        v_mul_lo_u32 v6, v6, s43
        v_add_u32 v6, s42, v6
        v_lshlrev_b32 v6, 12, v6
        v_bfe_u32 v7, v5, 1, 3
        v_xor_b32 v7, v7, v4
        v_lshl_add_u32 v{10+q}, v7, 4, v6
        """)
    e("s_waitcnt lgkmcnt(0)")
    st(1)
    for s_, nb in ((S_CS, 2048 * 4096), (S_SS, 2048 * 4096), (S_WS, WS_BYTES), (S_OUT, 2048 * 1152)): srd(e, s_, None, nb)
    vZ = 120; acc = 24; accC = 40; vP = 56; fb = 16
    vROW = 15; vGT = 14
    e(f"""
    s_lshl_b32 s49, s{sBETA}, 2
    s_add_u32 s49, s49, s{sGOUT}
    s_lshl_b32 s49, s49, 1
    s_add_u32 s49, s49, s{sP}
    s_mul_i32 s49, s49, {PS}
    s_lshl_b32 s50, s{sE}, 11
    s_add_u32 s49, s49, s50
    s_add_u32 s49, s49, {WS_PART}
    """)
    if "lat" in ABL:
        e(f"s_memrealtime s[70:71]\ns_waitcnt lgkmcnt(0)\ns_mov_b32 s72, s70")
        e(f"buffer_load_dwordx4 {vr(vP)}, v1, {SRD(S_WS)}, s49 offen\ns_waitcnt vmcnt(0)")
        e(f"s_memrealtime s[70:71]\ns_waitcnt lgkmcnt(0)\ns_sub_u32 s73, s70, s72\nv_writelane_b32 v255, s73, 10\ns_mov_b32 s72, s70")
        e(f"s_lshl_b32 s57, s{sP}, 1\ns_add_u32 s57, s57, s{sCSW}\ns_mul_i32 s57, s57, 18\ns_add_u32 s57, s57, s{sE}\ns_mul_i32 s57, s57, {33*1024}\ns_add_u32 s57, s57, {WS_Z}")
        e(f"buffer_load_dwordx4 {vr(vP)}, v1, {SRD(S_WS)}, s57 offen\ns_waitcnt vmcnt(0)")
        e(f"s_memrealtime s[70:71]\ns_waitcnt lgkmcnt(0)\ns_sub_u32 s73, s70, s72\nv_writelane_b32 v255, s73, 11\ns_mov_b32 s72, s70")
        e(f"buffer_load_dwordx4 {vr(vP)}, v10, {SRD(S_CS)}, 0 offen\ns_waitcnt vmcnt(0)")
        e(f"s_memrealtime s[70:71]\ns_waitcnt lgkmcnt(0)\ns_sub_u32 s73, s70, s72\nv_writelane_b32 v255, s73, 12\ns_mov_b32 s72, s70")
        e(f"buffer_load_dwordx4 {vr(vP)}, v1, {SRD(S_WS)}, s49 offen offset:1024\ns_waitcnt vmcnt(0)")
        e(f"s_memrealtime s[70:71]\ns_waitcnt lgkmcnt(0)\ns_sub_u32 s73, s70, s72\nv_writelane_b32 v255, s73, 13\ns_mov_b32 s72, s70")
    def pload(k_):
        jp, h = k_ >> 1, k_ & 1
        if h == 0: e(f"s_add_u32 s65, s49, {jp * 18 * 2048}")
        e.vmem(f"buffer_load_dwordx4 {vr(vP + 8*jp + 4*h)}, v1, {SRD(S_WS)}, s65 offen offset:{1024*h}", ("part", k_))
    e(f"""
    v_and_b32 v5, 31, v0
    v_lshl_add_u32 v8, v5, 1, s{sS0}     ; s
    s_cmp_eq_u32 s{sGOUT}, 0
    s_cselect_b32 s60, 0, 1024
    s_cmp_eq_u32 s{sGOUT}, 3
    s_cselect_b32 s60, 2048, s60
    s_and_b32 s61, s{sGOUT}, 1
    v_sub_u32 v9, s60, v8
    v_add_u32 v{vROW}, s60, v8
    s_cmp_eq_u32 s61, 1
    s_cselect_b64 vcc, -1, 0
    s_lshl_b32 s62, s{sGOUT}, 10
    s_sub_u32 s62, s62, 1536
    v_cndmask_b32 v{vROW}, v{vROW}, v9, vcc
    v_mov_b32 v9, s62
    s_cmp_ge_u32 s{sGOUT}, 2
    s_cselect_b32 s61, 0, -1
    v_cmp_eq_u32 vcc, s61, v8
    s_nop 1
    v_cndmask_b32 v{vROW}, v{vROW}, v9, vcc
    v_lshlrev_b32 v2, 2, v{vROW}
    s_mov_b32 s51, {WS_G}
    """)
    e.vmem(f"buffer_load_dword v{vGT}, v2, {SRD(S_WS)}, s51 offen", "g")
    e(f"s_mul_i32 s52, s{sW}, 3\ns_lshr_b32 s64, s2, 6")
    for gi in range(3 if "nom" not in ABL else 1):
        e(f"""
        s_add_u32 s53, s64, {gi}
        s_cmp_ge_u32 s53, 3
        s_cselect_b32 s54, 3, 0
        s_sub_u32 s53, s53, s54
        s_add_u32 s53, s52, s53
        s_cmp_ge_u32 s53, 9
        s_cselect_b32 s54, 9, 0
        s_sub_u32 s54, s53, s54
        s_lshl_b32 s55, s54, 7
        s_lshl_b32 s56, s53, 12
        s_cmp_ge_u32 s53, 9
        s_cbranch_scc1 K2_ss{gi}
        """)
        for q in range(4):
            e(f"s_add_u32 m0, s56, {1024*q}\ns_nop 0\nbuffer_load_dwordx4 v{10+q}, {SRD(S_CS)}, s55 offen lds")
        e(f"s_branch K2_dn{gi}\nK2_ss{gi}:")
        for q in range(4):
            e(f"s_add_u32 m0, s56, {1024*q}\ns_nop 0\nbuffer_load_dwordx4 v{10+q}, {SRD(S_SS)}, s55 offen lds")
        e(f"K2_dn{gi}:")
        for q in range(4): e.vm.append("m")
    e(f"""
    s_lshl_b32 s57, s{sP}, 1
    s_add_u32 s57, s57, s{sCSW}
    s_mul_i32 s57, s57, 18
    s_add_u32 s57, s57, s{sE}
    s_mul_i32 s57, s57, {33*1024}
    s_add_u32 s57, s57, {WS_Z}
    """)
    def zload(n):
        if n == 32: e(f"s_add_u32 s58, s57, {32 * 1024}")
        elif n % 4 == 0:
            e(f"s_add_u32 s58, s{sBETA}, {n // 4}\ns_and_b32 s58, s58, 7\ns_lshl_b32 s58, s58, 12\ns_add_u32 s58, s58, s57")
        if "noz" in ABL and n > 0: e.vm.append(("z", n)); return
        e.vmem(f"buffer_load_dwordx4 {vr(vZ + 4*n)}, v1, {SRD(S_WS)}, s58 offen offset:{(n % 4) * 1024 if n < 32 else 0}", ("z", n))
    ZPRE = 16
    NP0 = next((int(a[2:]) for a in ABL if a.startswith("np")), 0)
    for k_ in range(NP0): pload(k_)
    for n in range(ZPRE): zload(n)
    e("""
    v_lshrrev_b32 v6, 5, v0
    v_lshrrev_b32 v7, 3, v5
    v_lshlrev_b32 v7, 10, v7
    v_and_b32 v8, 7, v5
    v_lshl_add_u32 v7, v8, 7, v7
    v_bfe_u32 v8, v5, 1, 3
    """)
    e(f"s_mul_i32 s59, s{sCSW}, {MB}\nv_add_u32 v7, s59, v7")
    for q4 in range(4):
        e(f"v_add_u32 v9, {2*q4}, v6\nv_xor_b32 v9, v9, v8\nv_lshl_add_u32 v{10+q4}, v9, 4, v7")
    st(2)
    sums = []
    for q in range(8):
        need = 2 + (q >> 2)
        sums += [(t_, need) for t_ in (f"v_lshlrev_b32 v2, 16, v{vP + q}", f"v_and_b32 v3, 0xffff0000, v{vP + q}",
                 f"v_lshlrev_b32 v8, 16, v{vP + 8 + q}", f"v_and_b32 v252, 0xffff0000, v{vP + 8 + q}",
                 f"v_add_f32 v{vP + q}, v2, v8", f"v_add_f32 v{vP + 8 + q}, v3, v252")]
    for jp in range(2, 8):
        for q in range(8):
            src = vP + 8 * jp + q
            sums += [(t_, 2 * jp + (q >> 2)) for t_ in (f"v_lshlrev_b32 v2, 16, v{src}", f"v_and_b32 v3, 0xffff0000, v{src}",
                     f"v_add_f32 v{vP + q}, v{vP + q}, v2", f"v_add_f32 v{vP + 8 + q}, v{vP + 8 + q}, v3")]
    BS = lambda r: vP + (r >> 1) + 8 * (r & 1)
    e.wait(vm="m"); e("s_barrier")
    st(3)
    def gemm(accr, rd, wait_z):
        rd(0); rd(1)
        for n in range(33):
            if n + 2 < 33: rd(n + 2)
            if wait_z: e.wait(vm=("z", n), lg=("b", n))
            else: e.wait(lg=("b", n))
            e(f"v_mfma_f32_32x32x16_bf16 {vr(accr,16)}, {vr(vZ + 4*n)}, {vr(FB(n))}, {'0' if n == 0 else vr(accr,16)}")
            if wait_z and n + ZPRE < 33: zload(n + ZPRE)
            if (n % 2 == 1 or "pev" in ABL) and prest: pload(prest.pop(0))
            if n >= 18:
                for _ in range(8):
                    if sums and sums[0][1] < NP0: e(sums.pop(0)[0])
    FB = lambda n: [16, 20, 4][n % 3]
    def rdM(n):
        if n < 32 and n % 4 == 0:
            e(f"s_add_u32 s63, s{sBETA}, {n // 4}\ns_and_b32 s63, s63, 7\ns_lshl_b32 s63, s63, 12")
        if n < 32:
            e(f"v_add_u32 v9, s63, v{10 + (n & 3)}")
            e.lds(f"ds_read_b128 {vr(FB(n))}, v9", ("b", n))
        else:
            e.lds(f"ds_read_b128 {vr(FB(n))}, v{10} offset:{8 * 4096}", ("b", n))
    prest = list(range(NP0, 16))
    gemm(acc, rdM, True)
    while prest: pload(prest.pop(0))
    st(4)
    e(f"""
    s_nop 7
    s_nop 7
    s_lshl_b32 s45, s{sW}, 12
    s_add_u32 s45, s45, {XCH}
    v_add_u32 v2, s45, v1
    s_xor_b32 s46, s{sW}, 1
    s_lshl_b32 s46, s46, 12
    s_add_u32 s46, s46, {XCH}
    v_add_u32 v3, s46, v1
    """)
    for z in range(4): e(f"ds_write_b128 v2, {vr(acc + 4*z)} offset:{1024*z}")
    e("s_waitcnt lgkmcnt(0)\ns_barrier")
    sib = vZ
    for z in range(4): e(f"ds_read_b128 {vr(sib + 4*z)}, v3 offset:{1024*z}")
    e.wait(vm=[("part", 15), "g"])
    while sums: e(sums.pop(0)[0])
    st(5)
    e("s_waitcnt lgkmcnt(0)")
    e(f"s_cmp_eq_u32 s{sCSW}, 0\ns_cselect_b32 s45, 1.0, 0xbf800000")
    for r in range(16): e(f"v_fma_f32 v{acc + r}, s45, v{acc + r}, v{sib + r}")
    for r in range(16):
        e(f"v_sub_f32 v{acc + r}, v{acc + r}, v{BS(r)}")
        e(f"v_fma_f32 v{acc + r}, v{vGT}, v{acc + r}, v{BS(r)}")
    for q in range(8): e(f"v_cvt_pk_bf16_f32 v{vP + q}, v{acc + 2*q}, v{acc + 2*q + 1}")
    e("s_nop 1")
    for z in range(2):
        e(f"v_permlane32_swap_b32 v{vP + 4*z}, v{vP + 2 + 4*z}")
        e(f"v_permlane32_swap_b32 v{vP + 1 + 4*z}, v{vP + 3 + 4*z}")
    e(f"""
    v_mul_u32_u24 v2, 1152, v{vROW}
    v_lshrrev_b32 v6, 5, v0
    v_lshl_add_u32 v2, v6, 4, v2
    v_and_b32 v3, 31, v0
    v_mov_b32 v4, 0x7ff00000
    s_or_b32 s44, s{sBETA}, s{sP}
    s_cmp_ge_u32 s{sGOUT}, 2
    s_cselect_b32 s45, s44, 1
    s_cmp_eq_u32 s45, 0
    s_cbranch_scc0 K2_st
    s_cmp_eq_u32 s{sFAM}, 2
    s_cbranch_scc1 K2_onlyc0
    v_cmp_eq_u32 vcc, 0, v3
    s_nop 1
    v_cndmask_b32 v2, v2, v4, vcc
    s_branch K2_st
    K2_onlyc0:
    v_cmp_eq_u32 vcc, 0, v3
    s_nop 1
    v_cndmask_b32 v2, v4, v2, vcc
    K2_st:
    s_lshl_b32 s59, s{sE}, 6
    buffer_store_dwordx4 {vr(vP)}, v2, {SRD(S_OUT)}, s59 offen{OF()}
    buffer_store_dwordx4 {vr(vP + 4)}, v2, {SRD(S_OUT)}, s59 offen offset:32{OF()}
    """)
    if DIAG:
        e("s_waitcnt vmcnt(0)"); st(6)
        e(f"s_mul_i32 s45, s2, 6\ns_add_u32 s45, s45, s{sW}\ns_lshl_b32 s45, s45, 8\ns_add_u32 s45, s45, {WS_DIAG2}")
        e(f"v_lshlrev_b32 v2, 2, v0\nbuffer_store_dword v255, v2, {SRD(S_WS)}, s45 offen")
    e("K2_end:\ns_endpgm\nK2_codeend:")
    return e.text() + kdesc(name, 256, 0, 80)
if __name__ == "__main__":
    print(gen_k2())
```

```python
from common import *

ROWW = 9216; ROWD = 1152; SLOT = 36864
LDS_BYTES = 163840
XB0 = 2 * SLOT; XBW = 20480
FOLD = 4 * SLOT
NUNIT = 28
U_T1 = 22; U_S = 23
DIAG = False
VERBOSE = False
ZF = ' sc1'
ABL = set()
WS_DIAG = 80 << 20
PF = 6
S_WG, S_WU, S_WD, S_X, S_WS, S_DBG, S_T, S_CD, S_GW, S_SD = 8, 12, 16, 20, 24, 28, 32, 36, 40, 44
sW, sI, sJ, sODD = 48, 49, 50, 51
sGA, sGL, sSA, sSL = 52, 53, 54, 55
sDAo, sDLo, sDAp, sDLp = 56, 57, 58, 59
sUA, sUB, sUL = 60, 61, 62
sM0A, sM0L = 63, 64
sT0 = 65
sHXo, sHXp, sPARTp, sPARTs = 68, 69, 70, 71
sFoffP, sFbitP, sOBp = 72, 73, 74
sTG, sTGs, sTDo, sTDp, sTS = 75, 76, 77, 78, 79
sTrow, sCS, sCcol = 80, 81, 82
sA, sB, sC, sD, sE, sF = 84, 85, 86, 87, 88, 89
sSG = 90
sEA, sEB = 94, 95
sCP = 20
sXS = 3
sXB2, sXB3 = 83, 95
sXB, sTCH, sHST, sPST = 4, 5, 6, 7
vTD = 0; vL16 = 1; vWK = (2, 3)
vPGp = (4, 5); vPGs = 6; vPDp = (7, 8); vPDs = 9
vPOLL = 10; vZERO = 11; vOB = 12; vMISC = 13; vTG = 14; vDIAG = 15
vTMP = 16
vH = 24
vG = (96, 128); vU = 160; vUS = 192
DACC = [128, 144, 160, 176, 208, 224, 96, 112, 192]
vTACC = 192
vDGp, vDGs, vDDp, vDDs = 240, 244, 248, 252
aFR = 144; aHP = 176; aDUM = 248
PS = 8 * 18 * 2048
def vr(b, n=4): return f"v[{b}:{b+n-1}]"
def ar(b, n=4): return f"a[{b}:{b+n-1}]"
def SRD(s): return f"s[{s}:{s+3}]"

def unit_desc(u):
    if u < 4: return dict(kind="GUp", mat="GU"[u & 1], p=0, kh=u >> 1)
    if u < 16:
        p, r = divmod(u, 4)
        return dict(kind="GUp", mat="G" if r < 2 else "U", p=p, kh=r & 1)
    if u == 16: return dict(kind="GUs", mat="G")
    if u == 17: return dict(kind="GUs", mat="U")
    if u < 22: return dict(kind="Dp", ps=1, q=u - 18)
    if u == U_T1: return dict(kind="T")
    if u == U_S: return dict(kind="S")
    if u == NUNIT: return dict(kind="T")
    return dict(kind="Dp", ps=2, q=u - 24)

vTD_T = 16
vTR = 16

def dma_groups(u, slot=None):
    d = unit_desc(u); sb = (u % 4) * SLOT if slot is None else slot * SLOT
    k = d["kind"]
    if k == "T":
        g = []
        g.append(([f"s_lshl_b32 s{sT0}, s{sW}, 7", f"s_add_u32 s{sT0}, s{sT0}, s{sTrow}", f"s_add_u32 m0, s{sM0A}, {sb}"],
                  [f"buffer_load_dwordx4 v{vTD_T+q}, {SRD(S_T)}, s{sT0} offen{' offset:%d' % (1024*q) if q else ''} lds" for q in range(4)]))
        g.append(([f"s_add_u32 s{sT0+1}, s{sT0}, 512", f"s_add_u32 m0, s{sM0A}, {sb + 16384}"],
                  [f"buffer_load_dwordx4 v{vTD_T+q}, {SRD(S_T)}, s{sT0+1} offen{' offset:%d' % (1024*q) if q else ''} lds" for q in range(4)]))
        g.append(([f"s_add_u32 s{sT0+2}, s{sTrow}, 1024", f"s_add_u32 m0, s{sM0L}, {sb}"],
                  [f"buffer_load_dwordx4 v{vTD_T+4}, {SRD(S_T)}, s{sT0+2} offen lds"]))
        return g
    if k == "GUp":
        srd_ = S_WG if d["mat"] == "G" else S_WU
        c = 288 * d["kh"] * ROWW + 128 * d["p"]
        A, B, L = (sGA, c), (sGA, c + 128 * ROWW), (sGL, c); vo = vDGp
    elif k == "GUs":
        srd_ = S_WG if d["mat"] == "G" else S_WU
        A, B, L = (sSA, 0), (sSA, 256 * ROWW), (sSL, 0); vo = vDGs
    elif k == "Dp":
        srd_ = S_WD
        a, l = (sDAo, sDLo) if d["ps"] == 1 else (sDAp, sDLp)
        c = 128 * d["q"]
        A, B, L = (a, c), (a, c + 128 * ROWD), (l, c); vo = vDDp
    else:
        srd_ = S_WD
        A, B, L = (sUA, 0), (sUB, 0), (sUL, 0); vo = vDDs
    groups = []
    for gi, (base, c) in enumerate((A, B, L)):
        st = sT0 + gi
        pre = [f"s_add_u32 s{st}, s{base}, {c}"]
        pre.append(f"s_add_u32 m0, s{sM0A}, {sb + 16384 * gi}" if gi < 2 else f"s_add_u32 m0, s{sM0L}, {sb}")
        loads = [f"buffer_load_dwordx4 v{vo + q}, {SRD(srd_)}, s{st} offen{' offset:%d' % (1024*q) if q else ''} lds" for q in range(4 if gi < 2 else 1)]
        groups.append((pre, loads))
    return groups

def touch_ops(u):
    d = unit_desc(u); k = d["kind"]; ops = []
    def t(srd_, vo, base, c):
        ops.append((f"s_add_u32 s{sTCH}, s{base}, {c}", False))
        ops.append((f"buffer_load_dword a{aDUM}, v{vo}, {SRD(srd_)}, s{sTCH} offen", True))
    if k == "GUp": t(S_WG if d["mat"] == "G" else S_WU, vTG, sTG, 288 * d["kh"] * ROWW + 128 * d["p"])
    elif k == "GUs":
        srd_ = S_WG if d["mat"] == "G" else S_WU
        t(srd_, vTG, sTGs, 0); t(srd_, vTG, sTGs, 288 * ROWW)
    elif k == "Dp": t(S_WD, vTD, sTDo if d["ps"] == 1 else sTDp, 128 * d["q"])
    elif k == "S": t(S_WD, vTD, sTS, 0); t(S_WD, vTD, sTS, 288 * ROWD)
    return ops

def frag_reads(u, n):
    d = unit_desc(u); k = d["kind"]
    tr = "ds_read_b64_tr_b16"
    if k == "GUp":
        ks, hf = n >> 1, n & 1
        return [(0, 2, tr, vWK[hf], 2048 * ks), (2, 2, tr, vWK[hf], 2048 * ks + 512)]
    if k == "GUs": return [(0, 2, tr, vWK[0], 1024 * n), (2, 2, tr, vWK[0], 1024 * n + 256)]
    if k == "Dp":
        ks, hf = n >> 1, n & 1
        return [(0, 2, tr, vWK[hf], 2048 * ks), (2, 2, tr, vWK[hf], 2048 * ks + 1024)]
    if k == "T":
        return [(0, 4, "ds_read_b128", vTR + (n & 3), 4096 * (n >> 2))]
    ks = n % 18; par = n // 18
    R = (256 * par + 16 * ks) if ks < 16 else (512 + 32 * par + 16 * (ks - 16))
    return [(0, 2, tr, vWK[0], 64 * R), (2, 2, tr, vWK[0], 64 * R + 512)]

def unit_patterns(u):
    k = unit_desc(u)["kind"]
    return {"GUp": vPGp, "GUs": (vPGs,), "Dp": vPDp, "S": (vPDs,), "T": ()}[k]

def mfma(u, n):
    d = unit_desc(u); k = d["kind"]; gn = 36 * u + n
    A = ar(aFR + 4 * (gn % 8))
    if k == "GUp":
        ks, hf = n >> 1, n & 1; kk = 18 * d["kh"] + ks
        acc = (vG[d["p"] & 1] if d["mat"] == "G" else vU) + 16 * hf
        B = ar(4 * kk); first = kk == 0
    elif k == "GUs":
        acc = vG[0] if d["mat"] == "G" else vUS
        B = ar(4 * n); first = n == 0
    elif k == "Dp":
        ks, hf = n >> 1, n & 1; acc = DACC[2 * d["q"] + hf]
        if d["ps"] == 1: B = vr(vH + 4 * ks); first = ks == 0
        else: B = ar(aHP + 4 * ks); first = False
    elif k == "T":
        acc = vTACC; first = n == 0
        return f"v_mfma_f32_32x32x16_bf16 {vr(acc,16)}, {ar(4*n)}, {A}, {'0' if first else vr(acc,16)}"
    else:
        acc = DACC[8]; B = vr(vH + 4 * n) if n < 18 else ar(aHP + 4 * (n - 18)); first = n == 0
    return f"v_mfma_f32_32x32x16_bf16 {vr(acc,16)}, {A}, {B}, {'0' if first else vr(acc,16)}"

NLOG2E = "0xbfb8aa3b"
class Op:
    __slots__ = ("text", "cost", "deps", "nb", "tag", "at")
    def __init__(self, text, cost=1, deps=(), nb=0, tag=None):
        self.text, self.cost, self.deps, self.nb, self.tag, self.at = text, cost, list(deps), nb, tag, None
sPKC, sPK1 = 90, 92
_tmp_last = {}
def silu_chain(g0, n, nb):
    ops = []; last = {}
    pk = "pk" in ABL
    for e in range(0, n, 2):
        ta = vTMP + (e % 8); a = g0 + e
        prev = [(_tmp_last[t], 1) for t in (ta, ta + 1) if t in _tmp_last]
        if pk:
            m1 = Op(f"v_pk_mul_f32 v[{ta}:{ta+1}], v[{a}:{a+1}], s[{sPKC}:{sPKC+1}]", 1, prev, nb)
            e0 = Op(f"v_exp_f32 v{ta}, v{ta}", 2, [(m1, 1)], nb); e1 = Op(f"v_exp_f32 v{ta+1}, v{ta+1}", 2, [(m1, 1)], nb)
            ad = Op(f"v_pk_add_f32 v[{ta}:{ta+1}], v[{ta}:{ta+1}], s[{sPK1}:{sPK1+1}]", 1, [(e0, 2), (e1, 2)], nb)
            r0 = Op(f"v_rcp_f32 v{ta}, v{ta}", 2, [(ad, 1)], nb); r1 = Op(f"v_rcp_f32 v{ta+1}, v{ta+1}", 2, [(ad, 1)], nb)
            m2 = Op(f"v_pk_mul_f32 v[{a}:{a+1}], v[{a}:{a+1}], v[{ta}:{ta+1}]", 1, [(r0, 2), (r1, 2)], nb)
            ops += [m1, e0, e1, ad, r0, r1, m2]
            _tmp_last[ta] = m2; _tmp_last[ta + 1] = m2; last[e] = m2; last[e + 1] = m2
        else:
            for z in range(2):
                t = ta + z; g = a + z
                m1 = Op(f"v_mul_f32 v{t}, {NLOG2E}, v{g}", 1, [(_tmp_last[t], 1)] if t in _tmp_last else [], nb)
                ex = Op(f"v_exp_f32 v{t}, v{t}", 2, [(m1, 1)], nb)
                ad = Op(f"v_add_f32 v{t}, 1.0, v{t}", 1, [(ex, 2)], nb)
                rc = Op(f"v_rcp_f32 v{t}, v{t}", 2, [(ad, 1)], nb)
                m2 = Op(f"v_mul_f32 v{g}, v{g}, v{t}", 1, [(rc, 2)], nb)
                ops += [m1, ex, ad, rc, m2]
                _tmp_last[t] = m2; last[e + z] = m2
    return ops, last
def h_chain(g0, u0, tile, last, eoff, nb):
    ops = []; H = vH + 8 * tile; prevc = None
    for q in range(8):
        a = g0 + 2 * q
        if "pk" in ABL:
            h0 = Op(f"v_pk_mul_f32 v[{a}:{a+1}], v[{a}:{a+1}], v[{u0+2*q}:{u0+2*q+1}]", 1, [(last[eoff + 2*q], 1)], nb)
            hs = [h0]
        else:
            hs = [Op(f"v_mul_f32 v{a+z}, v{a+z}, v{u0+2*q+z}", 1, [(last[eoff + 2*q + z], 1)], nb) for z in range(2)]
        c = Op(f"v_cvt_pk_bf16_f32 v{H + q}, v{a}, v{a+1}", 1, [(h, 1) for h in hs] + ([(prevc, 1)] if prevc else []), nb,
               ("h", tile) if q == 7 else None)
        prevc = c
        ops += hs + [c]
    return ops
def h_store(tile, half):
    off = tile * 2048 + half * 1024
    return [f"s_add_u32 s{sHST}, s{sHXo}, {off & ~4095}",
            f"buffer_store_dwordx4 {vr(vH + 8*tile + 4*half)}, v{vL16}, {SRD(S_WS)}, s{sHST} offen offset:{off & 4095} sc1"]
vPST = vMISC
def epi_ops(tile):
    T = DACC[tile]
    return [(f"v_cvt_pk_bf16_f32 v{T + q}, v{T + 2*q}, v{T + 2*q + 1}", 1, ("e", tile) if q == 7 else None) for q in range(8)]
def p_store(tile, half):
    T = DACC[tile]
    if tile < 8: base, off = sPARTp, tile * 2048 + half * 1024
    else: base, off = sPARTs, half * 1024
    fl = "" if "plainst" in ABL else " sc1"
    return [f"s_add_u32 s{sPST}, s{base}, {off & ~4095}",
            f"buffer_store_dwordx4 {vr(T + 4*half)}, v{vPST}, {SRD(S_WS)}, s{sPST} offen offset:{off & 4095}{fl}"]

def stamp(e, idx):
    if not DIAG: return
    e(f"{'s_memtime' if DIAG == 2 else 's_memrealtime'} s[{96 + 2*(idx % 2)}:{97 + 2*(idx % 2)}]")
    e.pending_stamp = idx
def settle(e):
    if not DIAG: return
    idx = getattr(e, "pending_stamp", None)
    if idx is None: return
    e(f"v_writelane_b32 v{vDIAG}, s{96 + 2*(idx % 2)}, {idx}")
    e.pending_stamp = None

def pstamp(e, idx):
    if not DIAG: return
    e("s_memrealtime s[96:97]\ns_waitcnt lgkmcnt(0)")
    e(f"v_writelane_b32 v{vDIAG}, s96, {idx}")
def rowcalc(e, dst, vslot, sgrp, t0=16, t1=17):
    e(f"""
    s_lshl_b32 s{sA}, s{sI}, 5
    v_add_u32 v{t0}, s{sA}, v{vslot}          ; s
    s_cmp_eq_u32 s{sgrp}, 0
    s_cselect_b32 s{sA}, 0, 1024
    s_cmp_eq_u32 s{sgrp}, 3
    s_cselect_b32 s{sA}, 2048, s{sA}         ; base
    s_and_b32 s{sB}, s{sgrp}, 1
    v_sub_u32 v{t1}, s{sA}, v{t0}
    v_add_u32 v{dst}, s{sA}, v{t0}
    s_cmp_eq_u32 s{sB}, 1
    s_cselect_b64 vcc, -1, 0
    s_lshl_b32 s{sC}, s{sgrp}, 10
    s_sub_u32 s{sC}, s{sC}, 1536
    v_cndmask_b32 v{dst}, v{dst}, v{t1}, vcc
    v_mov_b32 v{t1}, s{sC}
    s_cmp_ge_u32 s{sgrp}, 2
    s_cselect_b32 s{sB}, 0, -1
    v_cmp_eq_u32 vcc, s{sB}, v{t0}
    s_nop 1
    v_cndmask_b32 v{dst}, v{dst}, v{t1}, vcc
    """)

def T_dma_addr(e, rowbase_in_tile=0):
    ops = []
    ops += [f"v_lshrrev_b32 v21, 7, v{vL16}",
            f"v_bfe_u32 v22, v{vL16}, 4, 3"]
    for q in range(4):
        ops += [f"v_add_u32 v23, {8*q}, v21", f"v_bfe_u32 v20, v23, 1, 3", f"v_xor_b32 v20, v20, v22",
                f"v_mul_u32_u24 v23, 1152, v23", f"v_lshl_add_u32 v{16+q}, v20, 4, v23"]
        if q: ops.append(f"v_subrev_u32 v{16+q}, {1024*q}, v{16+q}")
    ops += [f"s_lshl_b32 s{sE}, s{sW}, 3", f"v_add_u32 v23, s{sE}, v21", f"v_bfe_u32 v20, v23, 1, 3", f"v_xor_b32 v20, v20, v22",
            f"v_mul_u32_u24 v23, 1152, v23", f"v_lshl_add_u32 v20, v20, 4, v23"]
    return ops
def T_read_addr(slotbase):
    ops = [f"v_bfe_u32 v20, v{vL16}, 4, 5",
           f"v_lshrrev_b32 v21, 9, v{vL16}",
           f"v_lshrrev_b32 v22, 3, v20", f"v_lshlrev_b32 v22, 10, v22", f"v_and_b32 v23, 7, v20",
           f"v_lshl_add_u32 v22, v23, 7, v22", f"v_add_u32 v22, {slotbase}, v22",
           f"v_bfe_u32 v23, v20, 1, 3"]
    for q4 in range(4):
        ops += [f"v_add_u32 v20, {2*q4}, v21", f"v_xor_b32 v20, v20, v23", f"v_lshl_add_u32 v{16+q4}, v20, 4, v22"]
    return ops

def code_prefetch():
    return f"""
    s_getpc_b64 s[{S_T}:{S_T+1}]
    K1_pc:
    s_and_b32 s{S_T+1}, s{S_T+1}, 0xffff
    s_mov_b32 s{S_T+2}, K1_codeend-K1_pc
    s_mov_b32 s{S_T+3}, 0x20000
    s_lshr_b32 s{sA}, s2, 3
    s_mul_i32 s{sA}, s{sA}, {{NL}}
    v_add_u32 v3, s{sA}, v0
    v_lshlrev_b32 v3, 7, v3
    v_mov_b32 v4, 0x7ff00000
    v_cmp_gt_u32 vcc, {{NL}}, v0
    s_nop 1
    v_cndmask_b32 v3, v4, v3, vcc
    buffer_load_dword a{aDUM}, v3, {SRD(S_T)}, 0 offen
    """.replace("{NL}", str(CPF_LINES))
CPF_LINES = 20
PROBE_PTS = []
K2_LABELS = None
def prologue(e):
    e(f"""
    s_cmp_ge_u32 s2, 256
    s_cbranch_scc1 K1_end
    {("s_memtime s[100:101]" if DIAG == 2 else "s_memrealtime s[100:101]") if DIAG else ""}
    s_load_dwordx2 s[{S_X}:{S_X+1}], s[0:1], {KA_AX}
    s_load_dwordx2 s[{S_WG}:{S_WG+1}], s[0:1], {KA_WG}
    s_load_dwordx2 s[{S_WU}:{S_WU+1}], s[0:1], {KA_WU}
    s_load_dwordx2 s[{S_WD}:{S_WD+1}], s[0:1], {KA_WD}
    s_load_dwordx2 s[{S_WS}:{S_WS+1}], s[0:1], {KA_WS}
    s_load_dwordx2 s[{S_DBG}:{S_DBG+1}], s[0:1], {KA_DBG}
    s_load_dwordx2 s[{S_CD}:{S_CD+1}], s[0:1], {KA_CD}
    s_load_dwordx2 s[{S_SD}:{S_SD+1}], s[0:1], {KA_SD}
    s_load_dwordx2 s[{S_GW}:{S_GW+1}], s[0:1], {KA_GW}
    {code_prefetch() if "nocpf" not in ABL else ""}
    v_lshrrev_b32 v2, 6, v0
    v_and_b32 v0, 63, v0
    v_readfirstlane_b32 s{sW}, v2
    v_lshlrev_b32 v{vL16}, 4, v0
    s_and_b32 s{sA}, s2, 1
    s_lshl_b32 s{sA}, s{sA}, 3
    s_lshr_b32 s{sB}, s2, 3
    s_and_b32 s{sC}, s{sB}, 7
    s_add_u32 s{sI}, s{sA}, s{sC}
    s_and_b32 s{sA}, s2, 6
    s_lshl_b32 s{sA}, s{sA}, 1
    s_lshr_b32 s{sB}, s{sB}, 3
    s_add_u32 s{sJ}, s{sA}, s{sB}
    s_and_b32 s{sODD}, s{sJ}, 1
    """)
    if "nocpf" not in ABL: e.vm.append("cpf")
    e("v_lshrrev_b32 v21, 3, v0\nv_and_b32 v22, 7, v0")
    rowcalc(e, 19, 21, sW)
    e(f"""
    s_and_b32 s{sB}, s{sW}, 1
    s_cmp_eq_u32 s{sB}, 1
    s_cselect_b32 s{sB}, -1, 1
    s_mul_i32 s{sB}, s{sB}, {8 * 1152}           ; byte step between the 8-row pieces
    s_lshl_b32 s{sA}, s{sI}, 5
    v_add_u32 v16, s{sA}, v21                    ; s (piece 0)
    s_cmp_eq_u32 s{sW}, 0
    s_cselect_b32 s{sA}, 0, 1024
    s_cmp_eq_u32 s{sW}, 3
    s_cselect_b32 s{sA}, 2048, s{sA}
    v_sub_u32 v17, s{sA}, v16
    v_add_u32 v18, s{sA}, v16
    s_cmp_lt_i32 s{sB}, 0
    s_cselect_b64 vcc, -1, 0
    v_mul_u32_u24 v19, 1152, v19
    v_lshrrev_b32 v20, 1, v21
    v_cndmask_b32 v17, v18, v17, vcc
    v_mul_u32_u24 v17, 1152, v17
    v_xor_b32 v23, v20, v22
    v_lshl_add_u32 v96, v23, 4, v19
    v_xor_b32 v18, 4, v23
    v_add_u32 v17, s{sB}, v17
    v_lshl_add_u32 v97, v18, 4, v17
    v_add_u32 v17, s{sB}, v17
    v_lshl_add_u32 v98, v23, 4, v17
    v_add_u32 v17, s{sB}, v17
    v_lshl_add_u32 v99, v18, 4, v17
    """)
    e(f"""
    s_mul_i32 s{sA}, s{sJ}, 288            ; F0
    s_lshl_b32 s{sB}, s{sODD}, 5
    s_add_u32 s{sA}, s{sA}, s{sB}          ; pairbase
    s_lshl_b32 s{sTG}, s{sA}, 1
    s_mul_i32 s{sB}, s{sW}, {32 * ROWW}
    s_add_u32 s{sGA}, s{sB}, s{sTG}
    s_mul_i32 s{sB}, s{sW}, {8 * ROWW}
    s_add_u32 s{sB}, s{sB}, {256 * ROWW}
    s_add_u32 s{sGL}, s{sB}, s{sTG}
    s_lshl_b32 s{sM0A}, s{sW}, 12
    s_lshl_b32 s{sM0L}, s{sW}, 10
    s_add_u32 s{sM0L}, s{sM0L}, 32768
    ; GU pair dma voffsets
    v_bfe_u32 v17, v0, 2, 1
    v_bfe_u32 v18, v0, 4, 1
    v_xor_b32 v17, v17, v18
    v_lshlrev_b32 v17, 6, v17
    v_and_b32 v18, 3, v0
    v_lshl_add_u32 v17, v18, 4, v17      ; colb
    s_mov_b32 s{sA}, {ROWW}
    v_mul_lo_u32 v18, v21, s{sA}
    v_add_u32 v{vDGp}, v18, v17
    """)
    for q in range(1, 4): e(f"v_add_u32 v{vDGp+q}, {q * (8 * ROWW - 1024)}, v{vDGp}")
    e(f"s_mul_i32 s{sXS}, s{sW}, {XBW}\ns_add_u32 s{sXS}, s{sXS}, {XB0}")
    e(f"""
    s_lshr_b32 s{sA}, s2, 3
    s_and_b32 s{sA}, s{sA}, 7
    s_mul_i32 s{sA}, s{sA}, 36
    s_mul_i32 s{sB}, s{sW}, 9
    s_add_u32 s{sA}, s{sA}, s{sB}
    v_add_u32 v16, s{sA}, v0
    s_mov_b32 s{sA}, {ROWW}
    v_mul_lo_u32 v17, v16, s{sA}
    v_mov_b32 v18, 0x7ff00000
    v_cmp_gt_u32 vcc, 9, v0
    s_nop 1
    v_cndmask_b32 v{vTG}, v18, v17, vcc
    """)
    e("s_waitcnt lgkmcnt(0)")
    if DIAG: e(f"v_mov_b32 v{vDIAG}, 0\nv_writelane_b32 v{vDIAG}, s100, 0")
    pstamp(e, 50)
    for s_, nb in ((S_X, 2048 * ROWD), (S_WG, 576 * ROWW), (S_WU, 576 * ROWW)): srd(e, s_, None, nb)
    def xdma_rot(pos):
        e(f"s_lshr_b32 s{sB}, s2, 6\ns_add_u32 s{sB}, s{sB}, {pos}\ns_cmp_ge_u32 s{sB}, 5\ns_cselect_b32 s{sC}, 5, 0\ns_sub_u32 s{sB}, s{sB}, s{sC}")
        e(f"s_lshl_b32 s{sA}, s{sB}, 7\ns_lshl_b32 s{sB}, s{sB}, 12\ns_add_u32 s{sB}, s{sB}, s{sXS}")
        for q in range(4):
            e(f"s_add_u32 m0, s{sB}, {q * 1024}\ns_nop 0")
            e.vmem(f"buffer_load_dwordx4 v{96+q}, {SRD(S_X)}, s{sA} offen lds", ("x", "A"))
    def udma(u):
        for pre, loads in dma_groups(u):
            for s in pre: e(s)
            e("s_nop 0")
            for s in loads: e.vmem(s, ("u", u))
    NET = next((int(a[2:]) for a in ABL if a.startswith("et")), 0)
    if "notouch" not in ABL:
        for u in range(NET):
            for t, isv in touch_ops(u): (e.vmem(t, "touch") if isv else e(t))
    for pos in range(5): xdma_rot(pos)
    udma(0); udma(1)
    if "notouch" not in ABL and "earlyt" in ABL:
        for u in range(max(NET, 2), PF):
            for t, isv in touch_ops(u): (e.vmem(t, "touch") if isv else e(t))
    pstamp(e, 51)
    e(f"""
    v_lshrrev_b32 v16, 5, v0             ; h
    v_bfe_u32 v17, v0, 4, 1              ; fb
    v_bfe_u32 v18, v0, 2, 2              ; r
    v_and_b32 v19, 3, v0                 ; c4
    v_lshlrev_b32 v20, 5, v17
    v_lshl_add_u32 v20, v19, 3, v20      ; 32 fb + 8 c4
    v_lshrrev_b32 v21, 1, v18
    v_lshlrev_b32 v21, 6, v21            ; 64*sw
    v_xor_b32 v22, 64, v21
    v_lshl_add_u32 v23, v16, 3, v18      ; 8h + r
    v_lshlrev_b32 v2, 7, v23
    v_add3_u32 v{vPGp[0]}, v2, v21, v20
    v_add3_u32 v{vPGp[1]}, v2, v22, v20
    v_and_b32 v16, 31, v0
    v_lshrrev_b32 v17, 5, v0
    v_lshrrev_b32 v18, 3, v16
    v_lshlrev_b32 v18, 10, v18
    v_and_b32 v19, 7, v16
    v_lshl_add_u32 v18, v19, 7, v18
    v_add_u32 v18, s{sXS}, v18
    v_bfe_u32 v19, v16, 1, 3
    """)
    for q4 in range(4):
        e(f"v_add_u32 v20, {2*q4}, v17\nv_xor_b32 v20, v20, v19\nv_lshl_add_u32 v{100+q4}, v20, 4, v18")
    pstamp(e, 52)
    e.wait(vm=("x", "A"))
    pstamp(e, 53)
    for kc in range(5):
        for q4 in range(4):
            e.lds(f"ds_read_b128 {ar(4 * (4*kc + q4))}, v{100+q4} offset:{kc * 4096}", ("xf", 4*kc + q4))
    for q in range(4): e(f"v_mov_b32 v{16+q}, v{96+q}\nv_mov_b32 v{20+q}, v{100+q}")
    e.wait(lg=("xf", 19))
    e(f"s_lshl_b32 s{sXB2}, s{sW}, 13\ns_add_u32 s{sXB2}, s{sXB2}, {3 * SLOT}\ns_lshl_b32 s{sXB3}, s{sW}, 12\ns_add_u32 s{sXB3}, s{sXB3}, {FOLD}")
    e(f"s_sub_u32 s{sA}, s{sXB2}, s{sXS}")
    for q in range(4): e(f"v_add_u32 v{20+q}, s{sA}, v{20+q}")
    stamp(e, 1)

def late_setup():
    L = []
    def a(txt):
        for x in txt.split("\n"):
            x = x.split(";")[0].strip()
            if x: L.append(x)
    for s_, nb in ((S_WD, 4608 * ROWD), (S_WS, WS_BYTES), (S_DBG, 256), (S_CD, 576 * ROWD), (S_SD, 576 * ROWD), (S_GW, 1152)):
        a(f"s_and_b32 s{s_+1}, s{s_+1}, 0xffff\ns_mov_b32 s{s_+2}, {nb}\ns_mov_b32 s{s_+3}, 0x20000")
    a(f"""
    s_lshr_b32 s{sA}, s2, 3
    s_and_b32 s{sA}, s{sA}, 7
    s_mul_i32 s{sA}, s{sA}, 36
    s_mul_i32 s{sB}, s{sW}, 9
    s_add_u32 s{sA}, s{sA}, s{sB}
    v_add_u32 v192, s{sA}, v0
    s_mov_b32 s{sA}, {ROWW}
    v_mul_lo_u32 v193, v192, s{sA}
    v_mul_u32_u24 v194, {ROWD}, v192
    v_mov_b32 v195, 0x7ff00000
    v_cmp_gt_u32 vcc, 9, v0
    s_nop 1
    v_cndmask_b32 v{vTG}, v195, v193, vcc
    v_cndmask_b32 v206, v195, v194, vcc
    """)
    L.append(("s_nop 0", "tg_ready"))
    a(f"""
    s_lshl_b32 s{sA}, s{sI}, 4
    s_add_u32 s{sA}, s{sA}, s{sJ}
    s_xor_b32 s{sD}, s{sA}, 1
    s_and_b32 s{sFoffP}, s{sD}, 63
    s_lshl_b32 s{sFoffP}, s{sFoffP}, 2
    s_lshr_b32 s{sFbitP}, s{sD}, 6
    s_lshl_b32 s{sB}, s{sD}, 7
    s_lshl_b32 s{sC}, s{sW}, 2
    s_add_u32 s{sB}, s{sB}, s{sC}
    s_add_u32 s{sOBp}, s{sB}, {WS_FLAG}
    s_and_b32 s{sB}, s{sA}, 63
    s_lshl_b32 s{sB}, s{sB}, 2
    s_lshr_b32 s{sC}, s{sA}, 6
    s_lshl_b32 s{sC}, 1, s{sC}
    v_mov_b32 v{vMISC}, s{sC}
    v_mov_b32 v{vPOLL}, s{sB}
    v_mov_b32 v{vZERO}, 0
    v_mov_b32 v192, 0x7ffffff0
    s_lshl_b32 s{sB}, s{sA}, 7
    s_add_u32 s{sB}, s{sB}, {WS_FLAG}
    s_lshl_b32 s{sC}, s{sW}, 2
    s_add_u32 s{sC}, s{sC}, s{sB}
    v_mov_b32 v{vOB}, s{sC}
    v_mov_b32 v193, s{sB}
    v_cmp_eq_u32 vcc, 0, v0
    s_lshl_b32 s{sC}, s{sW}, 6
    v_add_u32 v194, s{sC}, v0
    v_cndmask_b32 v{vOB}, v192, v{vOB}, vcc
    v_cmp_eq_u32 vcc, 0, v194
    v_mov_b32 v200, 0
    v_mov_b32 v201, 0
    v_cndmask_b32 v{vPOLL}, v192, v{vPOLL}, vcc
    v_cndmask_b32 v204, v192, v193, vcc
    v_mov_b32 v202, 0
    v_mov_b32 v203, 0
    """)
    L.append(("s_nop 0", "clr_ready"))
    a(f"""
    s_mul_i32 s{sB}, s{sW}, 18432
    s_mul_i32 s{sC}, s{sA}, 73728
    s_add_u32 s{sC}, s{sC}, s{sB}
    s_add_u32 s{sHXo}, s{sC}, {WS_HX}
    s_mul_i32 s{sC}, s{sD}, 73728
    s_add_u32 s{sC}, s{sC}, s{sB}
    s_add_u32 s{sHXp}, s{sC}, {WS_HX}
    s_lshr_b32 s{sB}, s{sI}, 1
    s_mul_i32 s{sB}, s{sB}, {8 * PS}
    s_mul_i32 s{sC}, s{sW}, {2 * PS}
    s_add_u32 s{sB}, s{sB}, s{sC}
    s_lshr_b32 s{sC}, s{sJ}, 1
    s_mul_i32 s{sC}, s{sC}, {18 * 2048}
    s_add_u32 s{sB}, s{sB}, s{sC}
    s_add_u32 s{sB}, s{sB}, {WS_PART}
    s_mul_i32 s{sC}, s{sODD}, {10 * 2048}
    s_add_u32 s{sPARTp}, s{sB}, s{sC}
    s_add_u32 s{sC}, s{sODD}, 8
    s_lshl_b32 s{sC}, s{sC}, 11
    s_add_u32 s{sPARTs}, s{sB}, s{sC}
    s_mul_i32 s{sA}, s{sJ}, 288
    s_lshl_b32 s{sB}, s{sODD}, 5
    s_add_u32 s{sB}, s{sA}, s{sB}
    s_xor_b32 s{sC}, s{sODD}, 1
    s_lshl_b32 s{sC}, s{sC}, 8
    s_add_u32 s{sC}, s{sA}, s{sC}
    s_xor_b32 s{sD}, s{sJ}, 1
    s_mul_i32 s{sD}, s{sD}, 288
    s_lshl_b32 s{sTGs}, s{sC}, 1
    s_mul_i32 s{sE}, s{sW}, {64 * ROWW}
    s_add_u32 s{sSA}, s{sE}, s{sTGs}
    s_mul_i32 s{sE}, s{sW}, {16 * ROWW}
    s_add_u32 s{sE}, s{sE}, {512 * ROWW}
    s_add_u32 s{sSL}, s{sE}, s{sTGs}
    s_mul_i32 s90, s{sODD}, 640
    s_mul_i32 s91, s{sODD}, 576
    s_xor_b32 s92, s{sODD}, 1
    s_lshl_b32 s93, s92, 9
    s_add_u32 s91, s91, s93
    s_mul_i32 s{sE}, s{sA}, {ROWD}
    s_add_u32 s{sTDo}, s{sE}, s90
    s_mul_i32 s{sE}, s{sD}, {ROWD}
    s_add_u32 s{sTDp}, s{sE}, s90
    s_and_b32 s{sE}, s{sJ}, 14
    s_mul_i32 s{sE}, s{sE}, {288 * ROWD}
    s_add_u32 s{sTS}, s{sE}, s91
    s_lshl_b32 s93, s92, 5
    s_add_u32 s93, s{sD}, s93
    s_lshl_b32 s94, s{sODD}, 8
    s_add_u32 s94, s{sD}, s94
    s_lshl_b32 s{sE}, s{sW}, 5
    s_add_u32 s{sF}, s{sB}, s{sE}
    s_mul_i32 s{sF}, s{sF}, {ROWD}
    s_add_u32 s{sDAo}, s{sF}, s90
    s_add_u32 s{sF}, s93, s{sE}
    s_mul_i32 s{sF}, s{sF}, {ROWD}
    s_add_u32 s{sDAp}, s{sF}, s90
    s_lshl_b32 s{sE}, s{sW}, 3
    s_add_u32 s{sF}, s{sC}, s{sE}
    s_mul_i32 s{sF}, s{sF}, {ROWD}
    s_add_u32 s{sDLo}, s{sF}, s90
    s_add_u32 s{sF}, s94, s{sE}
    s_mul_i32 s{sF}, s{sF}, {ROWD}
    s_add_u32 s{sDLp}, s{sF}, s90
    s_lshl_b32 s{sE}, s{sW}, 6
    s_add_u32 s{sF}, s{sB}, s{sE}
    s_mul_i32 s{sF}, s{sF}, {ROWD}
    s_add_u32 s{sUA}, s{sF}, s91
    s_add_u32 s{sF}, s93, s{sE}
    s_mul_i32 s{sF}, s{sF}, {ROWD}
    s_add_u32 s{sUB}, s{sF}, s91
    s_cmp_lt_u32 s{sW}, 2
    s_cselect_b32 s{sF}, s{sC}, s94
    s_and_b32 s{sE}, s{sW}, 1
    s_lshl_b32 s{sE}, s{sE}, 4
    s_add_u32 s{sF}, s{sF}, s{sE}
    s_mul_i32 s{sF}, s{sF}, {ROWD}
    s_add_u32 s{sUL}, s{sF}, s91
    s_cmp_ge_u32 s{sJ}, 9
    s_cselect_b32 s{sCS}, 1, 0
    s_cselect_b32 s{S_T}, s{S_SD}, s{S_CD}
    s_cselect_b32 s{S_T+1}, s{S_SD+1}, s{S_CD+1}
    s_mov_b32 s{S_T+2}, {576 * ROWD}
    s_mov_b32 s{S_T+3}, 0x20000
    s_lshl_b32 s{sB}, s{sCS}, 3
    s_sub_u32 s{sCcol}, s{sJ}, s{sB}
    s_mul_i32 s{sTrow}, s{sCcol}, {32 * ROWD}
    v_lshrrev_b32 v192, 5, v0
    v_bfe_u32 v193, v0, 4, 1
    v_bfe_u32 v194, v0, 2, 2
    v_and_b32 v195, 3, v0
    v_lshlrev_b32 v196, 5, v193
    v_lshl_add_u32 v196, v195, 3, v196
    v_lshrrev_b32 v197, 1, v194
    v_lshlrev_b32 v197, 6, v197
    v_xor_b32 v198, 64, v197
    v_lshl_add_u32 v199, v192, 3, v194
    v_lshl_add_u32 v{vPGs}, v199, 6, v196
    v_lshl_add_u32 v199, v192, 2, v194
    v_lshlrev_b32 v205, 7, v199
    v_add3_u32 v{vPDp[0]}, v205, v197, v196
    v_add3_u32 v{vPDp[1]}, v205, v198, v196
    v_lshl_add_u32 v{vPDs}, v199, 6, v196
    v_bfe_u32 v192, v0, 2, 1
    v_bfe_u32 v193, v0, 4, 1
    v_xor_b32 v192, v192, v193
    v_lshlrev_b32 v192, 6, v192
    v_lshl_add_u32 v192, v195, 4, v192
    v_lshrrev_b32 v193, 3, v0
    v_mul_u32_u24 v193, {ROWD}, v193
    v_add_u32 v{vDDp}, v193, v192
    v_lshrrev_b32 v192, 2, v0
    v_lshlrev_b32 v193, 4, v195
    s_mov_b32 s{sA}, {ROWW}
    v_mul_lo_u32 v194, v192, s{sA}
    v_add_u32 v{vDGs}, v194, v193
    v_mul_u32_u24 v194, {ROWD}, v192
    v_add_u32 v{vDDs}, v194, v193
    """)
    for q in range(1, 4):
        a(f"v_add_u32 v{vDDp+q}, {q * (8 * ROWD - 1024)}, v{vDDp}")
        a(f"v_add_u32 v{vDGs+q}, {q * (16 * ROWW - 1024)}, v{vDGs}")
        a(f"v_add_u32 v{vDDs+q}, {q * (16 * ROWD - 1024)}, v{vDDs}")
    a(f"v_mov_b32 v{vTD}, v206")
    L.append(("s_nop 0", "late_done"))
    return [(x, 1) if isinstance(x, str) else (x[0], 1, x[1]) for x in L]

vR = 24; vO = 56; vP = 64; vM = 68; vFA = 72; vFB = 73; vFC = 74; vFD = 75
def fold_write_ops(acc=vTACC):
    ops = [f"s_lshl_b32 s{sE}, s{sW}, 12", f"s_add_u32 s{sE}, s{sE}, {FOLD}", f"v_add_u32 v21, s{sE}, v{vL16}"]
    w = [f"ds_write_b128 v21, {vr(acc + 4*z)} offset:{1024*z}" for z in range(4)]
    return ops, w
def fold_setup_ops():
    ops = [f"s_lshr_b32 s{sE}, s{sW}, 1", f"s_lshl_b32 s{sE}, s{sE}, 11", f"s_add_u32 s{sE}, s{sE}, {FOLD}",
           f"v_add_u32 v{vFB}, s{sE}, v{vL16}",
           f"s_and_b32 s{sE}, s{sW}, 1", f"s_lshl_b32 s{sF}, s{sCS}, 1", f"s_or_b32 s{sE}, s{sE}, s{sF}"]
    masks = [0b1100, 0b1010, 0b0110, 0b0000]
    neg = {0: (2, 3), 1: (1, 3), 2: (1, 2), 3: ()}
    for g in range(4):
        m = sum(1 << i for i in neg[g])
        ops += [f"s_lshr_b32 s{sF}, {m}, s{sE}", f"s_bitcmp1_b32 s{sF}, 0", f"s_cselect_b32 s{sSG+g}, 0xbf800000, 1.0"]
    ops += [f"s_cmp_eq_u32 s{sE}, 0", f"s_cselect_b32 s{sEA}, 1.0, 0", f"s_cselect_b32 s{sEB}, 1.0, 0",
            f"s_cmp_eq_u32 s{sE}, 3", f"s_cselect_b32 s{sEA}, 0xbf800000, s{sEA}", f"s_cselect_b32 s{sEB}, 1.0, s{sEB}"]
    return ops
def fold_reads():
    return [(f"ds_read_b128 {vr(vR + 8*g + 4*z)}, v{vFB} offset:{4096*g + 1024*z}", ("fr", g, z)) for g in range(4) for z in range(2)]
def fold_math(signs=None):
    if signs is None: signs = [f"s{sSG+g}" for g in range(4)]
    ops = []
    for r in range(8):
        R = [vR + 8*g + r for g in range(4)]
        if r == 0:
            ops += [f"v_mul_f32 v{vFD}, {signs[2]}, v{R[2]}", f"v_fma_f32 v{vFD}, {signs[3]}, v{R[3]}, v{vFD}",
                    f"v_mul_f32 v{vFD}, v{vFC}, v{vFD}",
                    f"v_fma_f32 v{vO}, {signs[0]}, v{R[0]}, v{vFD}", f"v_fma_f32 v{vO}, {signs[1]}, v{R[1]}, v{vO}"]
        else:
            ops += [f"v_mul_f32 v{vO+r}, {signs[0]}, v{R[0]}"] + [f"v_fma_f32 v{vO+r}, {signs[g]}, v{R[g]}, v{vO+r}" for g in range(1, 4)]
    for q in range(4): ops.append(f"v_cvt_pk_bf16_f32 v{vP+q}, v{vO+2*q}, v{vO+2*q+1}")
    ops += ["s_nop 1", f"v_permlane32_swap_b32 v{vP}, v{vP+2}", f"v_permlane32_swap_b32 v{vP+1}, v{vP+3}"]
    return ops
def fold_mask_ops():
    return [f"s_lshr_b32 s{sE}, s{sW}, 1", f"s_or_b32 s{sE}, s{sE}, s{sI}", f"s_cmp_eq_u32 s{sE}, 0", f"s_cselect_b32 s{sE}, 512, 0",
            f"v_cmp_gt_u32 vcc, s{sE}, v{vL16}", f"v_mov_b32 v{vFC}, 1.0", "s_nop 0", f"v_cndmask_b32 v{vFC}, v{vFC}, v{vZERO}, vcc"]
def z_addr_ops():
    return [f"s_and_b32 s{sE}, s{sW}, 1", f"s_lshl_b32 s{sE}, s{sE}, 1", f"s_add_u32 s{sE}, s{sE}, s{sCS}",
            f"s_mul_i32 s{sC}, s{sE}, {18*33*1024}", f"s_lshl_b32 s{sE}, s{sI}, 1", f"s_lshr_b32 s{sF}, s{sW}, 1", f"s_add_u32 s{sE}, s{sE}, s{sF}",
            f"s_lshl_b32 s{sE}, s{sE}, 10", f"s_add_u32 s{sC}, s{sC}, s{sE}", f"s_add_u32 s{sC}, s{sC}, {WS_Z}",
            f"s_mul_i32 s{sE}, s{sCcol}, {33*1024}", f"v_add_u32 v{vFA}, s{sE}, v{vL16}",
            f"v_bfe_u32 v{vM}, v{vL16}, 4, 5", f"s_lshl_b32 s{sE}, s{sCcol}, 5", f"v_add_u32 v{vM}, s{sE}, v{vM}",
            f"v_sub_u32 v{vM+1}, 576, v{vM}", f"v_lshrrev_b32 v{vM+2}, 5, v{vM+1}", f"v_mul_u32_u24 v{vM+2}, {33*1024}, v{vM+2}",
            f"v_and_b32 v{vM+1}, 31, v{vM+1}", f"v_lshlrev_b32 v{vM+1}, 4, v{vM+1}", f"v_and_b32 v{vM+3}, 512, v{vL16}",
            f"v_add3_u32 v{vFB}, v{vM+1}, v{vM+2}, v{vM+3}",
            f"v_cmp_eq_u32 vcc, 0, v{vM}", f"v_mov_b32 v{vM+1}, 0x7ff00000", "s_nop 0", f"v_cndmask_b32 v{vFB}, v{vFB}, v{vM+1}, vcc",
            f"s_cmp_eq_u32 s{sCS}, 1", f"s_cselect_b32 s{sD}, 0x80008000, 0"]
def z_store_ops():
    ops = [(f"buffer_store_dwordx4 {vr(vP)}, v{vFA}, {SRD(S_WS)}, s{sC} offen{ZF}", "vm")]
    ops += [(f"v_xor_b32 v{vM+q}, s{sD}, v{vP+q}", None) for q in range(4)]
    ops += [(f"buffer_store_dwordx4 {vr(vM)}, v{vFB}, {SRD(S_WS)}, s{sC} offen{ZF}", "vm")]
    return ops
def z512_ops(lbl):
    return f"""
    s_lshr_b32 s{sE}, s{sW}, 1
    s_or_b32 s{sE}, s{sE}, s{sI}
    s_cmp_eq_u32 s{sE}, 0
    s_cbranch_scc0 {lbl}
    v_mul_f32 v{vO}, s{sEA}, v{vR + 16}
    v_fma_f32 v{vO}, s{sEB}, v{vR + 24}, v{vO}
    v_cmp_gt_u32 vcc, 512, v{vL16}
    v_mov_b32 v{vO+1}, 0
    s_nop 0
    v_cndmask_b32 v{vO}, v{vO+1}, v{vO}, vcc
    v_cvt_pk_bf16_f32 v{vO+4}, v{vO}, v{vO+1}
    v_mov_b32 v{vO+5}, 0
    v_mov_b32 v{vO+6}, 0
    v_mov_b32 v{vO+7}, 0
    s_add_u32 s{sE}, s{sC}, {32 * 1024}
    buffer_store_dwordx4 {vr(vO+4)}, v{vFA}, {SRD(S_WS)}, s{sE} offen{ZF}
    s_nop 1
    v_xor_b32 v{vO+4}, s{sD}, v{vO+4}
    buffer_store_dwordx4 {vr(vO+4)}, v{vFB}, {SRD(S_WS)}, s{sE} offen{ZF}
    {lbl}:
    """

def gen_main(e):
    def set_work(u):
        pats = unit_patterns(u); sb = (u % 4) * SLOT
        for i, p in enumerate(pats):
            e(f"v_add_u32 v{vWK[i]}, {sb}, v{p}" if sb else f"v_mov_b32 v{vWK[i]}, v{p}")
    def reads(u, n):
        gn = 36 * u + n; b = aFR + 4 * (gn % 8); c = 0
        for (do, nr, ins, va, off) in frag_reads(u, n):
            e.lds(f"{ins} {ar(b + do, nr)}, v{va} offset:{off}", ("f", gn)); c += 1
        return c
    if "pk" in ABL: e(f"s_mov_b32 s{sPKC}, {NLOG2E}\ns_mov_b32 s{sPKC+1}, {NLOG2E}\ns_mov_b32 s{sPK1}, 1.0\ns_mov_b32 s{sPK1+1}, 1.0")
    e.wait(vm=("u", 0)); e("s_barrier")
    if DIAG: e("s_waitcnt lgkmcnt(0)"); settle(e); stamp(e, 2)
    set_work(0)
    for n in range(6): reads(0, n)

    queue = []
    def add(ops, gslot):
        prev = None
        merged = []
        for o in ops:
            if not isinstance(o, Op):
                if isinstance(o, str): o = (o, 1)
                if o[0].startswith("s_cselect") and merged and not isinstance(merged[-1], Op):
                    p_ = merged[-1]
                    assert p_[0].split("\n")[0].startswith(("s_cmp", "s_bitcmp")), p_
                    merged[-1] = (p_[0] + "\n" + o[0], p_[1] + 1) + tuple(p_[2:]); continue
            merged.append(o)
        for o in merged:
            if isinstance(o, Op): queue.append(o); continue
            op = Op(o[0], o[1], [(prev, 1)] if prev else [], gslot, o[2] if len(o) > 2 else None)
            queue.append(op); prev = op
    done = set()
    def ready(o):
        n = len(e.l)
        return all(d.at is not None and n - d.at >= dist for d, dist in o.deps)
    def emit(o):
        queue.remove(o); o.at = len(e.l); e(o.text)
        if o.tag: done.add(o.tag)
        return o.cost
    def fill(gs, room):
        used = 0
        while True:
            for o in queue[:40]:
                if o.nb <= gs and (o.cost <= room - used or (o.cost > 2 and used == 0 and room > 0)) and ready(o):
                    used += emit(o); break
            else: return used
    def force(o):
        for d, dist in o.deps:
            if d.at is None: force(d)
        while not ready(o): e("s_nop 0")
        emit(o)
    def drain_until(tag):
        while tag not in done:
            tgt = next(o for o in queue if o.tag == tag)
            force(tgt)
    def pop(): force(queue[0])
    G = lambda u, n: 36 * u + n
    P_early = []
    MT = []
    add(late_setup(), G(0, 0))
    def xb_dma(u_, kc, slots):
        base = (f"s{sXB2}", (kc - 5) * 4096) if kc < 7 else (f"s{sXB3}", 0)
        P_early.append((u_, slots[0] - 1, f"s_movk_i32 s{sXB}, {128 * kc}", None))
        for q in range(4):
            P_early.append((u_, slots[q] - 1, f"s_add_u32 m0, {base[0]}, {base[1] + q * 1024}", None))
            P_early.append((u_, slots[q], f"buffer_load_dwordx4 v{16+q}, {SRD(S_X)}, s{sXB} offen lds", ("x", kc)))
    xb_dma(0, 5, [1, 2, 3, 4]); xb_dma(0, 6, [5, 6, 7, 8]); xb_dma(0, 7, [9, 10, 11, 12]); xb_dma(1, 8, [7, 8, 9, 10])
    _tmp_last.clear()
    for p in range(4):
        ops, last = silu_chain(vG[p & 1], 32, G(3, 3) if p == 0 else G(4*p + 2, 3)); add(ops, 0)
        add(h_chain(vG[p & 1], vU, 2*p, last, 0, G(4*p + 4, 3)), 0)
        add(h_chain(vG[p & 1] + 16, vU + 16, 2*p + 1, last, 16, G(4*p + 4, 3)), 0)
    ops, last = silu_chain(vG[0], 16, G(17, 3)); add(ops, 0); add(h_chain(vG[0], vUS, 8, last, 0, G(18, 3)), 0)
    deadlines = {G(6, 0): [("h", 0), ("h", 1)], G(10, 0): [("h", 2), ("h", 3)], G(14, 0): [("h", 4), ("h", 5)], G(18, 0): [("h", 6), ("h", 7)], G(18, 32): [("h", 8)]}
    post = {}
    def P(u, n, text, tag=None): post.setdefault((u, n), []).append((text, tag))
    for (u_, n_, t_, g_) in P_early: P(u_, n_, t_, g_)
    pre = {}
    def PRE(u, n, fn): pre.setdefault((u, n), []).append(fn)
    PRE(1, 6, lambda: drain_until("clr_ready"))
    P(1, 30, f"buffer_store_dwordx4 v[200:203], v204, {SRD(S_WS)}, 0 offen sc1", "clr")
    PRE(0, 33, lambda: drain_until("tg_ready"))
    PRE(3, 0, lambda: drain_until("late_done"))
    def sched_dma(u, tgt, slots):
        g = dma_groups(tgt); i = 0
        for pre_, loads in g:
            for s_ in pre_: P(u, slots[i], s_)
            i += 1
            for s_ in loads: P(u, slots[i], s_, ("u", tgt)); i += 1
    STD = [1, 2, 4, 6, 8, 10, 11, 13, 15, 17, 19, 20]
    TWO_A = [1, 2, 3, 4, 5, 7, 8, 9, 10, 11, 13, 14]; TWO_B = [16, 17, 19, 21, 23, 25, 26, 27, 28, 29, 30, 31]
    sched_dma(0, 2, [13, 14, 15, 16, 17, 19, 20, 21, 22, 23, 25, 26])
    if "ramp1" not in ABL and "ramp3" not in ABL:
        sched_dma(2, 3, [0, 1, 2, 3, 4, 5, 6, 7, 9, 10, 11, 12]); sched_dma(2, 4, TWO_B)
        sched_dma(3, 5, TWO_A); sched_dma(3, 6, TWO_B)
        sched_dma(4, 7, STD)
        first_std = 5
    elif "ramp3" in ABL:
        sched_dma(1, 4, [22, 23, 24, 25, 26, 27, 28, 29, 30, 31, 32, 34])
        sched_dma(2, 3, [0, 1, 2, 3, 4, 5, 6, 7, 9, 10, 11, 12])
        sched_dma(3, 5, TWO_A); sched_dma(3, 6, TWO_B)
        first_std = 4
    else:
        sched_dma(1, 4, [12, 13, 15, 17, 19, 21, 22, 24, 26, 27, 28, 29])
        sched_dma(2, 3, [0, 1, 2, 3, 4, 5, 6, 7, 9, 10, 11, 12]); sched_dma(2, 5, TWO_B)
        first_std = 3
    for u in range(first_std, NUNIT - 3):
        if u + 3 == U_T1:
            for k_, s_ in enumerate(T_dma_addr(None)): P(u, k_ // 3, s_)
            sched_dma(u, u + 3, [11, 12, 13, 14, 15, 17, 18, 19, 20, 21, 23, 24])
        else:
            sched_dma(u, u + 3, STD)
    if "notouch" not in ABL:
        NET = next((int(a[2:]) for a in ABL if a.startswith("et")), 0)
        for k_, u in enumerate(range(max(NET, 2), PF) if "earlyt" not in ABL else []):
            for t, isv in touch_ops(u): P(0, 34 if k_ < 2 else 35, t, "touch" if isv else None)
        PFL = next((int(a[3:]) for a in ABL if a.startswith("pfl")), 20)
        cnt_ = {}
        for v in range(PF, NUNIT):
            u = max(1, v - PFL)
            while cnt_.get(u, 0) >= 2: u += 1
            k_ = cnt_.get(u, 0); cnt_[u] = k_ + 1
            sl = (31 + k_) if u in (1, 2) else (22 + 2 * k_)
            for t, isv in touch_ops(v): P(u, sl, t, "touch" if isv else None)
    PRE(1, 0, lambda: e.wait(vm=("x", 7)))
    for k_ in range(8):
        kc = 5 + k_ // 4; q4 = k_ % 4
        P(1, k_ // 4, f"ds_read_b128 {ar(4 * (4*kc + q4))}, v{20+q4} offset:{(kc - 5) * 4096}", ("lds", ("xf", 4*kc + q4)))
    P(1, 2, f"s_sub_u32 s{sXB}, s{sXB3}, s{sXB2}")
    for q4 in range(4): P(1, 2, f"v_add_u32 v{20+q4}, s{sXB}, v{20+q4}")
    for q4 in range(4): P(1, 3, f"ds_read_b128 {ar(4 * (28 + q4))}, v{20+q4}", ("lds", ("xf", 28 + q4)))
    PRE(1, 6, lambda: e.wait(lg=("xf", 31)))
    PRE(2, 8, lambda: e.wait(vm=("x", 8)))
    for q4 in range(4): P(2, 8, f"ds_read_b128 {ar(4 * (32 + q4))}, v{20+q4}", ("lds", ("xf", 32 + q4)))
    P(4, 34, f"buffer_atomic_or v{vMISC}, v{vPOLL}, {SRD(S_DBG)}, 0 offen", "clrbit")
    P(8, 24, f"buffer_load_dword v{vPOLL}, v{vZERO}, {SRD(S_DBG)}, s{sFoffP} offen sc1", "pollc")
    def chk_c():
        e.wait(vm="pollc"); e(f"v_readfirstlane_b32 s{sE}, v{vPOLL}\ns_nop 3\ns_bitcmp1_b32 s{sE}, s{sFbitP}\ns_cbranch_scc0 K1_spinc\nK1_spinc_done:")
    PRE(11, 6, chk_c)
    if "notouch" not in ABL:
        tt = [f"s_lshr_b32 s{sE}, s2, 3", f"s_and_b32 s{sE}, s{sE}, 7", f"s_mul_i32 s{sE}, s{sE}, 36", f"s_mul_i32 s{sC}, s{sW}, 9",
              f"s_add_u32 s{sE}, s{sE}, s{sC}", f"s_lshl_b32 s{sE}, s{sE}, 7", f"v_lshlrev_b32 v{vMISC}, 3, v{vL16}",
              f"v_add_u32 v{vMISC}, s{sE}, v{vMISC}", f"v_cmp_gt_u32 vcc, 144, v{vL16}", f"v_mov_b32 v{vPOLL}, 0x7ff00000", "s_nop 0",
              f"v_cndmask_b32 v{vMISC}, v{vPOLL}, v{vMISC}, vcc"]
        for k_, s_ in enumerate(tt): P(12, 26 + k_ // 2, s_)
        P(13, 27, f"buffer_load_dword a{aDUM}, v{vMISC}, {SRD(S_T)}, s{sTrow} offen", "touch")
        P(16, 26, f"s_cmp_eq_u32 s{sJ}, 0\ns_cselect_b32 s{sTCH}, {8 * 32 * ROWD}, 0\ns_cmp_gt_u32 s{sJ}, 1\ns_cselect_b32 s{sTCH}, 0x7ff00000, s{sTCH}")
        P(16, 27, f"buffer_load_dword a{aDUM}, v{vMISC}, {SRD(S_SD)}, s{sTCH} offen", "touch")
    if "notouch" not in ABL and "nomt" not in ABL:
        mt = [f"s_lshr_b32 s{sE}, s{sW}, 1\ns_lshl_b32 s{sE}, s{sE}, 3\ns_add_u32 s{sE}, s{sE}, {KA_CS}\ns_load_dwordx2 s[{S_DBG}:{S_DBG+1}], s[0:1], s{sE}",
              f"v_lshrrev_b32 v24, 4, v{vL16}", f"v_mul_u32_u24 v25, 57, v24", f"v_lshrrev_b32 v25, 9, v25",
              f"v_mul_u32_u24 v26, 9, v25", f"v_sub_u32 v26, v24, v26", f"s_lshl_b32 s{sE}, s2, 2", f"s_and_b32 s{sC}, s{sW}, 1",
              f"s_lshl_b32 s{sC}, s{sC}, 1", f"s_add_u32 s{sE}, s{sE}, s{sC}", f"v_add_u32 v25, s{sE}, v25", f"v_lshlrev_b32 v25, 12, v25",
              f"v_lshl_add_u32 v25, v26, 7, v25", f"v_mov_b32 v26, 0x7ff00000", f"v_cmp_gt_u32 vcc, 18, v24", "s_nop 1",
              f"v_cndmask_b32 v25, v26, v25, vcc"]
        for k_, s_ in enumerate(mt): P(25, 8 + k_, s_)
        P(25, 34, f"s_and_b32 s{S_DBG+1}, s{S_DBG+1}, 0xffff\ns_mov_b32 s{S_DBG+2}, {2048 * 4096}")
        MT.append(f"buffer_load_dword a{aDUM}, v25, {SRD(S_DBG)}, 0 offen")
    if "nocpf" not in ABL:
        c2 = [f"s_getpc_b64 s[{4}:{5}]\nK1_pc3:\ns_sub_u32 s4, s4, K1_pc3-K1_pc\ns_subb_u32 s5, s5, 0\ns_mov_b32 s{sCP}, s4\ns_and_b32 s{sCP+1}, s5, 0xffff\ns_mov_b32 s{sCP+2}, K1_codeend-K1_pc\ns_mov_b32 s{sCP+3}, 0x20000",
              f"s_lshr_b32 s{sE}, s2, 3", f"s_mul_i32 s{sE}, s{sE}, {CPF_LINES}", f"v_lshrrev_b32 v192, 4, v{vL16}", f"v_add_u32 v193, s{sE}, v192",
              f"v_lshlrev_b32 v193, 7, v193", f"v_mov_b32 v194, 0x7ff00000", f"v_cmp_gt_u32 vcc, {CPF_LINES}, v192", "s_nop 1", f"v_cndmask_b32 v193, v194, v193, vcc"]
        for k_, s_ in enumerate(c2): P(11, 23 + k_, s_)
        P(11, 34, f"s_cmp_eq_u32 s{sW}, 0\ns_cselect_b32 s{sE}, 0, 0x7ff00000")
        P(11, 35, f"buffer_load_dword a{aDUM}, v193, {SRD(sCP)}, s{sE} offen", "touch")
    hs = [(t, h) for t in range(9) for h in range(2)]
    hplan = [(6, 25), (7, 25), (8, 25), (9, 25), (10, 25), (11, 25), (12, 25), (13, 25), (14, 25), (14, 31), (15, 25), (15, 31),
             (17, 23), (17, 29), (17, 34), (18, 23), (18, 33), (19, 4)]
    for (t, h), (u, n) in zip(hs, hplan):
        a, b = h_store(t, h); P(u, n, a); P(u, n, b, ("hst", t))
        need = ("h", t)
        PRE(u, n, (lambda need=need: drain_until(need)))
    def mkflag(tag, val):
        def f():
            e.wait(vm=tag); e(f"v_mov_b32 v{vMISC}, {val}")
            e.vmem(f"buffer_store_dword v{vMISC}, v{vOB}, {SRD(S_WS)}, 0 offen sc1", ("flag", val))
        return f
    PRE(19, 9, mkflag(("hst", 7), 1)); PRE(20, 0, mkflag(("hst", 8), 2))
    def mkchk(tag, val, lbl):
        def f():
            e.wait(vm=tag)
            e(f"v_readfirstlane_b32 s{sE}, v{vPOLL}\ns_nop 3\ns_cmp_ge_u32 s{sE}, {val}\ns_cbranch_scc0 {lbl}\n{lbl}_done:")
        return f
    P(20, 22, f"buffer_load_dword v{vPOLL}, v{vZERO}, {SRD(S_WS)}, s{sOBp} offen sc1", "poll1")
    PRE(21, 12, mkchk("poll1", 1, "K1_spin"))
    P(22, 0, f"buffer_load_dword v{vPOLL}, v{vZERO}, {SRD(S_WS)}, s{sOBp} offen sc1", "poll2")
    PRE(22, 33, mkchk("poll2", 2, "K1_spin2"))
    hpl = [(21, 21 + 2*k_) for k_ in range(8)] + [(22, 21 + 2*k_) for k_ in range(8)] + [(23, 1), (23, 3)]
    for k_, (u, n) in enumerate(hpl):
        P(u, min(n, 35), f"s_add_u32 s{sD}, s{sHXp}, {(k_ * 1024) & ~4095}")
        P(u, min(n, 35), f"buffer_load_dwordx4 {ar(aHP + 4*k_)}, v{vL16}, {SRD(S_WS)}, s{sD} offen offset:{(k_ * 1024) & 4095} sc1", ("hp", k_))
    PRE(U_S, 17, lambda: e.wait(vm=("hp", 7)))
    PRE(U_S, 25, lambda: e.wait(vm=("hp", 15)))
    PRE(U_S, 33, lambda: e.wait(vm=("hp", 17)))
    for k_, s_ in enumerate(T_read_addr((U_T1 % 4) * SLOT)): P(21, 8 + k_ // 2, s_)
    pst = [f"v_bfe_u32 v20, v{vL16}, 4, 1", f"v_mul_u32_u24 v20, {PS}, v20" if PS < (1 << 24) else None,
           f"v_bfe_u32 v21, v{vL16}, 5, 4", f"s_and_b32 s{sE}, s{sI}, 1", f"s_lshl_b32 s{sE}, s{sE}, 4", f"v_add_u32 v21, s{sE}, v21",
           f"v_lshlrev_b32 v21, 4, v21", f"v_and_b32 v22, 512, v{vL16}", f"v_add3_u32 v{vPST}, v20, v21, v22"]
    for k_, s_ in enumerate(pst): P(22, 8 + k_, s_)
    if DIAG and "probe" in ABL:
        def mk(idx):
            def f():
                e(f"s_memrealtime s[96:97]\ns_waitcnt lgkmcnt(0)\nv_writelane_b32 v{vDIAG}, s96, {idx}")
            return f
        pts = PROBE_PTS
        for k_, (u_, n_) in enumerate(pts):
            pre.setdefault((u_, n_), []).insert(0, mk(44 + k_))
    if "nocpf" not in ABL and K2_LABELS:
        k2s, k2e = K2_LABELS
        cp = [f"s_getpc_b64 s[{S_T}:{S_T+1}]\nK1_pc2:\ns_add_u32 s{S_T}, s{S_T}, {k2s}-K1_pc2\ns_addc_u32 s{S_T+1}, s{S_T+1}, 0\ns_and_b32 s{S_T+1}, s{S_T+1}, 0xffff\ns_mov_b32 s{S_T+2}, {k2e}-{k2s}",
              f"s_lshr_b32 s{sE}, s2, 3", f"s_lshl_b32 s{sE}, s{sE}, 9", f"v_lshlrev_b32 v20, 3, v{vL16}", f"v_add_u32 v20, s{sE}, v20",
              f"v_mov_b32 v21, 0x7ff00000", f"v_cmp_gt_u32 vcc, 64, v{vL16}", "s_nop 1", f"v_cndmask_b32 v20, v21, v20, vcc"]
        for k_, s_ in enumerate(cp): P(23, 4 + k_, s_)
        P(23, 24, f"buffer_load_dword a{aDUM}, v20, {SRD(S_T)}, 0 offen", "touch")
    a_, w_ = fold_write_ops()
    def t_write():
        for s_ in a_: e(s_)
        e("s_nop 7")
        for s_ in w_: e.lds(s_, "fw")
    PRE(U_S, 0, t_write)
    fo = []
    fo += fold_setup_ops() + fold_mask_ops()
    add(fo, G(24, 0))
    add([("s_nop 0", 1, "fsetup")], G(24, 0)); queue[-1].deps = [(queue[-2], 1)]
    PRE(24, 9, lambda: drain_until("fsetup"))
    frs = fold_reads()
    for k_, (s_, tg) in enumerate(frs): P(24, 9 + k_, s_, ("lds", tg))
    PRE(24, 19, lambda: e.wait(lg=("fr", 3, 1)))
    add(z_addr_ops(), G(24, 17)); za_last = queue[-1]; add(fold_math(), G(24, 19))
    zs = z_store_ops()
    add([("s_nop 0", 1, "zready")], G(24, 19)); queue[-1].deps = [(queue[-2], 1), (za_last, 1)]
    def z_out():
        drain_until("zready")
        for s_, k_ in zs: (e.vmem(s_, "zst") if k_ else e(s_))
        e(z512_ops("K1_noz512"))
    PRE(25, 2, z_out)
    apx = {}
    def apx_dma():
        appendix_dma(e); apx["vmidx"] = len(e.vm)
    PRE(25, 6, apx_dma)
    for k_, s_ in enumerate(T_read_addr(APX_SLOT * SLOT)): P(26, 1 + k_ // 2, s_)
    if "oldp" in ABL:
        add(epi_ops(8), G(25, 4))
        pplan = {8: [(25, 12), (25, 17)], 0: [(25, 22), (25, 27)], 1: [(25, 32), (26, 6)], 2: [(26, 12), (26, 18)], 3: [(26, 24), (26, 30)],
                 4: [(27, 8), (27, 14)], 5: [(27, 20), (27, 26)]}
    else:
        add(epi_ops(8), G(24, 3))
        pplan = {8: [(24, 24), (24, 31)], 0: [(25, 12), (25, 19)], 1: [(25, 26), (25, 33)], 2: [(26, 8), (26, 16)], 3: [(26, 24), (26, 32)],
                 4: [(27, 8), (27, 15)], 5: [(27, 22), (27, 29)]}
    for q in range(3): add(epi_ops(2*q), G(25 + q, 4)); add(epi_ops(2*q + 1), G(25 + q, 4))
    for t, pl in pplan.items():
        for h, (u, n) in enumerate(pl):
            a, b = p_store(t, h); P(u, n, a); P(u, n, b, ("pst", t))
            PRE(u, n, (lambda t=t: drain_until(("e", t))))

    def slot(u, n, last_path=None):
        gs = G(u, n)
        if gs in deadlines:
            n0 = len(e.l)
            for tg_ in deadlines[gs]: drain_until(tg_)
            if VERBOSE: print("deadline", u, n, "forced", len(e.l) - n0)
        cost = 0
        for fn in pre.get((u, n), []): fn()
        nxt = u + 1 < NUNIT or last_path == "A"
        if n % 3 == 0:
            if n == 33 and nxt:
                nvm = e.vm_count([("u", u + 1)]) if u + 1 < NUNIT else len(e.vm) - apx["vmidx"]
                e(f"s_waitcnt vmcnt({min(nvm, 63)}) lgkmcnt(0)")
                settle(e); e("s_barrier"); stamp(e, 4 + u)
                if u + 1 < NUNIT: set_work(u + 1)
            else:
                e.wait(lg=[("f", gs), ("f", gs + 1), ("f", gs + 2)])
            cost += 1
        g16 = "g16" in ABL and unit_desc(u)["kind"] == "GUp"
        d16 = "d16" in ABL and unit_desc(u)["kind"] in ("Dp", "S", "GUs", "T")
        if g16 or d16:
            d = unit_desc(u)
            txt = mfma(u, n)
            import re
            m_ = re.match(r"v_mfma_f32_32x32x16_bf16 v\[(\d+):(\d+)\], (\S+), (\S+), (\S+)", txt)
            acc0 = int(m_.group(1)); A_ = m_.group(3).rstrip(","); B_ = m_.group(4).rstrip(","); first = m_.group(5) == "0"
            sub = [(n >> 1) % 2 * 8 + z * 4 for z in range(2)]
            def mf(z):
                a4 = acc0 + sub[z]
                e(f"v_mfma_f32_16x16x32_bf16 v[{a4}:{a4+3}], {A_}, {B_}, {'0' if (first and n < 4) else 'v[%d:%d]' % (a4, a4+3)}")
            items = []
            if n <= 29 and (d16 or n % 2 == 0):
                gn2 = 36 * u + n + 6; b = aFR + 4 * (gn2 % 8)
                for (do, nr, ins, va, off) in frag_reads(u, n + 6): items.append((f"{ins} {ar(b + do, nr)}, v{va} offset:{off}", ("lds", ("f", gn2))))
            elif n <= 29:
                e.lg.append(("f", 36 * u + n + 6))
            if n >= 33 and nxt:
                for k2 in (2*(n - 33), 2*(n - 33) + 1):
                    gn2 = 36 * (u + 1) + k2; b = aFR + 4 * (gn2 % 8)
                    for (do, nr, ins, va, off) in frag_reads(u + 1, k2): items.append((f"{ins} {ar(b + do, nr)}, v{va} offset:{off}", ("lds", ("f", gn2))))
            items += [x for x in post.get((u, n), []) if x[0] is not None]
            def put(it):
                s_, tg = it
                if isinstance(tg, tuple) and tg[0] == "lds": e.lds(s_, tg[1])
                elif tg is not None: e.vmem(s_, tg)
                else: e(s_)
            half = (len(items) + 1) // 2
            mf(0)
            for it in items[:half]: put(it)
            if n != 32: fill(gs, 2 - half - (1 if n % 3 == 0 else 0))
            mf(1)
            for it in items[half:]: put(it)
            if n != 32: fill(gs, 2 - (len(items) - half))
            return
        e(mfma(u, n))
        if n <= 29: cost += reads(u, n + 6)
        elif n >= 33 and nxt:
            cost += reads(u + 1, 2*(n - 33)); cost += reads(u + 1, 2*(n - 33) + 1)
        for s_, tg in post.get((u, n), []):
            if s_ is None: continue
            if isinstance(tg, tuple) and tg[0] == "lds": e.lds(s_, tg[1])
            elif tg is not None: e.vmem(s_, tg)
            else: e(s_)
            cost += 1
        if n == 32: return
        fill(gs, 5 - cost)
    for u in range(NUNIT):
        for n in range(36):
            if u == NUNIT - 1 and n == 33: break
            slot(u, n)
    e(f"s_cmp_gt_u32 s{sJ}, 2\ns_cbranch_scc1 K1_tailN")
    sv_vm, sv_lg, sv_pend = list(e.vm), list(e.lg), getattr(e, "pending_stamp", None)
    assert not queue, [o.text for o in queue]
    for n in (33, 34, 35): slot(NUNIT - 1, n, "A")
    add(epi_ops(6), G(NUNIT, 3)); add(epi_ops(7), G(NUNIT, 3))
    for t, pl in {6: [(NUNIT, 10), (NUNIT, 16)], 7: [(NUNIT, 22), (NUNIT, 28)]}.items():
        for h, (u, n) in enumerate(pl):
            a, b = p_store(t, h); P(u, n, a); P(u, n, b, ("pst", t))
            PRE(u, n, (lambda t=t: drain_until(("e", t))))
    for n in range(36):
        gs = G(NUNIT, n)
        cost = 0
        for fn in pre.get((NUNIT, n), []): fn()
        if n % 3 == 0: e.wait(lg=[("f", gs), ("f", gs + 1), ("f", gs + 2)]); cost += 1
        e(mfma(NUNIT, n))
        if n <= 29: cost += reads(NUNIT, n + 6)
        for s_, tg in post.get((NUNIT, n), []):
            (e.vmem(s_, tg) if tg is not None else e(s_)); cost += 1
        fill(gs, 5 - cost)
    appendix_post(e)
    e("s_branch K1_fin")
    e("K1_tailN:")
    e.vm, e.lg = sv_vm, sv_lg; e.pending_stamp = sv_pend
    for n in (33, 34, 35): slot(NUNIT - 1, n, "N")
    e("s_nop 7\ns_nop 7")
    for t in (6, 7):
        for o in epi_ops(t): e(o[0])
        for h in range(2):
            a, b = p_store(t, h); e(a); e.vmem(b, ("pst", t))
    for s_ in MT: e.vmem(s_, "touch")

APX_SLOT = 0
def appendix_dma(e):
    sb = APX_SLOT * SLOT
    e(f"s_cmp_gt_u32 s{sJ}, 2\ns_cbranch_scc1 K1_apx_nodma")
    for s_ in T_dma_addr(None): e(s_)
    e(f"""
    s_cmp_eq_u32 s{sJ}, 2
    s_cselect_b32 s{S_T}, s{S_GW}, s{S_SD}
    s_cselect_b32 s{S_T+1}, s{S_GW+1}, s{S_SD+1}
    s_mov_b32 s{sF}, {576 * ROWD}
    s_cselect_b32 s{S_T+2}, 1152, s{sF}
    s_cmp_eq_u32 s{sJ}, 0
    s_cselect_b32 s{sCcol}, 8, 0
    s_mov_b32 s{sCS}, 1
    s_mul_i32 s{sTrow}, s{sCcol}, {32 * ROWD}
    v_add_u32 v21, {288 * ROWD}, v{vL16}
    """)
    u = U_T1
    for gi, (pre_, loads) in enumerate(dma_groups(u, slot=APX_SLOT)):
        for s_ in pre_: e(s_)
        e("s_nop 0")
        for q, s_ in enumerate(loads):
            special = (gi < 2 and q == 0) or gi == 2
            if not special: e(s_); continue
            lbl = f"K1_apx_n{gi}"
            e(f"s_cmp_eq_u32 s{sJ}, 1\ns_cbranch_scc0 {lbl}")
            if gi == 2: e(f"s_cmp_eq_u32 s{sW}, 0\ns_cbranch_scc0 {lbl}")
            st = sT0 + gi
            e(f"s_mov_b64 exec, 0xff\nbuffer_load_dwordx4 v21, {SRD(S_CD)}, s83 offen lds" if False else "")
            e(f"s_mov_b64 exec, 0xff")
            e(f"buffer_load_dwordx4 v21, {SRD(S_CD)}, s{st} offen lds")
            e(f"s_not_b64 exec, exec")
            e(s_)
            e(f"s_mov_b64 exec, -1\ns_branch {lbl}_d\n{lbl}:")
            e(s_)
            e(f"{lbl}_d:")
    e("K1_apx_nodma:")

def appendix_post(e):
    e("s_nop 7\ns_nop 7")
    a_, w_ = fold_write_ops()
    for s_ in a_ + w_: e(s_)
    e(f"s_cmp_eq_u32 s{sJ}, 2\ns_cbranch_scc1 K1_gate")
    e("s_waitcnt lgkmcnt(0)\ns_barrier")
    for s_ in fold_setup_ops() + fold_mask_ops(): e(s_)
    for s_, tg in fold_reads(): e(s_)
    vS = 76; vE = 80
    e(f"s_and_b32 s{sE}, s{sW}, 1")
    neg = {0: (), 1: (1,), 2: (1,), 3: ()}
    e(f"""
    v_bfe_u32 v84, v{vL16}, 4, 5
    s_cmp_eq_u32 s{sJ}, 1
    s_cselect_b32 s{sF}, 0, -1
    v_cmp_eq_u32 vcc, s{sF}, v84
    s_mov_b64 s[98:99], vcc
    """ if False else f"""
    v_bfe_u32 v84, v{vL16}, 4, 5
    s_cmp_eq_u32 s{sJ}, 1
    s_cselect_b32 s{sF}, 0, -1
    v_cmp_eq_u32 vcc, s{sF}, v84
    """)
    for g in range(4):
        if g in (1, 2):
            e(f"s_cmp_eq_u32 s{sE}, 1\ns_cselect_b32 s{sF}, 0xbf800000, 1.0")
        else:
            e(f"s_mov_b32 s{sF}, 1.0")
        e(f"v_mov_b32 v{vS+g}, s{sSG+g}\nv_mov_b32 v85, s{sF}\nv_cndmask_b32 v{vS+g}, v{vS+g}, v85, vcc")
    e(f"s_cmp_eq_u32 s{sE}, 0\ns_cselect_b32 s{sF}, 1.0, 0\nv_mov_b32 v85, s{sF}")
    e(f"v_mov_b32 v{vE}, s{sEA}\nv_mov_b32 v{vE+1}, s{sEB}\nv_cndmask_b32 v{vE}, v{vE}, v85, vcc\nv_cndmask_b32 v{vE+1}, v{vE+1}, v85, vcc")
    e(f"v_mov_b32 v86, 0\nv_mov_b32 v87, -1\nv_cndmask_b32 v86, v86, v87, vcc")
    e("s_waitcnt lgkmcnt(0)")
    for s_ in fold_math([f"v{vS+g}" for g in range(4)]): e(s_)
    for s_ in z_addr_ops(): e(s_)
    e(f"""
    v_and_b32 v88, 512, v{vL16}
    v_add_u32 v88, {9 * 33 * 1024}, v88
    v_mov_b32 v89, 0x7ff00000
    v_cmp_eq_u32 vcc, -1, v86
    s_nop 1
    v_cndmask_b32 v88, v89, v88, vcc
    s_sub_u32 s{sF}, s{sC}, {18 * 33 * 1024}  ; same (p, ks) in the cosine matrix
    """)
    e(f"buffer_store_dwordx4 {vr(vP)}, v88, {SRD(S_WS)}, s{sF} offen{ZF}")
    for q in range(4): e(f"v_cndmask_b32 v{vO+q}, v{vP+q}, v{vZERO}, vcc")
    for q in range(4): e(f"v_cndmask_b32 v{vO+4+q}, v{vZERO}, v{vZERO}, vcc")
    e(f"buffer_store_dwordx4 {vr(vO)}, v{vFA}, {SRD(S_WS)}, s{sC} offen{ZF}")
    e(f"buffer_store_dwordx4 {vr(vO+4)}, v88, {SRD(S_WS)}, s{sC} offen{ZF}")
    for q in range(4): e(f"v_xor_b32 v{vM+q}, s{sD}, v{vP+q}")
    e(f"buffer_store_dwordx4 {vr(vM)}, v{vFB}, {SRD(S_WS)}, s{sC} offen{ZF}")
    e(f"""
    s_lshr_b32 s{sE}, s{sW}, 1
    s_or_b32 s{sE}, s{sE}, s{sI}
    s_cmp_eq_u32 s{sE}, 0
    s_cbranch_scc0 K1_fin
    v_mul_f32 v{vO}, v{vE}, v{vR + 16}
    v_fma_f32 v{vO}, v{vE+1}, v{vR + 24}, v{vO}
    v_cmp_gt_u32 vcc, 512, v{vL16}
    v_mov_b32 v{vO+1}, 0
    s_nop 0
    v_cndmask_b32 v{vO}, v{vO+1}, v{vO}, vcc
    v_cvt_pk_bf16_f32 v{vO+4}, v{vO}, v{vO+1}
    v_mov_b32 v{vO+5}, 0
    v_mov_b32 v{vO+6}, 0
    v_mov_b32 v{vO+7}, 0
    s_add_u32 s{sE}, s{sC}, {32 * 1024}
    s_add_u32 s{sF}, s{sF}, {32 * 1024}
    v_cmp_eq_u32 vcc, -1, v86
    s_nop 1
    v_cndmask_b32 v{vM}, v{vO+4}, v{vZERO}, vcc
    v_mov_b32 v{vM+1}, 0
    v_mov_b32 v{vM+2}, 0
    v_mov_b32 v{vM+3}, 0
    buffer_store_dwordx4 {vr(vO+4)}, v88, {SRD(S_WS)}, s{sF} offen{ZF}
    buffer_store_dwordx4 {vr(vM)}, v{vFA}, {SRD(S_WS)}, s{sE} offen{ZF}
    v_mov_b32 v{vR}, 0
    v_mov_b32 v{vR+1}, 0
    v_mov_b32 v{vR+2}, 0
    v_mov_b32 v{vR+3}, 0
    buffer_store_dwordx4 {vr(vR)}, v88, {SRD(S_WS)}, s{sE} offen{ZF}
    s_nop 1
    v_xor_b32 v{vO+4}, s{sD}, v{vO+4}
    s_nop 0
    buffer_store_dwordx4 {vr(vO+4)}, v{vFB}, {SRD(S_WS)}, s{sE} offen{ZF}
    s_branch K1_fin
    K1_gate:
    """)
    e(f"""
    v_bfe_u32 v18, v{vL16}, 4, 5
    v_lshrrev_b32 v19, 3, v18
    v_lshlrev_b32 v19, 10, v19
    v_bfe_u32 v20, v18, 2, 1
    v_lshl_add_u32 v19, v20, 9, v19
    v_and_b32 v20, 3, v18
    v_lshl_add_u32 v19, v20, 2, v19
    s_lshl_b32 s{sE}, s{sW}, 12
    s_add_u32 s{sE}, s{sE}, {FOLD}
    v_add_u32 v19, s{sE}, v19
    s_waitcnt lgkmcnt(0)
    ds_read_b32 v22, v19
    """)
    rowcalc(e, 19, 18, sW)
    e(f"""
    v_lshlrev_b32 v19, 2, v19
    v_mov_b32 v20, 0x7ff00000
    v_cmp_gt_u32 vcc, 512, v{vL16}
    s_waitcnt lgkmcnt(0)
    v_mul_f32 v21, {NLOG2E}, v22
    v_exp_f32 v21, v21
    v_cndmask_b32 v19, v20, v19, vcc
    v_add_f32 v21, 1.0, v21
    v_rcp_f32 v21, v21
    s_mov_b32 s{sE}, {WS_G}
    s_nop 0
    buffer_store_dword v21, v19, {SRD(S_WS)}, s{sE} offen{ZF}
    """)

def gen_k1(name="k1_kernel"):
    e = Emit()
    e.l.append(kbegin(name).rstrip("\n"))
    prologue(e)
    gen_main(e)
    e("K1_fin:")
    if DIAG: e("s_waitcnt lgkmcnt(0)"); settle(e); stamp(e, 40); e("s_waitcnt lgkmcnt(0)"); settle(e)
    e("s_waitcnt vmcnt(0)")
    if DIAG:
        stamp(e, 41); e("s_waitcnt lgkmcnt(0)"); settle(e)
        e(f"s_lshl_b32 s{sA}, s2, 2\ns_add_u32 s{sA}, s{sA}, s{sW}\ns_lshl_b32 s{sA}, s{sA}, 8\ns_add_u32 s{sA}, s{sA}, {WS_DIAG}")
        e(f"v_lshrrev_b32 v14, 2, v{vL16}")
        e(f"buffer_store_dword v{vDIAG}, v14, {SRD(S_WS)}, s{sA} offen")
        e("s_waitcnt vmcnt(0)")
    e("K1_end:")
    e("s_endpgm")
    for nm, srd_, so, test in (("K1_spin", S_WS, sOBp, f"s_cmp_ge_u32 s{sE}, 1"), ("K1_spin2", S_WS, sOBp, f"s_cmp_ge_u32 s{sE}, 2"), ("K1_spinc", S_DBG, sFoffP, f"s_bitcmp1_b32 s{sE}, s{sFbitP}")):
        e(f"""
        {nm}:
        s_mov_b32 s{sD}, 0
        {nm}_loop:
        s_sleep 4
        buffer_load_dword v{vPOLL}, v{vZERO}, {SRD(srd_)}, s{so} offen sc1
        s_waitcnt vmcnt(0)
        v_readfirstlane_b32 s{sE}, v{vPOLL}
        s_nop 3
        {test}
        s_cbranch_scc1 {nm}_done
        s_add_u32 s{sD}, s{sD}, 1
        s_cmp_lt_u32 s{sD}, 0x40000
        s_cbranch_scc1 {nm}_loop
        s_branch {nm}_done
        """)
    e("K1_codeend:")
    return e.text() + kdesc(name, 256, 252, 102)
if __name__ == "__main__":
    print(gen_k1())
```

```python
from common import *
S_CS, S_SS, S_WS, S_OUT = 8, 12, 16, 20
sW, sP, sFAM, sBETA, sE, sCSW, sGOUT, sS0, sV = 32, 33, 34, 35, 36, 37, 38, 39, 66
MB = 36864
XCH = 2 * MB
CNT = XCH + 6 * 4096
LDS_BYTES = CNT + 64
NTHREADS = 768
PS = 8 * 18 * 2048
DIAG = False
ABL = set()
WS_DIAG2 = 84 << 20
def vr(b, n=4): return f"v[{b}:{b+n-1}]"
def SRD(s): return f"s[{s}:{s+3}]"

def gen_k2(name="k2_kernel"):
    e = Emit()
    e.l.append(kbegin(name).rstrip("\n"))
    DG = 159
    def st(idx):
        if DIAG: e(f"s_memrealtime s[70:71]\ns_waitcnt lgkmcnt(0)\nv_writelane_b32 v{DG}, s70, {idx}")
    e(f"""
    s_cmp_ge_u32 s2, 198
    s_cbranch_scc1 K2_end
    s_load_dwordx2 s[{S_CS}:{S_CS+1}], s[0:1], {KA_CS}
    s_load_dwordx2 s[{S_SS}:{S_SS+1}], s[0:1], {KA_SS}
    s_load_dwordx2 s[{S_WS}:{S_WS+1}], s[0:1], {KA_WS}
    s_load_dwordx2 s[{S_OUT}:{S_OUT+1}], s[0:1], {KA_OUT}
    s_getpc_b64 s[24:25]
    K2_pc:
    s_and_b32 s25, s25, 0xffff
    s_mov_b32 s26, K2_codeend-K2_pc
    s_mov_b32 s27, 0x20000
    s_lshr_b32 s40, s2, 3
    s_lshl_b32 s40, s40, 2
    v_add_u32 v3, s40, v0
    v_lshlrev_b32 v3, 7, v3
    v_mov_b32 v4, 0x7ff00000
    v_cmp_gt_u32 vcc, 4, v0
    s_nop 1
    v_cndmask_b32 v3, v4, v3, vcc
    buffer_load_dword v158, v3, s[24:27], 0 offen
    v_lshrrev_b32 v2, 6, v0
    v_and_b32 v0, 63, v0
    v_readfirstlane_b32 s{sW}, v2
    v_lshlrev_b32 v1, 4, v0
    s_and_b32 s{sP}, s2, 1
    s_bfe_u32 s40, s2, 0x10001           ; eh
    s_bfe_u32 s{sFAM}, s2, 0x10002
    s_lshr_b32 s41, s2, 3                ; q
    s_and_b32 s{sBETA}, s41, 7
    s_lshr_b32 s41, s41, 3               ; 0..2
    s_mul_i32 s40, s40, 3
    s_add_u32 s40, s40, s41              ; E group
    s_sub_u32 s42, s2, 192
    s_cmp_ge_u32 s2, 192
    s_cselect_b32 s40, s42, s40
    s_cselect_b32 s{sP}, 0, s{sP}
    s_cselect_b32 s{sBETA}, 0, s{sBETA}
    s_cselect_b32 s{sFAM}, 2, s{sFAM}
    s_cmp_ge_u32 s{sW}, 6
    s_cselect_b32 s41, 6, 0
    s_sub_u32 s{sV}, s{sW}, s41          ; v = w mod 6
    s_mul_i32 s40, s40, 3
    s_lshr_b32 s41, s{sV}, 1
    s_add_u32 s{sE}, s40, s41            ; E
    s_and_b32 s{sCSW}, s{sV}, 1
    s_sub_u32 s41, 3, s{sFAM}
    s_cmp_eq_u32 s{sCSW}, 0
    s_cselect_b32 s{sGOUT}, s{sFAM}, s41
    s_add_u32 s41, s{sCSW}, 2
    s_cmp_eq_u32 s{sFAM}, 2
    s_cselect_b32 s{sGOUT}, s41, s{sGOUT}
    s_lshl_b32 s{sS0}, s{sBETA}, 6
    s_add_u32 s{sS0}, s{sS0}, s{sP}      ; 64 beta + p
    """)
    if DIAG: e(f"v_mov_b32 v{DG}, 0"); st(0)
    e(f"v_mov_b32 v8, {CNT}\nv_mov_b32 v9, 0\nds_write_b32 v8, v9\ns_waitcnt lgkmcnt(0)\ns_barrier")
    e(f"s_cmp_ge_u32 s{sW}, 6\ns_cbranch_scc1 K2_fin")
    e("v_lshrrev_b32 v3, 3, v0\nv_and_b32 v4, 7, v0")
    e(f"s_cmp_eq_u32 s{sFAM}, 1\ns_cselect_b32 s42, 1024, 0\ns_cselect_b32 s43, -1, 1")
    e(f"s_cmp_eq_u32 s{sFAM}, 2\ns_cselect_b32 s42, 512, s42\ns_cselect_b32 s43, 0, s43")
    for q in range(4):
        e(f"""
        v_add_u32 v5, {8*q}, v3
        v_lshl_add_u32 v6, v5, 1, s{sS0}
        v_mul_lo_u32 v6, v6, s43
        v_add_u32 v6, s42, v6
        v_lshlrev_b32 v6, 12, v6
        v_bfe_u32 v7, v5, 1, 3
        v_xor_b32 v7, v7, v4
        v_lshl_add_u32 v{10+q}, v7, 4, v6
        """)
    e("s_waitcnt lgkmcnt(0)")
    st(1)
    for s_, nb in ((S_CS, 2048 * 4096), (S_SS, 2048 * 4096), (S_WS, WS_BYTES)): srd(e, s_, None, nb)
    e(f"s_mul_i32 s52, s{sW}, 3\ns_lshr_b32 s64, s2, 6")
    for gi in range(3):
        e(f"""
        s_add_u32 s53, s64, {gi}
        s_cmp_ge_u32 s53, 3
        s_cselect_b32 s54, 3, 0
        s_sub_u32 s53, s53, s54
        s_add_u32 s53, s52, s53
        s_cmp_ge_u32 s53, 9
        s_cselect_b32 s54, 9, 0
        s_sub_u32 s54, s53, s54
        s_lshl_b32 s55, s54, 7
        s_lshl_b32 s56, s53, 12
        s_cmp_ge_u32 s53, 9
        s_cbranch_scc1 K2_ss{gi}
        """)
        for q in range(4): e(f"s_add_u32 m0, s56, {1024*q}\ns_nop 0\nbuffer_load_dwordx4 v{10+q}, {SRD(S_CS)}, s55 offen lds")
        e(f"s_branch K2_dn{gi}\nK2_ss{gi}:")
        for q in range(4): e(f"s_add_u32 m0, s56, {1024*q}\ns_nop 0\nbuffer_load_dwordx4 v{10+q}, {SRD(S_SS)}, s55 offen lds")
        e(f"K2_dn{gi}:")
        for q in range(4): e.vm.append("m")
    e(f"""
    s_lshl_b32 s57, s{sP}, 1
    s_add_u32 s57, s57, s{sCSW}
    s_mul_i32 s57, s57, 18
    s_add_u32 s57, s57, s{sE}
    s_mul_i32 s57, s57, {33*1024}
    s_add_u32 s57, s57, {WS_Z}
    """)
    NZ = 20; vZ = 48; acc = 28
    ZR = lambda n: vZ + 4 * (n % NZ)
    def zload(n):
        if n == 32: e(f"s_add_u32 s58, s57, {32 * 1024}")
        elif n % 4 == 0:
            e(f"s_add_u32 s58, s{sBETA}, {n // 4}\ns_and_b32 s58, s58, 7\ns_lshl_b32 s58, s58, 12\ns_add_u32 s58, s58, s57")
        e.vmem(f"buffer_load_dwordx4 {vr(ZR(n))}, v1, {SRD(S_WS)}, s58 offen offset:{(n % 4) * 1024 if n < 32 else 0}", ("z", n))
    for n in range(NZ): zload(n)
    e("""
    v_and_b32 v5, 31, v0
    v_lshrrev_b32 v6, 5, v0
    v_lshrrev_b32 v7, 3, v5
    v_lshlrev_b32 v7, 10, v7
    v_and_b32 v8, 7, v5
    v_lshl_add_u32 v7, v8, 7, v7
    v_bfe_u32 v8, v5, 1, 3
    """)
    e(f"s_mul_i32 s59, s{sCSW}, {MB}\nv_add_u32 v7, s59, v7")
    for q4 in range(4):
        e(f"v_add_u32 v9, {2*q4}, v6\nv_xor_b32 v9, v9, v8\nv_lshl_add_u32 v{10+q4}, v9, 4, v7")
    st(2)
    e.wait(vm="m")
    e(f"""
    v_mov_b32 v8, {CNT}
    v_mov_b32 v9, 1
    s_mov_b64 exec, 1
    ds_add_u32 v8, v9
    s_mov_b64 exec, -1
    s_mov_b32 s67, 0
    K2_mwait:
    ds_read_b32 v9, v8
    s_waitcnt lgkmcnt(0)
    v_readfirstlane_b32 s45, v9
    s_add_u32 s67, s67, 1
    s_cmp_ge_u32 s67, 0x100000
    s_cbranch_scc1 K2_mgo
    s_cmp_lt_u32 s45, 6
    s_cbranch_scc1 K2_mwait
    K2_mgo:
    """)
    st(3)
    FB = lambda n: [16, 20, 24][n % 3]
    def rdM(n):
        if n < 32 and n % 4 == 0:
            e(f"s_add_u32 s63, s{sBETA}, {n // 4}\ns_and_b32 s63, s63, 7\ns_lshl_b32 s63, s63, 12")
        if n < 32:
            e(f"v_add_u32 v9, s63, v{10 + (n & 3)}")
            e.lds(f"ds_read_b128 {vr(FB(n))}, v9", ("b", n))
        else:
            e.lds(f"ds_read_b128 {vr(FB(n))}, v10 offset:{8 * 4096}", ("b", n))
    rdM(0); rdM(1)
    for n in range(33):
        if n + 2 < 33: rdM(n + 2)
        e.wait(vm=("z", n), lg=("b", n))
        e(f"v_mfma_f32_32x32x16_bf16 {vr(acc,16)}, {vr(ZR(n))}, {vr(FB(n))}, {'0' if n == 0 else vr(acc,16)}")
        if n + NZ < 33: zload(n + NZ)
    st(4)
    e(f"""
    s_nop 7
    s_nop 7
    s_lshl_b32 s45, s{sW}, 12
    s_add_u32 s45, s45, {XCH}
    v_add_u32 v2, s45, v1
    """)
    for z in range(4): e(f"ds_write_b128 v2, {vr(acc + 4*z)} offset:{1024*z}")
    e("s_waitcnt lgkmcnt(0)\ns_barrier")
    if DIAG:
        st(6)
        e(f"s_mul_i32 s45, s2, 12\ns_add_u32 s45, s45, s{sW}\ns_lshl_b32 s45, s45, 8\ns_add_u32 s45, s45, {WS_DIAG2}")
        e(f"v_lshlrev_b32 v2, 2, v0\nbuffer_store_dword v{DG}, v2, {SRD(S_WS)}, s45 offen")
    e("s_endpgm")
    e("K2_fin:")
    e.vm = []; e.lg = []
    vP = 16; vROW = 15; vGT = 14
    e("s_waitcnt lgkmcnt(0)")
    st(1)
    for s_, nb in ((S_WS, WS_BYTES), (S_OUT, 2048 * 1152)): srd(e, s_, None, nb)
    e(f"""
    s_lshl_b32 s49, s{sBETA}, 2
    s_add_u32 s49, s49, s{sGOUT}
    s_lshl_b32 s49, s49, 1
    s_add_u32 s49, s49, s{sP}
    s_mul_i32 s49, s49, {PS}
    s_lshl_b32 s50, s{sE}, 11
    s_add_u32 s49, s49, s50
    s_add_u32 s49, s49, {WS_PART}
    """)
    if "nodelay" not in ABL:
        THR = next((int(a[3:]) for a in ABL if a.startswith("thr")), 6)
        e(f"""
        v_mov_b32 v8, {CNT}
        s_mov_b32 s67, 0
        K2_fwait:
        s_sleep 1
        ds_read_b32 v9, v8
        s_waitcnt lgkmcnt(0)
        v_readfirstlane_b32 s45, v9
        s_add_u32 s67, s67, 1
        s_cmp_ge_u32 s67, 0x100000
        s_cbranch_scc1 K2_fgo
        s_cmp_lt_u32 s45, {THR}
        s_cbranch_scc1 K2_fwait
        K2_fgo:
        """)
    for jp in range(8):
        e.vmem(f"buffer_load_dwordx4 {vr(vP + 8*jp)}, v1, {SRD(S_WS)}, s49 offen", ("part", 2*jp))
        e.vmem(f"buffer_load_dwordx4 {vr(vP + 8*jp + 4)}, v1, {SRD(S_WS)}, s49 offen offset:1024", ("part", 2*jp + 1))
        if jp < 7: e(f"s_add_u32 s49, s49, {18 * 2048}")
    e(f"""
    v_and_b32 v5, 31, v0
    v_lshl_add_u32 v8, v5, 1, s{sS0}     ; s
    s_cmp_eq_u32 s{sGOUT}, 0
    s_cselect_b32 s60, 0, 1024
    s_cmp_eq_u32 s{sGOUT}, 3
    s_cselect_b32 s60, 2048, s60
    s_and_b32 s61, s{sGOUT}, 1
    v_sub_u32 v9, s60, v8
    v_add_u32 v{vROW}, s60, v8
    s_cmp_eq_u32 s61, 1
    s_cselect_b64 vcc, -1, 0
    s_lshl_b32 s62, s{sGOUT}, 10
    s_sub_u32 s62, s62, 1536
    v_cndmask_b32 v{vROW}, v{vROW}, v9, vcc
    v_mov_b32 v9, s62
    s_cmp_ge_u32 s{sGOUT}, 2
    s_cselect_b32 s61, 0, -1
    v_cmp_eq_u32 vcc, s61, v8
    s_nop 1
    v_cndmask_b32 v{vROW}, v{vROW}, v9, vcc
    v_lshlrev_b32 v2, 2, v{vROW}
    s_mov_b32 s51, {WS_G}
    """)
    e.vmem(f"buffer_load_dword v{vGT}, v2, {SRD(S_WS)}, s51 offen", "g")
    e(f"""
    v_mul_u32_u24 v12, 1152, v{vROW}
    v_lshrrev_b32 v6, 5, v0
    v_lshl_add_u32 v12, v6, 4, v12
    v_and_b32 v3, 31, v0
    v_mov_b32 v4, 0x7ff00000
    s_or_b32 s44, s{sBETA}, s{sP}
    s_cmp_ge_u32 s{sGOUT}, 2
    s_cselect_b32 s45, s44, 1
    s_cmp_eq_u32 s45, 0
    s_cbranch_scc0 K2_st
    s_cmp_eq_u32 s{sFAM}, 2
    s_cbranch_scc1 K2_onlyc0
    v_cmp_eq_u32 vcc, 0, v3
    s_nop 1
    v_cndmask_b32 v12, v12, v4, vcc
    s_branch K2_st
    K2_onlyc0:
    v_cmp_eq_u32 vcc, 0, v3
    s_nop 1
    v_cndmask_b32 v12, v4, v12, vcc
    K2_st:
    s_lshl_b32 s59, s{sE}, 6
    """)
    st(2)
    st(3)
    BS = lambda r: vP + (r >> 1) + 8 * (r & 1)
    e.wait(vm=("part", 2))
    for q in range(8):
        if q == 4: e.wait(vm=("part", 3))
        e(f"v_lshlrev_b32 v2, 16, v{vP + q}\nv_and_b32 v3, 0xffff0000, v{vP + q}")
        e(f"v_lshlrev_b32 v8, 16, v{vP + 8 + q}\nv_and_b32 v9, 0xffff0000, v{vP + 8 + q}")
        e(f"v_add_f32 v{vP + q}, v2, v8\nv_add_f32 v{vP + 8 + q}, v3, v9")
    for jp in range(2, 8):
        for q in range(8):
            if q % 4 == 0: e.wait(vm=("part", 2*jp + (q >> 2)))
            src = vP + 8 * jp + q
            e(f"v_lshlrev_b32 v2, 16, v{src}\nv_and_b32 v3, 0xffff0000, v{src}")
            e(f"v_add_f32 v{vP + q}, v{vP + q}, v2\nv_add_f32 v{vP + 8 + q}, v{vP + 8 + q}, v3")
    e.wait(vm="g")
    st(4)
    accP, accQ = 96, 112
    e(f"""
    s_and_b32 s46, s{sV}, 6
    s_lshl_b32 s46, s46, 12
    s_add_u32 s46, s46, {XCH}
    v_add_u32 v3, s46, v1
    s_barrier
    """)
    st(5)
    for z in range(4): e(f"ds_read_b128 {vr(accP + 4*z)}, v3 offset:{1024*z}")
    for z in range(4): e(f"ds_read_b128 {vr(accQ + 4*z)}, v3 offset:{4096 + 1024*z}")
    e(f"s_cmp_eq_u32 s{sCSW}, 0\ns_cselect_b32 s45, 1.0, 0xbf800000")
    e("s_waitcnt lgkmcnt(0)")
    for r in range(16):
        e(f"v_fma_f32 v{accP + r}, s45, v{accQ + r}, v{accP + r}")
        e(f"v_sub_f32 v{accP + r}, v{accP + r}, v{BS(r)}")
        e(f"v_fma_f32 v{accP + r}, v{vGT}, v{accP + r}, v{BS(r)}")
    for q in range(8): e(f"v_cvt_pk_bf16_f32 v{vP + q}, v{accP + 2*q}, v{accP + 2*q + 1}")
    e("s_nop 1")
    for z in range(2):
        e(f"v_permlane32_swap_b32 v{vP + 4*z}, v{vP + 2 + 4*z}")
        e(f"v_permlane32_swap_b32 v{vP + 1 + 4*z}, v{vP + 3 + 4*z}")
    e(f"buffer_store_dwordx4 {vr(vP)}, v12, {SRD(S_OUT)}, s59 offen")
    e(f"buffer_store_dwordx4 {vr(vP + 4)}, v12, {SRD(S_OUT)}, s59 offen offset:32")
    if DIAG:
        e("s_waitcnt vmcnt(0)"); st(6)
        e(f"s_mul_i32 s45, s2, 12\ns_add_u32 s45, s45, s{sW}\ns_lshl_b32 s45, s45, 8\ns_add_u32 s45, s45, {WS_DIAG2}")
        e(f"v_lshlrev_b32 v2, 2, v0\nbuffer_store_dword v{DG}, v2, {SRD(S_WS)}, s45 offen")
    e("K2_end:\ns_endpgm\nK2_codeend:")
    return e.text() + kdesc(name, 160, 0, 80)
if __name__ == "__main__":
    print(gen_k2())
```

```python
from common import *
S_CS, S_SS, S_WS, S_OUT = 8, 12, 16, 20
sW, sP, sFAM, sBETA, sE, sCSW, sGOUT, sS0 = 32, 33, 34, 35, 36, 37, 38, 39
NW = 6
MB = 36864
XCH = 2 * MB
R512 = XCH + 6 * 4096
LDS_BYTES = R512
PS = 8 * 18 * 2048
DIAG = False
ABL = set()
WS_DIAG2 = 84 << 20
def vr(b, n=4): return f"v[{b}:{b+n-1}]"
def SRD(s): return f"s[{s}:{s+3}]"

def OF():
    return ' sc1' if 'osc1' in ABL else (' nt' if 'ont' in ABL else (' sc0 sc1' if 'osys' in ABL else ''))
def gen_k2(name="k2_kernel"):
    e = Emit()
    e.l.append(kbegin(name).rstrip("\n"))
    def st(idx):
        if DIAG: e(f"s_memrealtime s[70:71]\ns_waitcnt lgkmcnt(0)\nv_writelane_b32 v255, s70, {idx}")
    e(f"""
    s_cmp_ge_u32 s2, 198
    s_cbranch_scc1 K2_end
    s_load_dwordx2 s[{S_WS}:{S_WS+1}], s[0:1], {KA_WS}
    s_load_dwordx2 s[{S_OUT}:{S_OUT+1}], s[0:1], {KA_OUT}
    s_getpc_b64 s[24:25]
    K2_pc:
    s_and_b32 s25, s25, 0xffff
    s_mov_b32 s26, K2_codeend-K2_pc
    s_mov_b32 s27, 0x20000
    s_lshr_b32 s40, s2, 3
    s_lshl_b32 s40, s40, 2
    v_add_u32 v3, s40, v0
    v_lshlrev_b32 v3, 7, v3
    v_mov_b32 v4, 0x7ff00000
    v_cmp_gt_u32 vcc, 4, v0
    s_nop 1
    v_cndmask_b32 v3, v4, v3, vcc
    buffer_load_dword v252, v3, s[24:27], 0 offen
    v_lshrrev_b32 v2, 6, v0
    v_and_b32 v0, 63, v0
    v_readfirstlane_b32 s{sW}, v2
    v_lshlrev_b32 v1, 4, v0
    s_and_b32 s{sP}, s2, 1
    s_bfe_u32 s40, s2, 0x10001           ; eh
    s_bfe_u32 s{sFAM}, s2, 0x10002
    s_lshr_b32 s41, s2, 3                ; q
    s_and_b32 s{sBETA}, s41, 7
    s_lshr_b32 s41, s41, 3               ; 0..2
    s_mul_i32 s40, s40, 3
    s_add_u32 s40, s40, s41              ; E group
    s_sub_u32 s42, s2, 192
    s_cmp_ge_u32 s2, 192
    s_cselect_b32 s40, s42, s40
    s_cselect_b32 s{sP}, 0, s{sP}
    s_cselect_b32 s{sBETA}, 0, s{sBETA}
    s_cselect_b32 s{sFAM}, 2, s{sFAM}
    s_mul_i32 s40, s40, 3
    s_lshr_b32 s41, s{sW}, 1
    s_add_u32 s{sE}, s40, s41            ; E
    s_and_b32 s{sCSW}, s{sW}, 1          ; cs
    s_sub_u32 s41, 3, s{sFAM}
    s_cmp_eq_u32 s{sCSW}, 0
    s_cselect_b32 s{sGOUT}, s{sFAM}, s41
    s_add_u32 s41, s{sCSW}, 2
    s_cmp_eq_u32 s{sFAM}, 2
    s_cselect_b32 s{sGOUT}, s41, s{sGOUT}
    s_lshl_b32 s{sS0}, s{sBETA}, 6
    s_add_u32 s{sS0}, s{sS0}, s{sP}      ; 64 beta + p
    """)
    if DIAG: e("v_mov_b32 v255, 0"); st(0)
    e(f"s_cmp_eq_u32 s{sFAM}, 1\ns_cselect_b32 s42, 1024, 0\ns_cselect_b32 s43, -1, 1")
    e(f"s_cmp_eq_u32 s{sFAM}, 2\ns_cselect_b32 s42, 512, s42\ns_cselect_b32 s43, 0, s43")
    e(f"""
    v_and_b32 v5, 31, v0
    v_lshl_add_u32 v6, v5, 1, s{sS0}
    v_mul_lo_u32 v6, v6, s43
    v_add_u32 v6, s42, v6
    v_cvt_f32_u32 v10, v6                ; tau
    """)
    e("s_waitcnt lgkmcnt(0)")
    st(1)
    for s_, nb in ((S_WS, WS_BYTES), (S_OUT, 2048 * 1152)): srd(e, s_, None, nb)
    vZ = 120; acc = 24; accC = 40; vP = 56; fb = 16
    vROW = 15; vGT = 14
    e(f"""
    s_lshl_b32 s49, s{sBETA}, 2
    s_add_u32 s49, s49, s{sGOUT}
    s_lshl_b32 s49, s49, 1
    s_add_u32 s49, s49, s{sP}
    s_mul_i32 s49, s49, {PS}
    s_lshl_b32 s50, s{sE}, 11
    s_add_u32 s49, s49, s50
    s_add_u32 s49, s49, {WS_PART}
    """)
    if "lat" in ABL:
        e(f"s_memrealtime s[70:71]\ns_waitcnt lgkmcnt(0)\ns_mov_b32 s72, s70")
        e(f"buffer_load_dwordx4 {vr(vP)}, v1, {SRD(S_WS)}, s49 offen\ns_waitcnt vmcnt(0)")
        e(f"s_memrealtime s[70:71]\ns_waitcnt lgkmcnt(0)\ns_sub_u32 s73, s70, s72\nv_writelane_b32 v255, s73, 10\ns_mov_b32 s72, s70")
        e(f"s_lshl_b32 s57, s{sP}, 1\ns_add_u32 s57, s57, s{sCSW}\ns_mul_i32 s57, s57, 18\ns_add_u32 s57, s57, s{sE}\ns_mul_i32 s57, s57, {33*1024}\ns_add_u32 s57, s57, {WS_Z}")
        e(f"buffer_load_dwordx4 {vr(vP)}, v1, {SRD(S_WS)}, s57 offen\ns_waitcnt vmcnt(0)")
        e(f"s_memrealtime s[70:71]\ns_waitcnt lgkmcnt(0)\ns_sub_u32 s73, s70, s72\nv_writelane_b32 v255, s73, 11\ns_mov_b32 s72, s70")
        e(f"buffer_load_dwordx4 {vr(vP)}, v10, {SRD(S_CS)}, 0 offen\ns_waitcnt vmcnt(0)")
        e(f"s_memrealtime s[70:71]\ns_waitcnt lgkmcnt(0)\ns_sub_u32 s73, s70, s72\nv_writelane_b32 v255, s73, 12\ns_mov_b32 s72, s70")
        e(f"buffer_load_dwordx4 {vr(vP)}, v1, {SRD(S_WS)}, s49 offen offset:1024\ns_waitcnt vmcnt(0)")
        e(f"s_memrealtime s[70:71]\ns_waitcnt lgkmcnt(0)\ns_sub_u32 s73, s70, s72\nv_writelane_b32 v255, s73, 13\ns_mov_b32 s72, s70")
    def pload(k_):
        jp, h = k_ >> 1, k_ & 1
        if h == 0: e(f"s_add_u32 s65, s49, {jp * 18 * 2048}")
        e.vmem(f"buffer_load_dwordx4 {vr(vP + 8*jp + 4*h)}, v1, {SRD(S_WS)}, s65 offen offset:{1024*h}", ("part", k_))
    e(f"""
    v_and_b32 v5, 31, v0
    v_lshl_add_u32 v8, v5, 1, s{sS0}     ; s
    s_cmp_eq_u32 s{sGOUT}, 0
    s_cselect_b32 s60, 0, 1024
    s_cmp_eq_u32 s{sGOUT}, 3
    s_cselect_b32 s60, 2048, s60
    s_and_b32 s61, s{sGOUT}, 1
    v_sub_u32 v9, s60, v8
    v_add_u32 v{vROW}, s60, v8
    s_cmp_eq_u32 s61, 1
    s_cselect_b64 vcc, -1, 0
    s_lshl_b32 s62, s{sGOUT}, 10
    s_sub_u32 s62, s62, 1536
    v_cndmask_b32 v{vROW}, v{vROW}, v9, vcc
    v_mov_b32 v9, s62
    s_cmp_ge_u32 s{sGOUT}, 2
    s_cselect_b32 s61, 0, -1
    v_cmp_eq_u32 vcc, s61, v8
    s_nop 1
    v_cndmask_b32 v{vROW}, v{vROW}, v9, vcc
    v_lshlrev_b32 v2, 2, v{vROW}
    s_mov_b32 s51, {WS_G}
    """)
    e.vmem(f"buffer_load_dword v{vGT}, v2, {SRD(S_WS)}, s51 offen", "g")
    e(f"""
    s_lshl_b32 s57, s{sP}, 1
    s_add_u32 s57, s57, s{sCSW}
    s_mul_i32 s57, s57, 18
    s_add_u32 s57, s57, s{sE}
    s_mul_i32 s57, s57, {33*1024}
    s_add_u32 s57, s57, {WS_Z}
    """)
    def zload(n):
        if n == 32: e(f"s_add_u32 s58, s57, {32 * 1024}")
        elif n % 4 == 0:
            e(f"s_add_u32 s58, s{sBETA}, {n // 4}\ns_and_b32 s58, s58, 7\ns_lshl_b32 s58, s58, 12\ns_add_u32 s58, s58, s57")
        if "noz" in ABL and n > 0: e.vm.append(("z", n)); return
        e.vmem(f"buffer_load_dwordx4 {vr(vZ + 4*n)}, v1, {SRD(S_WS)}, s58 offen offset:{(n % 4) * 1024 if n < 32 else 0}", ("z", n))
    ZPRE = 16
    NP0 = next((int(a[2:]) for a in ABL if a.startswith("np")), 8)
    NZ0 = next((int(a[2:]) for a in ABL if a.startswith("nz")), 2)
    for n in range(NZ0): zload(n)
    early = [("z", n) for n in range(NZ0, ZPRE)] + [("p", k_) for k_ in range(NP0)]
    e(f"""
    v_lshrrev_b32 v6, 5, v0
    v_lshlrev_b32 v6, 3, v6
    v_cvt_f32_u32 v6, v6                 ; 8 h
    s_mov_b32 s45, 0x3a000000            ; 2^-11
    v_mul_f32 v7, s45, v10               ; tau / 2048
    s_cmp_eq_u32 s{sCSW}, 1
    s_cselect_b32 s46, 0xbf800000, 1.0
    v_mul_f32 v7, s46, v7
    s_lshr_b32 s47, s{sW}, 1
    s_mul_i32 s47, s47, 11
    s_lshl_b32 s48, s47, 4
    v_cvt_f32_u32 v8, s48
    v_add_f32 v6, v6, v8                 ; 16 ks0 + 8 h
    v_mul_f32 v11, 0x41800000, v7
    s_mul_i32 s48, s{sCSW}, {MB}
    s_lshl_b32 s47, s47, 10
    s_add_u32 s48, s48, s47
    v_add_u32 v13, s48, v1
    """)
    GA = 120
    GA = 244 - 12
    GW = 240
    for j in range(8):
        e(f"v_add_f32 v{GW}, {float(j)}, v6" if j else f"v_mov_b32 v{GW}, v6")
        e(f"v_mul_f32 v{GA + j}, v{GW}, v7")
    def gen_frag(i):
        tr = "v_sin_f32"
        for j in range(8):
            if i: e(f"v_add_f32 v{GA + j}, v{GA + j}, v11")
            e(f"v_fract_f32 v{GW + j}, v{GA + j}")
        e(f"s_cbranch_scc1 K2_gs{i}")
        for j in range(8): e(f"v_cos_f32 v{GW + j}, v{GW + j}")
        e(f"s_branch K2_gd{i}\nK2_gs{i}:")
        for j in range(8): e(f"v_sin_f32 v{GW + j}, v{GW + j}")
        e(f"K2_gd{i}:\ns_nop 0")
        for q in range(4): e(f"v_cvt_pk_bf16_f32 v{GW + q}, v{GW + 2*q}, v{GW + 2*q + 1}")
        e.lds(f"ds_write_b128 v13, {vr(GW)} offset:{1024 * i}", ("mw", i))
        e("s_nop 1")
    e(f"s_cmp_eq_u32 s{sCSW}, 1")
    per = -(-len(early) // 11)
    for i in range(11):
        gen_frag(i)
        for _ in range(per):
            if early:
                kind, x = early.pop(0)
                (zload if kind == "z" else pload)(x)
        e(f"s_cmp_eq_u32 s{sCSW}, 1")
    st(2)
    sums = []
    for q in range(8):
        need = 2 + (q >> 2)
        sums += [(t_, need) for t_ in (f"v_lshlrev_b32 v2, 16, v{vP + q}", f"v_and_b32 v3, 0xffff0000, v{vP + q}",
                 f"v_lshlrev_b32 v8, 16, v{vP + 8 + q}", f"v_and_b32 v252, 0xffff0000, v{vP + 8 + q}",
                 f"v_add_f32 v{vP + q}, v2, v8", f"v_add_f32 v{vP + 8 + q}, v3, v252")]
    for jp in range(2, 8):
        for q in range(8):
            src = vP + 8 * jp + q
            sums += [(t_, 2 * jp + (q >> 2)) for t_ in (f"v_lshlrev_b32 v2, 16, v{src}", f"v_and_b32 v3, 0xffff0000, v{src}",
                     f"v_add_f32 v{vP + q}, v{vP + q}, v2", f"v_add_f32 v{vP + 8 + q}, v{vP + 8 + q}, v3")]
    BS = lambda r: vP + (r >> 1) + 8 * (r & 1)
    e("s_waitcnt lgkmcnt(0)"); e("s_barrier")
    st(3)
    def gemm(accr, rd, wait_z):
        rd(0); rd(1)
        for n in range(33):
            if n + 2 < 33: rd(n + 2)
            if wait_z: e.wait(vm=("z", n), lg=("b", n))
            else: e.wait(lg=("b", n))
            e(f"v_mfma_f32_32x32x16_bf16 {vr(accr,16)}, {vr(vZ + 4*n)}, {vr(FB(n))}, {'0' if n == 0 else vr(accr,16)}")
            if wait_z and n + ZPRE < 33: zload(n + ZPRE)
            if (n % 2 == 1 or "pev" in ABL) and prest: pload(prest.pop(0))
            if n >= (18 if NP0 < 16 else 16):
                for _ in range(8 if NP0 < 16 else 14):
                    if sums and sums[0][1] < NP0: e(sums.pop(0)[0])
    FB = lambda n: [16, 20, 4][n % 3]
    e(f"s_mul_i32 s59, s{sCSW}, {MB}\nv_add_u32 v10, s59, v1")
    def rdM(n):
        if n < 32 and n % 4 == 0:
            e(f"s_add_u32 s63, s{sBETA}, {n // 4}\ns_and_b32 s63, s63, 7\ns_lshl_b32 s63, s63, 12\nv_add_u32 v9, s63, v10")
        if n < 32: e.lds(f"ds_read_b128 {vr(FB(n))}, v9 offset:{(n & 3) * 1024}", ("b", n))
        else: e.lds(f"ds_read_b128 {vr(FB(n))}, v10 offset:{32 * 1024}", ("b", n))
    prest = list(range(NP0, 16))
    gemm(acc, rdM, True)
    while sums and sums[0][0].startswith(("v_add_f32", "v_and_b32", "v_lshlrev_b32 v8")) and sums[0][1] < NP0: e(sums.pop(0)[0])
    while prest: pload(prest.pop(0))
    st(4)
    e(f"""
    s_nop 7
    s_nop 7
    s_lshl_b32 s45, s{sW}, 12
    s_add_u32 s45, s45, {XCH}
    v_add_u32 v2, s45, v1
    s_xor_b32 s46, s{sW}, 1
    s_lshl_b32 s46, s46, 12
    s_add_u32 s46, s46, {XCH}
    v_add_u32 v3, s46, v1
    """)
    for z in range(4): e(f"ds_write_b128 v2, {vr(acc + 4*z)} offset:{1024*z}")
    e("s_waitcnt lgkmcnt(0)\ns_barrier")
    sib = vZ
    for z in range(4): e(f"ds_read_b128 {vr(sib + 4*z)}, v3 offset:{1024*z}")
    e.wait(vm=[("part", 15), "g"])
    while sums: e(sums.pop(0)[0])
    st(5)
    e("s_waitcnt lgkmcnt(0)")
    e(f"s_cmp_eq_u32 s{sCSW}, 0\ns_cselect_b32 s45, 1.0, 0xbf800000")
    for r in range(16): e(f"v_fma_f32 v{acc + r}, s45, v{acc + r}, v{sib + r}")
    for r in range(16):
        e(f"v_sub_f32 v{acc + r}, v{acc + r}, v{BS(r)}")
        e(f"v_fma_f32 v{acc + r}, v{vGT}, v{acc + r}, v{BS(r)}")
    for q in range(8): e(f"v_cvt_pk_bf16_f32 v{vP + q}, v{acc + 2*q}, v{acc + 2*q + 1}")
    e("s_nop 1")
    for z in range(2):
        e(f"v_permlane32_swap_b32 v{vP + 4*z}, v{vP + 2 + 4*z}")
        e(f"v_permlane32_swap_b32 v{vP + 1 + 4*z}, v{vP + 3 + 4*z}")
    e(f"""
    v_mul_u32_u24 v2, 1152, v{vROW}
    v_lshrrev_b32 v6, 5, v0
    v_lshl_add_u32 v2, v6, 4, v2
    v_and_b32 v3, 31, v0
    v_mov_b32 v4, 0x7ff00000
    s_or_b32 s44, s{sBETA}, s{sP}
    s_cmp_ge_u32 s{sGOUT}, 2
    s_cselect_b32 s45, s44, 1
    s_cmp_eq_u32 s45, 0
    s_cbranch_scc0 K2_st
    s_cmp_eq_u32 s{sFAM}, 2
    s_cbranch_scc1 K2_onlyc0
    v_cmp_eq_u32 vcc, 0, v3
    s_nop 1
    v_cndmask_b32 v2, v2, v4, vcc
    s_branch K2_st
    K2_onlyc0:
    v_cmp_eq_u32 vcc, 0, v3
    s_nop 1
    v_cndmask_b32 v2, v4, v2, vcc
    K2_st:
    s_lshl_b32 s59, s{sE}, 6
    buffer_store_dwordx4 {vr(vP)}, v2, {SRD(S_OUT)}, s59 offen{OF()}
    buffer_store_dwordx4 {vr(vP + 4)}, v2, {SRD(S_OUT)}, s59 offen offset:32{OF()}
    """)
    if DIAG:
        e("s_waitcnt vmcnt(0)"); st(6)
        e(f"s_mul_i32 s45, s2, 6\ns_add_u32 s45, s45, s{sW}\ns_lshl_b32 s45, s45, 8\ns_add_u32 s45, s45, {WS_DIAG2}")
        e(f"v_lshlrev_b32 v2, 2, v0\nbuffer_store_dword v255, v2, {SRD(S_WS)}, s45 offen")
    e("K2_end:\ns_endpgm\nK2_codeend:")
    return e.text() + kdesc(name, 256, 0, 80)
if __name__ == "__main__":
    print(gen_k2())
```

```python
import sys, os
sys.path.insert(0, os.path.dirname(os.path.abspath(__file__)))
from common import *
import k1, ka, k2, k1v2, k2v2, k2v3, k2v4
def header(launches):
    s = ""
    for (k, g, b, lds) in launches:
        s += f"; @launch kernel={k} grid=({g},1,1) block=({b},1,1) lds={lds}\n"
    s += '.amdgcn_target "amdgcn-amd-amdhsa--gfx950"\n.text\n'
    return s
def build_k1_only():
    return header([("k1_kernel", 256, 256, k1.LDS_BYTES)]) + k1.gen_k1()
def build_k1_diag():
    k1.DIAG = True
    return build_k1_only()
def build_k1_diag2():
    k1.DIAG = 2
    return build_k1_only()
TOP = open(os.path.join(os.path.dirname(os.path.abspath(__file__)), "top_comment.txt")).read()
def build_v1():
    return TOP + header([("ka_kernel", 170, 256, ka.LDS_BYTES), ("k1_kernel", 256, 256, k1.LDS_BYTES), ("k2_kernel", 192, 384, k2.LDS_BYTES)]) + ka.gen_ka() + k1.gen_k1() + k2.gen_k2()
def build_v2():
    return TOP + header([("k1_kernel", 256, 256, k1v2.LDS_BYTES), ("k2_kernel", 192, 384, k2.LDS_BYTES)]) + k1v2.gen_k1() + k2.gen_k2()
def build_v3():
    k1v2.K2_LABELS = ("k2_kernel", "K2_codeend")
    return TOP + header([("k1_kernel", 256, 256, k1v2.LDS_BYTES), ("k2_kernel", 198, 384, k2v2.LDS_BYTES)]) + k1v2.gen_k1() + k2v2.gen_k2()
def build_v4():
    k1v2.K2_LABELS = ("k2_kernel", "K2_codeend")
    return TOP + header([("k1_kernel", 256, 256, k1v2.LDS_BYTES), ("k2_kernel", 198, k2v3.NTHREADS, k2v3.LDS_BYTES)]) + k1v2.gen_k1() + k2v3.gen_k2()
def build_v4d():
    k2v3.DIAG = True; k1v2.DIAG = 1
    return build_v4()
def build_v4x(name):
    k2v3.DIAG = True; k1v2.DIAG = 1
    k2v3.ABL = set(name.split("+")) - {"base"}
    return build_v4()
def build_v4r(name):
    k2v3.ABL = set(name.split("+")) - {"base"}
    return build_v4()
def build_v5(abl=""):
    k1v2.K2_LABELS = ("k2_kernel", "K2_codeend")
    k1v2.ABL = {"nomt"} | (set(abl.split("+")) - {"", "base"})
    k2v4.ABL = set(k1v2.ABL)
    return TOP + header([("k1_kernel", 256, 256, k1v2.LDS_BYTES), ("k2_kernel", 198, 384, k2v4.LDS_BYTES)]) + k1v2.gen_k1() + k2v4.gen_k2()
def build_v5d(abl=""):
    k2v4.DIAG = True; k1v2.DIAG = 1
    return build_v5(abl)
def build_v3d():
    k2v2.DIAG = True; k1v2.DIAG = 1
    return build_v3()
def build_full(name):
    k2v2.DIAG = True; k1v2.DIAG = 1
    k1v2.ABL = set(name.split("+")) - {"base"}
    for a in k1v2.ABL:
        if a.startswith("pf") and not a.startswith("pfl"): k1v2.PF = int(a[2:])
    if "zplain" in k1v2.ABL: k1v2.ZF = ""
    return build_v3()
def build_rel(name):
    k1v2.ABL = set(name.split("+")) - {"base"}
    for a in k1v2.ABL:
        if a.startswith("pf") and not a.startswith("pfl"): k1v2.PF = int(a[2:])
    if "zplain" in k1v2.ABL: k1v2.ZF = ""
    k2v2.ABL = k1v2.ABL
    return build_v3()
def build_probe(spec):
    k1v2.DIAG = 1; k1v2.ABL = {"probe", "nomt", "apxj"}
    k1v2.PROBE_PTS = [tuple(int(x) for x in p.split(".")) for p in spec.split(",")]
    k1v2.K2_LABELS = None
    return header([("k1_kernel", 256, 256, k1v2.LDS_BYTES)]) + k1v2.gen_k1()
def build_g16(name):
    import k1v2_g16 as k
    k.DIAG = 1; k.VERBOSE = True
    k.ABL = set(name.split("+")) - {"base"}
    k.K2_LABELS = None
    return header([("k1_kernel", 256, 256, k.LDS_BYTES)]) + k.gen_k1()
def build_k2abl(name):
    k2v2.DIAG = True; k1v2.DIAG = 1
    k2v2.ABL = set(name.split("+")) - {"base"}
    return build_v3()
def build_k1v2(name):
    k1v2.DIAG = 1
    k1v2.ABL = set(name.split("+")) - {"base"}
    for a in k1v2.ABL:
        if a.startswith("pf") and not a.startswith("pfl"): k1v2.PF = int(a[2:])
    return header([("k1_kernel", 256, 256, k1v2.LDS_BYTES)]) + k1v2.gen_k1()
def build_abl(name):
    k1.DIAG = 1
    k1.ABL = set(name.split("+")) - {"base"}
    for a in k1.ABL:
        if a.startswith("pf"): k1.PF = int(a[2:])
    return build_k1_only()
if __name__ == "__main__":
    what = sys.argv[1]; out = sys.argv[2]
    if what.startswith("v5r:"): open(out, "w").write(build_v5(what[4:]))
    elif what.startswith("v5d:"): open(out, "w").write(build_v5d(what[4:]))
    elif what.startswith("v4x:"): open(out, "w").write(build_v4x(what[4:]))
    elif what.startswith("v4r:"): open(out, "w").write(build_v4r(what[4:]))
    elif what.startswith("g16:"): open(out, "w").write(build_g16(what[4:]))
    elif what.startswith("probe:"): open(out, "w").write(build_probe(what[6:]))
    elif what.startswith("rel:"): open(out, "w").write(build_rel(what[4:]))
    elif what.startswith("full:"): open(out, "w").write(build_full(what[5:]))
    elif what.startswith("k2abl:"): open(out, "w").write(build_k2abl(what[6:]))
    elif what.startswith("k1v2:"): open(out, "w").write(build_k1v2(what[5:]))
    elif what.startswith("abl:"): open(out, "w").write(build_abl(what[4:]))
    else: open(out, "w").write(globals()["build_" + what]())
```

```python
from common import *

ROWW = 9216; ROWD = 1152; SLOT = 36864
LDS_BYTES = 163840
XB0 = 2 * SLOT; XBW = 20480
FOLD = 4 * SLOT
NUNIT = 28
U_T1 = 22; U_S = 23
DIAG = False
VERBOSE = False
ZF = ' sc1'
ABL = set()
WS_DIAG = 80 << 20
PF = 6
S_WG, S_WU, S_WD, S_X, S_WS, S_DBG, S_T, S_CD, S_GW, S_SD = 8, 12, 16, 20, 24, 28, 32, 36, 40, 44
sW, sI, sJ, sODD = 48, 49, 50, 51
sGA, sGL, sSA, sSL = 52, 53, 54, 55
sDAo, sDLo, sDAp, sDLp = 56, 57, 58, 59
sUA, sUB, sUL = 60, 61, 62
sM0A, sM0L = 63, 64
sT0 = 65
sHXo, sHXp, sPARTp, sPARTs = 68, 69, 70, 71
sFoffP, sFbitP, sOBp = 72, 73, 74
sTG, sTGs, sTDo, sTDp, sTS = 75, 76, 77, 78, 79
sTrow, sCS, sCcol = 80, 81, 82
sA, sB, sC, sD, sE, sF = 84, 85, 86, 87, 88, 89
sSG = 90
sEA, sEB = 94, 95
sAPX = 83
sCP = 20
sXS = 3
sXB2, sXB3 = 83, 95
sXB, sTCH, sHST, sPST = 4, 5, 6, 7
vTD = 0; vL16 = 1; vWK = (2, 3)
vPGp = (4, 5); vPGs = 6; vPDp = (7, 8); vPDs = 9
vPOLL = 10; vZERO = 11; vOB = 12; vMISC = 13; vTG = 14; vDIAG = 15
vTMP = 16
vH = 24
vG = (96, 128); vU = 160; vUS = 192
DACC = [128, 144, 160, 176, 208, 224, 96, 112, 192]
vTACC = 192
vDGp, vDGs, vDDp, vDDs = 240, 244, 248, 252
aFR = 144; aHP = 176; aDUM = 248
PS = 8 * 18 * 2048
def vr(b, n=4): return f"v[{b}:{b+n-1}]"
def ar(b, n=4): return f"a[{b}:{b+n-1}]"
def SRD(s): return f"s[{s}:{s+3}]"

REMAP = {}
def ring_slot(u): return REMAP[u][1] if u in REMAP else u % 4
def unit_desc(u):
    if u in REMAP: u = REMAP[u][0]
    if u < 4: return dict(kind="GUp", mat="GU"[u & 1], p=0, kh=u >> 1)
    if u < 16:
        p, r = divmod(u, 4)
        return dict(kind="GUp", mat="G" if r < 2 else "U", p=p, kh=r & 1)
    if u == 16: return dict(kind="GUs", mat="G")
    if u == 17: return dict(kind="GUs", mat="U")
    if u < 22: return dict(kind="Dp", ps=1, q=u - 18)
    if u == U_T1: return dict(kind="T")
    if u == U_S: return dict(kind="S")
    if u == NUNIT: return dict(kind="T")
    return dict(kind="Dp", ps=2, q=u - 24)

vTD_T = 16
vTR = 16

def dma_groups(u, slot=None):
    d = unit_desc(u); sb = (u % 4) * SLOT if slot is None else slot * SLOT
    k = d["kind"]
    if k == "T":
        g = []
        g.append(([f"s_lshl_b32 s{sT0}, s{sW}, 7", f"s_add_u32 s{sT0}, s{sT0}, s{sTrow}", f"s_add_u32 m0, s{sM0A}, {sb}"],
                  [f"buffer_load_dwordx4 v{vTD_T+q}, {SRD(S_T)}, s{sT0} offen{' offset:%d' % (1024*q) if q else ''} lds" for q in range(4)]))
        g.append(([f"s_add_u32 s{sT0+1}, s{sT0}, 512", f"s_add_u32 m0, s{sM0A}, {sb + 16384}"],
                  [f"buffer_load_dwordx4 v{vTD_T+q}, {SRD(S_T)}, s{sT0+1} offen{' offset:%d' % (1024*q) if q else ''} lds" for q in range(4)]))
        g.append(([f"s_add_u32 s{sT0+2}, s{sTrow}, 1024", f"s_add_u32 m0, s{sM0L}, {sb}"],
                  [f"buffer_load_dwordx4 v{vTD_T+4}, {SRD(S_T)}, s{sT0+2} offen lds"]))
        return g
    if k == "GUp":
        srd_ = S_WG if d["mat"] == "G" else S_WU
        c = 288 * d["kh"] * ROWW + 128 * d["p"]
        A, B, L = (sGA, c), (sGA, c + 128 * ROWW), (sGL, c); vo = vDGp
    elif k == "GUs":
        srd_ = S_WG if d["mat"] == "G" else S_WU
        A, B, L = (sSA, 0), (sSA, 256 * ROWW), (sSL, 0); vo = vDGs
    elif k == "Dp":
        srd_ = S_WD
        a, l = (sDAo, sDLo) if d["ps"] == 1 else (sDAp, sDLp)
        c = 128 * d["q"]
        A, B, L = (a, c), (a, c + 128 * ROWD), (l, c); vo = vDDp
    else:
        srd_ = S_WD
        A, B, L = (sUA, 0), (sUB, 0), (sUL, 0); vo = vDDs
    groups = []
    for gi, (base, c) in enumerate((A, B, L)):
        st = sT0 + gi
        pre = [f"s_add_u32 s{st}, s{base}, {c}"]
        pre.append(f"s_add_u32 m0, s{sM0A}, {sb + 16384 * gi}" if gi < 2 else f"s_add_u32 m0, s{sM0L}, {sb}")
        loads = [f"buffer_load_dwordx4 v{vo + q}, {SRD(srd_)}, s{st} offen{' offset:%d' % (1024*q) if q else ''} lds" for q in range(4 if gi < 2 else 1)]
        groups.append((pre, loads))
    return groups

def touch_ops(u):
    d = unit_desc(u); k = d["kind"]; ops = []
    def t(srd_, vo, base, c):
        ops.append((f"s_add_u32 s{sTCH}, s{base}, {c}", False))
        ops.append((f"buffer_load_dword a{aDUM}, v{vo}, {SRD(srd_)}, s{sTCH} offen", True))
    if k == "GUp": t(S_WG if d["mat"] == "G" else S_WU, vTG, sTG, 288 * d["kh"] * ROWW + 128 * d["p"])
    elif k == "GUs":
        srd_ = S_WG if d["mat"] == "G" else S_WU
        t(srd_, vTG, sTGs, 0); t(srd_, vTG, sTGs, 288 * ROWW)
    elif k == "Dp": t(S_WD, vTD, sTDo if d["ps"] == 1 else sTDp, 128 * d["q"])
    elif k == "S": t(S_WD, vTD, sTS, 0); t(S_WD, vTD, sTS, 288 * ROWD)
    return ops

def frag_reads(u, n):
    d = unit_desc(u); k = d["kind"]
    tr = "ds_read_b64_tr_b16"
    if k == "GUp":
        ks, hf = n >> 1, n & 1
        return [(0, 2, tr, vWK[hf], 2048 * ks), (2, 2, tr, vWK[hf], 2048 * ks + 512)]
    if k == "GUs": return [(0, 2, tr, vWK[0], 1024 * n), (2, 2, tr, vWK[0], 1024 * n + 256)]
    if k == "Dp":
        ks, hf = n >> 1, n & 1
        return [(0, 2, tr, vWK[hf], 2048 * ks), (2, 2, tr, vWK[hf], 2048 * ks + 1024)]
    if k == "T":
        return [(0, 4, "ds_read_b128", vTR + (n & 3), 4096 * (n >> 2))]
    ks = n % 18; par = n // 18
    R = (256 * par + 16 * ks) if ks < 16 else (512 + 32 * par + 16 * (ks - 16))
    return [(0, 2, tr, vWK[0], 64 * R), (2, 2, tr, vWK[0], 64 * R + 512)]

def unit_patterns(u):
    k = unit_desc(u)["kind"]
    return {"GUp": vPGp, "GUs": (vPGs,), "Dp": vPDp, "S": (vPDs,), "T": ()}[k]

def mfma(u, n):
    d = unit_desc(u); k = d["kind"]; gn = 36 * u + n
    A = ar(aFR + 4 * (gn % 8))
    if k == "GUp":
        ks, hf = n >> 1, n & 1; kk = 18 * d["kh"] + ks
        acc = (vG[d["p"] & 1] if d["mat"] == "G" else vU) + 16 * hf
        B = ar(4 * kk); first = kk == 0
    elif k == "GUs":
        acc = vG[0] if d["mat"] == "G" else vUS
        B = ar(4 * n); first = n == 0
    elif k == "Dp":
        ks, hf = n >> 1, n & 1; acc = DACC[2 * d["q"] + hf]
        if d["ps"] == 1: B = vr(vH + 4 * ks); first = ks == 0
        else: B = ar(aHP + 4 * ks); first = False
    elif k == "T":
        acc = vTACC; first = n == 0
        return f"v_mfma_f32_32x32x16_bf16 {vr(acc,16)}, {ar(4*n)}, {A}, {'0' if first else vr(acc,16)}"
    else:
        acc = DACC[8]; B = vr(vH + 4 * n) if n < 18 else ar(aHP + 4 * (n - 18)); first = n == 0
    return f"v_mfma_f32_32x32x16_bf16 {vr(acc,16)}, {A}, {B}, {'0' if first else vr(acc,16)}"

NLOG2E = "0xbfb8aa3b"
class Op:
    __slots__ = ("text", "cost", "deps", "nb", "tag", "at")
    def __init__(self, text, cost=1, deps=(), nb=0, tag=None):
        self.text, self.cost, self.deps, self.nb, self.tag, self.at = text, cost, list(deps), nb, tag, None
sPKC, sPK1 = 90, 92
_tmp_last = {}
def silu_chain(g0, n, nb):
    ops = []; last = {}
    pk = "pk" in ABL
    for e in range(0, n, 2):
        ta = vTMP + (e % 8); a = g0 + e
        prev = [(_tmp_last[t], 1) for t in (ta, ta + 1) if t in _tmp_last]
        if pk:
            m1 = Op(f"v_pk_mul_f32 v[{ta}:{ta+1}], v[{a}:{a+1}], s[{sPKC}:{sPKC+1}]", 1, prev, nb)
            e0 = Op(f"v_exp_f32 v{ta}, v{ta}", 2, [(m1, 1)], nb); e1 = Op(f"v_exp_f32 v{ta+1}, v{ta+1}", 2, [(m1, 1)], nb)
            ad = Op(f"v_pk_add_f32 v[{ta}:{ta+1}], v[{ta}:{ta+1}], s[{sPK1}:{sPK1+1}]", 1, [(e0, 2), (e1, 2)], nb)
            r0 = Op(f"v_rcp_f32 v{ta}, v{ta}", 2, [(ad, 1)], nb); r1 = Op(f"v_rcp_f32 v{ta+1}, v{ta+1}", 2, [(ad, 1)], nb)
            m2 = Op(f"v_pk_mul_f32 v[{a}:{a+1}], v[{a}:{a+1}], v[{ta}:{ta+1}]", 1, [(r0, 2), (r1, 2)], nb)
            ops += [m1, e0, e1, ad, r0, r1, m2]
            _tmp_last[ta] = m2; _tmp_last[ta + 1] = m2; last[e] = m2; last[e + 1] = m2
        else:
            for z in range(2):
                t = ta + z; g = a + z
                m1 = Op(f"v_mul_f32 v{t}, {NLOG2E}, v{g}", 1, [(_tmp_last[t], 1)] if t in _tmp_last else [], nb)
                ex = Op(f"v_exp_f32 v{t}, v{t}", 2, [(m1, 1)], nb)
                ad = Op(f"v_add_f32 v{t}, 1.0, v{t}", 1, [(ex, 2)], nb)
                rc = Op(f"v_rcp_f32 v{t}, v{t}", 2, [(ad, 1)], nb)
                m2 = Op(f"v_mul_f32 v{g}, v{g}, v{t}", 1, [(rc, 2)], nb)
                ops += [m1, ex, ad, rc, m2]
                _tmp_last[t] = m2; last[e + z] = m2
    return ops, last
def h_chain(g0, u0, tile, last, eoff, nb):
    ops = []; H = vH + 8 * tile; prevc = None
    for q in range(8):
        a = g0 + 2 * q
        if "pk" in ABL:
            h0 = Op(f"v_pk_mul_f32 v[{a}:{a+1}], v[{a}:{a+1}], v[{u0+2*q}:{u0+2*q+1}]", 1, [(last[eoff + 2*q], 1)], nb)
            hs = [h0]
        else:
            hs = [Op(f"v_mul_f32 v{a+z}, v{a+z}, v{u0+2*q+z}", 1, [(last[eoff + 2*q + z], 1)], nb) for z in range(2)]
        c = Op(f"v_cvt_pk_bf16_f32 v{H + q}, v{a}, v{a+1}", 1, [(h, 1) for h in hs] + ([(prevc, 1)] if prevc else []), nb,
               ("h", tile) if q == 7 else None)
        prevc = c
        ops += hs + [c]
    return ops
def h_store(tile, half):
    off = tile * 2048 + half * 1024
    return [f"s_add_u32 s{sHST}, s{sHXo}, {off & ~4095}",
            f"buffer_store_dwordx4 {vr(vH + 8*tile + 4*half)}, v{vL16}, {SRD(S_WS)}, s{sHST} offen offset:{off & 4095} sc1"]
vPST = vMISC
def epi_ops(tile):
    T = DACC[tile]
    return [(f"v_cvt_pk_bf16_f32 v{T + q}, v{T + 2*q}, v{T + 2*q + 1}", 1, ("e", tile) if q == 7 else None) for q in range(8)]
def p_store(tile, half):
    T = DACC[tile]
    if tile < 8: base, off = sPARTp, tile * 2048 + half * 1024
    else: base, off = sPARTs, half * 1024
    fl = "" if "plainst" in ABL else " sc1"
    return [f"s_add_u32 s{sPST}, s{base}, {off & ~4095}",
            f"buffer_store_dwordx4 {vr(T + 4*half)}, v{vPST}, {SRD(S_WS)}, s{sPST} offen offset:{off & 4095}{fl}"]

def stamp(e, idx):
    if not DIAG: return
    e(f"{'s_memtime' if DIAG == 2 else 's_memrealtime'} s[{96 + 2*(idx % 2)}:{97 + 2*(idx % 2)}]")
    e.pending_stamp = idx
def settle(e):
    if not DIAG: return
    idx = getattr(e, "pending_stamp", None)
    if idx is None: return
    e(f"v_writelane_b32 v{vDIAG}, s{96 + 2*(idx % 2)}, {idx}")
    e.pending_stamp = None

def pstamp(e, idx):
    if not DIAG: return
    e("s_memrealtime s[96:97]\ns_waitcnt lgkmcnt(0)")
    e(f"v_writelane_b32 v{vDIAG}, s96, {idx}")
def rowcalc(e, dst, vslot, sgrp, t0=16, t1=17):
    e(f"""
    s_lshl_b32 s{sA}, s{sI}, 5
    v_add_u32 v{t0}, s{sA}, v{vslot}          ; s
    s_cmp_eq_u32 s{sgrp}, 0
    s_cselect_b32 s{sA}, 0, 1024
    s_cmp_eq_u32 s{sgrp}, 3
    s_cselect_b32 s{sA}, 2048, s{sA}         ; base
    s_and_b32 s{sB}, s{sgrp}, 1
    v_sub_u32 v{t1}, s{sA}, v{t0}
    v_add_u32 v{dst}, s{sA}, v{t0}
    s_cmp_eq_u32 s{sB}, 1
    s_cselect_b64 vcc, -1, 0
    s_lshl_b32 s{sC}, s{sgrp}, 10
    s_sub_u32 s{sC}, s{sC}, 1536
    v_cndmask_b32 v{dst}, v{dst}, v{t1}, vcc
    v_mov_b32 v{t1}, s{sC}
    s_cmp_ge_u32 s{sgrp}, 2
    s_cselect_b32 s{sB}, 0, -1
    v_cmp_eq_u32 vcc, s{sB}, v{t0}
    s_nop 1
    v_cndmask_b32 v{dst}, v{dst}, v{t1}, vcc
    """)

def T_dma_addr(e, rowbase_in_tile=0):
    ops = []
    ops += [f"v_lshrrev_b32 v21, 7, v{vL16}",
            f"v_bfe_u32 v22, v{vL16}, 4, 3"]
    for q in range(4):
        ops += [f"v_add_u32 v23, {8*q}, v21", f"v_bfe_u32 v20, v23, 1, 3", f"v_xor_b32 v20, v20, v22",
                f"v_mul_u32_u24 v23, 1152, v23", f"v_lshl_add_u32 v{16+q}, v20, 4, v23"]
        if q: ops.append(f"v_subrev_u32 v{16+q}, {1024*q}, v{16+q}")
    ops += [f"s_lshl_b32 s{sXB}, s{sW}, 3", f"v_add_u32 v23, s{sXB}, v21", f"v_bfe_u32 v20, v23, 1, 3", f"v_xor_b32 v20, v20, v22",
            f"v_mul_u32_u24 v23, 1152, v23", f"v_lshl_add_u32 v20, v20, 4, v23"]
    return ops
def T_read_addr(slotbase):
    ops = [f"v_bfe_u32 v20, v{vL16}, 4, 5",
           f"v_lshrrev_b32 v21, 9, v{vL16}",
           f"v_lshrrev_b32 v22, 3, v20", f"v_lshlrev_b32 v22, 10, v22", f"v_and_b32 v23, 7, v20",
           f"v_lshl_add_u32 v22, v23, 7, v22", f"v_add_u32 v22, {slotbase}, v22",
           f"v_bfe_u32 v23, v20, 1, 3"]
    for q4 in range(4):
        ops += [f"v_add_u32 v20, {2*q4}, v21", f"v_xor_b32 v20, v20, v23", f"v_lshl_add_u32 v{16+q4}, v20, 4, v22"]
    return ops

def code_prefetch():
    return f"""
    s_getpc_b64 s[{S_T}:{S_T+1}]
    K1_pc:
    s_and_b32 s{S_T+1}, s{S_T+1}, 0xffff
    s_mov_b32 s{S_T+2}, K1_codeend-K1_pc
    s_mov_b32 s{S_T+3}, 0x20000
    s_lshr_b32 s{sA}, s2, 3
    s_mul_i32 s{sA}, s{sA}, {{NL}}
    v_add_u32 v3, s{sA}, v0
    v_lshlrev_b32 v3, 7, v3
    v_mov_b32 v4, 0x7ff00000
    v_cmp_gt_u32 vcc, {{NL}}, v0
    s_nop 1
    v_cndmask_b32 v3, v4, v3, vcc
    buffer_load_dword a{aDUM}, v3, {SRD(S_T)}, 0 offen
    """.replace("{NL}", str(CPF_LINES))
CPF_LINES = 20
PROBE_PTS = []
K2_LABELS = None
def prologue(e):
    e(f"""
    s_cmp_ge_u32 s2, 256
    s_cbranch_scc1 K1_end
    {("s_memtime s[100:101]" if DIAG == 2 else "s_memrealtime s[100:101]") if DIAG else ""}
    s_load_dwordx2 s[{S_X}:{S_X+1}], s[0:1], {KA_AX}
    s_load_dwordx2 s[{S_WG}:{S_WG+1}], s[0:1], {KA_WG}
    s_load_dwordx2 s[{S_WU}:{S_WU+1}], s[0:1], {KA_WU}
    s_load_dwordx2 s[{S_WD}:{S_WD+1}], s[0:1], {KA_WD}
    s_load_dwordx2 s[{S_WS}:{S_WS+1}], s[0:1], {KA_WS}
    s_load_dwordx2 s[{S_DBG}:{S_DBG+1}], s[0:1], {KA_DBG}
    s_load_dwordx2 s[{S_CD}:{S_CD+1}], s[0:1], {KA_CD}
    s_load_dwordx2 s[{S_SD}:{S_SD+1}], s[0:1], {KA_SD}
    s_load_dwordx2 s[{S_GW}:{S_GW+1}], s[0:1], {KA_GW}
    {code_prefetch() if "nocpf" not in ABL else ""}
    v_lshrrev_b32 v2, 6, v0
    v_and_b32 v0, 63, v0
    v_readfirstlane_b32 s{sW}, v2
    v_lshlrev_b32 v{vL16}, 4, v0
    s_and_b32 s{sA}, s2, 1
    s_lshl_b32 s{sA}, s{sA}, 3
    s_lshr_b32 s{sB}, s2, 3
    s_and_b32 s{sC}, s{sB}, 7
    s_add_u32 s{sI}, s{sA}, s{sC}
    s_and_b32 s{sA}, s2, 6
    s_lshl_b32 s{sA}, s{sA}, 1
    s_lshr_b32 s{sB}, s{sB}, 3
    s_add_u32 s{sJ}, s{sA}, s{sB}
    s_and_b32 s{sODD}, s{sJ}, 1
    """)
    if "nocpf" not in ABL: e.vm.append("cpf")
    e("v_lshrrev_b32 v21, 3, v0\nv_and_b32 v22, 7, v0")
    rowcalc(e, 19, 21, sW)
    e(f"""
    s_and_b32 s{sB}, s{sW}, 1
    s_cmp_eq_u32 s{sB}, 1
    s_cselect_b32 s{sB}, -1, 1
    s_mul_i32 s{sB}, s{sB}, {8 * 1152}           ; byte step between the 8-row pieces
    s_lshl_b32 s{sA}, s{sI}, 5
    v_add_u32 v16, s{sA}, v21                    ; s (piece 0)
    s_cmp_eq_u32 s{sW}, 0
    s_cselect_b32 s{sA}, 0, 1024
    s_cmp_eq_u32 s{sW}, 3
    s_cselect_b32 s{sA}, 2048, s{sA}
    v_sub_u32 v17, s{sA}, v16
    v_add_u32 v18, s{sA}, v16
    s_cmp_lt_i32 s{sB}, 0
    s_cselect_b64 vcc, -1, 0
    v_mul_u32_u24 v19, 1152, v19
    v_lshrrev_b32 v20, 1, v21
    v_cndmask_b32 v17, v18, v17, vcc
    v_mul_u32_u24 v17, 1152, v17
    v_xor_b32 v23, v20, v22
    v_lshl_add_u32 v96, v23, 4, v19
    v_xor_b32 v18, 4, v23
    v_add_u32 v17, s{sB}, v17
    v_lshl_add_u32 v97, v18, 4, v17
    v_add_u32 v17, s{sB}, v17
    v_lshl_add_u32 v98, v23, 4, v17
    v_add_u32 v17, s{sB}, v17
    v_lshl_add_u32 v99, v18, 4, v17
    """)
    e(f"""
    s_mul_i32 s{sA}, s{sJ}, 288            ; F0
    s_lshl_b32 s{sB}, s{sODD}, 5
    s_add_u32 s{sA}, s{sA}, s{sB}          ; pairbase
    s_lshl_b32 s{sTG}, s{sA}, 1
    s_mul_i32 s{sB}, s{sW}, {32 * ROWW}
    s_add_u32 s{sGA}, s{sB}, s{sTG}
    s_mul_i32 s{sB}, s{sW}, {8 * ROWW}
    s_add_u32 s{sB}, s{sB}, {256 * ROWW}
    s_add_u32 s{sGL}, s{sB}, s{sTG}
    s_lshl_b32 s{sM0A}, s{sW}, 12
    s_lshl_b32 s{sM0L}, s{sW}, 10
    s_add_u32 s{sM0L}, s{sM0L}, 32768
    ; GU pair dma voffsets
    v_bfe_u32 v17, v0, 2, 1
    v_bfe_u32 v18, v0, 4, 1
    v_xor_b32 v17, v17, v18
    v_lshlrev_b32 v17, 6, v17
    v_and_b32 v18, 3, v0
    v_lshl_add_u32 v17, v18, 4, v17      ; colb
    s_mov_b32 s{sA}, {ROWW}
    v_mul_lo_u32 v18, v21, s{sA}
    v_add_u32 v{vDGp}, v18, v17
    """)
    for q in range(1, 4): e(f"v_add_u32 v{vDGp+q}, {q * (8 * ROWW - 1024)}, v{vDGp}")
    e(f"s_mul_i32 s{sXS}, s{sW}, {XBW}\ns_add_u32 s{sXS}, s{sXS}, {XB0}")
    e(f"""
    s_lshr_b32 s{sA}, s2, 3
    s_and_b32 s{sA}, s{sA}, 7
    s_mul_i32 s{sA}, s{sA}, 36
    s_mul_i32 s{sB}, s{sW}, 9
    s_add_u32 s{sA}, s{sA}, s{sB}
    v_add_u32 v16, s{sA}, v0
    s_mov_b32 s{sA}, {ROWW}
    v_mul_lo_u32 v17, v16, s{sA}
    v_mov_b32 v18, 0x7ff00000
    v_cmp_gt_u32 vcc, 9, v0
    s_nop 1
    v_cndmask_b32 v{vTG}, v18, v17, vcc
    """)
    e("s_waitcnt lgkmcnt(0)")
    if DIAG: e(f"v_mov_b32 v{vDIAG}, 0\nv_writelane_b32 v{vDIAG}, s100, 0")
    pstamp(e, 50)
    for s_, nb in ((S_X, 2048 * ROWD), (S_WG, 576 * ROWW), (S_WU, 576 * ROWW)): srd(e, s_, None, nb)
    def xdma_rot(pos):
        e(f"s_lshr_b32 s{sB}, s2, 6\ns_add_u32 s{sB}, s{sB}, {pos}\ns_cmp_ge_u32 s{sB}, 5\ns_cselect_b32 s{sC}, 5, 0\ns_sub_u32 s{sB}, s{sB}, s{sC}")
        e(f"s_lshl_b32 s{sA}, s{sB}, 7\ns_lshl_b32 s{sB}, s{sB}, 12\ns_add_u32 s{sB}, s{sB}, s{sXS}")
        for q in range(4):
            e(f"s_add_u32 m0, s{sB}, {q * 1024}\ns_nop 0")
            e.vmem(f"buffer_load_dwordx4 v{96+q}, {SRD(S_X)}, s{sA} offen lds", ("x", "A"))
    def udma(u):
        for pre, loads in dma_groups(u):
            for s in pre: e(s)
            e("s_nop 0")
            for s in loads: e.vmem(s, ("u", u))
    NET = next((int(a[2:]) for a in ABL if a.startswith("et")), 0)
    if "notouch" not in ABL:
        for u in range(NET):
            for t, isv in touch_ops(u): (e.vmem(t, "touch") if isv else e(t))
    for pos in range(5): xdma_rot(pos)
    udma(0); udma(1)
    if "notouch" not in ABL and "earlyt" in ABL:
        for u in range(max(NET, 2), PF):
            for t, isv in touch_ops(u): (e.vmem(t, "touch") if isv else e(t))
    pstamp(e, 51)
    e(f"""
    v_lshrrev_b32 v16, 5, v0             ; h
    v_bfe_u32 v17, v0, 4, 1              ; fb
    v_bfe_u32 v18, v0, 2, 2              ; r
    v_and_b32 v19, 3, v0                 ; c4
    v_lshlrev_b32 v20, 5, v17
    v_lshl_add_u32 v20, v19, 3, v20      ; 32 fb + 8 c4
    v_lshrrev_b32 v21, 1, v18
    v_lshlrev_b32 v21, 6, v21            ; 64*sw
    v_xor_b32 v22, 64, v21
    v_lshl_add_u32 v23, v16, 3, v18      ; 8h + r
    v_lshlrev_b32 v2, 7, v23
    v_add3_u32 v{vPGp[0]}, v2, v21, v20
    v_add3_u32 v{vPGp[1]}, v2, v22, v20
    v_and_b32 v16, 31, v0
    v_lshrrev_b32 v17, 5, v0
    v_lshrrev_b32 v18, 3, v16
    v_lshlrev_b32 v18, 10, v18
    v_and_b32 v19, 7, v16
    v_lshl_add_u32 v18, v19, 7, v18
    v_add_u32 v18, s{sXS}, v18
    v_bfe_u32 v19, v16, 1, 3
    """)
    for q4 in range(4):
        e(f"v_add_u32 v20, {2*q4}, v17\nv_xor_b32 v20, v20, v19\nv_lshl_add_u32 v{100+q4}, v20, 4, v18")
    pstamp(e, 52)
    e.wait(vm=("x", "A"))
    pstamp(e, 53)
    for kc in range(5):
        for q4 in range(4):
            e.lds(f"ds_read_b128 {ar(4 * (4*kc + q4))}, v{100+q4} offset:{kc * 4096}", ("xf", 4*kc + q4))
    for q in range(4): e(f"v_mov_b32 v{16+q}, v{96+q}\nv_mov_b32 v{20+q}, v{100+q}")
    e.wait(lg=("xf", 19))
    e(f"s_lshl_b32 s{sXB2}, s{sW}, 13\ns_add_u32 s{sXB2}, s{sXB2}, {3 * SLOT}\ns_lshl_b32 s{sXB3}, s{sW}, 12\ns_add_u32 s{sXB3}, s{sXB3}, {FOLD}")
    e(f"s_sub_u32 s{sA}, s{sXB2}, s{sXS}")
    for q in range(4): e(f"v_add_u32 v{20+q}, s{sA}, v{20+q}")
    stamp(e, 1)

APX_LATE = []
def late_setup():
    L = []
    def a(txt):
        for x in txt.split("\n"):
            x = x.split(";")[0].strip()
            if x: L.append(x)
    for s_, nb in ((S_WD, 4608 * ROWD), (S_WS, WS_BYTES), (S_DBG, 256), (S_CD, 576 * ROWD), (S_SD, 576 * ROWD), (S_GW, 1152)):
        a(f"s_and_b32 s{s_+1}, s{s_+1}, 0xffff\ns_mov_b32 s{s_+2}, {nb}\ns_mov_b32 s{s_+3}, 0x20000")
    a(f"""
    s_lshr_b32 s{sA}, s2, 3
    s_and_b32 s{sA}, s{sA}, 7
    s_mul_i32 s{sA}, s{sA}, 36
    s_mul_i32 s{sB}, s{sW}, 9
    s_add_u32 s{sA}, s{sA}, s{sB}
    v_add_u32 v192, s{sA}, v0
    s_mov_b32 s{sA}, {ROWW}
    v_mul_lo_u32 v193, v192, s{sA}
    v_mul_u32_u24 v194, {ROWD}, v192
    v_mov_b32 v195, 0x7ff00000
    v_cmp_gt_u32 vcc, 9, v0
    s_nop 1
    v_cndmask_b32 v{vTG}, v195, v193, vcc
    v_cndmask_b32 v206, v195, v194, vcc
    """)
    L.append(("s_nop 0", "tg_ready"))
    a(f"""
    s_lshl_b32 s{sA}, s{sI}, 4
    s_add_u32 s{sA}, s{sA}, s{sJ}
    s_xor_b32 s{sD}, s{sA}, 1
    s_and_b32 s{sFoffP}, s{sD}, 63
    s_lshl_b32 s{sFoffP}, s{sFoffP}, 2
    s_lshr_b32 s{sFbitP}, s{sD}, 6
    s_lshl_b32 s{sB}, s{sD}, 7
    s_lshl_b32 s{sC}, s{sW}, 2
    s_add_u32 s{sB}, s{sB}, s{sC}
    s_add_u32 s{sOBp}, s{sB}, {WS_FLAG}
    s_and_b32 s{sB}, s{sA}, 63
    s_lshl_b32 s{sB}, s{sB}, 2
    s_lshr_b32 s{sC}, s{sA}, 6
    s_lshl_b32 s{sC}, 1, s{sC}
    v_mov_b32 v{vMISC}, s{sC}
    v_mov_b32 v{vPOLL}, s{sB}
    v_mov_b32 v{vZERO}, 0
    v_mov_b32 v192, 0x7ffffff0
    s_lshl_b32 s{sB}, s{sA}, 7
    s_add_u32 s{sB}, s{sB}, {WS_FLAG}
    s_lshl_b32 s{sC}, s{sW}, 2
    s_add_u32 s{sC}, s{sC}, s{sB}
    v_mov_b32 v{vOB}, s{sC}
    v_mov_b32 v193, s{sB}
    v_cmp_eq_u32 vcc, 0, v0
    s_lshl_b32 s{sC}, s{sW}, 6
    v_add_u32 v194, s{sC}, v0
    v_cndmask_b32 v{vOB}, v192, v{vOB}, vcc
    v_cmp_eq_u32 vcc, 0, v194
    v_mov_b32 v200, 0
    v_mov_b32 v201, 0
    v_cndmask_b32 v{vPOLL}, v192, v{vPOLL}, vcc
    v_cndmask_b32 v204, v192, v193, vcc
    v_mov_b32 v202, 0
    v_mov_b32 v203, 0
    """)
    L.append(("s_nop 0", "clr_ready"))
    a(f"""
    s_mul_i32 s{sB}, s{sW}, 18432
    s_mul_i32 s{sC}, s{sA}, 73728
    s_add_u32 s{sC}, s{sC}, s{sB}
    s_add_u32 s{sHXo}, s{sC}, {WS_HX}
    s_mul_i32 s{sC}, s{sD}, 73728
    s_add_u32 s{sC}, s{sC}, s{sB}
    s_add_u32 s{sHXp}, s{sC}, {WS_HX}
    s_lshr_b32 s{sB}, s{sI}, 1
    s_mul_i32 s{sB}, s{sB}, {8 * PS}
    s_mul_i32 s{sC}, s{sW}, {2 * PS}
    s_add_u32 s{sB}, s{sB}, s{sC}
    s_lshr_b32 s{sC}, s{sJ}, 1
    s_mul_i32 s{sC}, s{sC}, {18 * 2048}
    s_add_u32 s{sB}, s{sB}, s{sC}
    s_add_u32 s{sB}, s{sB}, {WS_PART}
    s_mul_i32 s{sC}, s{sODD}, {10 * 2048}
    s_add_u32 s{sPARTp}, s{sB}, s{sC}
    s_add_u32 s{sC}, s{sODD}, 8
    s_lshl_b32 s{sC}, s{sC}, 11
    s_add_u32 s{sPARTs}, s{sB}, s{sC}
    s_mul_i32 s{sA}, s{sJ}, 288
    s_lshl_b32 s{sB}, s{sODD}, 5
    s_add_u32 s{sB}, s{sA}, s{sB}
    s_xor_b32 s{sC}, s{sODD}, 1
    s_lshl_b32 s{sC}, s{sC}, 8
    s_add_u32 s{sC}, s{sA}, s{sC}
    s_xor_b32 s{sD}, s{sJ}, 1
    s_mul_i32 s{sD}, s{sD}, 288
    s_lshl_b32 s{sTGs}, s{sC}, 1
    s_mul_i32 s{sE}, s{sW}, {64 * ROWW}
    s_add_u32 s{sSA}, s{sE}, s{sTGs}
    s_mul_i32 s{sE}, s{sW}, {16 * ROWW}
    s_add_u32 s{sE}, s{sE}, {512 * ROWW}
    s_add_u32 s{sSL}, s{sE}, s{sTGs}
    s_mul_i32 s90, s{sODD}, 640
    s_mul_i32 s91, s{sODD}, 576
    s_xor_b32 s92, s{sODD}, 1
    s_lshl_b32 s93, s92, 9
    s_add_u32 s91, s91, s93
    s_mul_i32 s{sE}, s{sA}, {ROWD}
    s_add_u32 s{sTDo}, s{sE}, s90
    s_mul_i32 s{sE}, s{sD}, {ROWD}
    s_add_u32 s{sTDp}, s{sE}, s90
    s_and_b32 s{sE}, s{sJ}, 14
    s_mul_i32 s{sE}, s{sE}, {288 * ROWD}
    s_add_u32 s{sTS}, s{sE}, s91
    s_lshl_b32 s93, s92, 5
    s_add_u32 s93, s{sD}, s93
    s_lshl_b32 s94, s{sODD}, 8
    s_add_u32 s94, s{sD}, s94
    s_lshl_b32 s{sE}, s{sW}, 5
    s_add_u32 s{sF}, s{sB}, s{sE}
    s_mul_i32 s{sF}, s{sF}, {ROWD}
    s_add_u32 s{sDAo}, s{sF}, s90
    s_add_u32 s{sF}, s93, s{sE}
    s_mul_i32 s{sF}, s{sF}, {ROWD}
    s_add_u32 s{sDAp}, s{sF}, s90
    s_lshl_b32 s{sE}, s{sW}, 3
    s_add_u32 s{sF}, s{sC}, s{sE}
    s_mul_i32 s{sF}, s{sF}, {ROWD}
    s_add_u32 s{sDLo}, s{sF}, s90
    s_add_u32 s{sF}, s94, s{sE}
    s_mul_i32 s{sF}, s{sF}, {ROWD}
    s_add_u32 s{sDLp}, s{sF}, s90
    s_lshl_b32 s{sE}, s{sW}, 6
    s_add_u32 s{sF}, s{sB}, s{sE}
    s_mul_i32 s{sF}, s{sF}, {ROWD}
    s_add_u32 s{sUA}, s{sF}, s91
    s_add_u32 s{sF}, s93, s{sE}
    s_mul_i32 s{sF}, s{sF}, {ROWD}
    s_add_u32 s{sUB}, s{sF}, s91
    s_cmp_lt_u32 s{sW}, 2
    s_cselect_b32 s{sF}, s{sC}, s94
    s_and_b32 s{sE}, s{sW}, 1
    s_lshl_b32 s{sE}, s{sE}, 4
    s_add_u32 s{sF}, s{sF}, s{sE}
    s_mul_i32 s{sF}, s{sF}, {ROWD}
    s_add_u32 s{sUL}, s{sF}, s91
    s_cmp_ge_u32 s{sJ}, 9
    s_cselect_b32 s{sCS}, 1, 0
    s_cselect_b32 s{S_T}, s{S_SD}, s{S_CD}
    s_cselect_b32 s{S_T+1}, s{S_SD+1}, s{S_CD+1}
    s_mov_b32 s{S_T+2}, {576 * ROWD}
    s_mov_b32 s{S_T+3}, 0x20000
    s_lshl_b32 s{sB}, s{sCS}, 3
    s_sub_u32 s{sCcol}, s{sJ}, s{sB}
    s_mul_i32 s{sTrow}, s{sCcol}, {32 * ROWD}
    v_lshrrev_b32 v192, 5, v0
    v_bfe_u32 v193, v0, 4, 1
    v_bfe_u32 v194, v0, 2, 2
    v_and_b32 v195, 3, v0
    v_lshlrev_b32 v196, 5, v193
    v_lshl_add_u32 v196, v195, 3, v196
    v_lshrrev_b32 v197, 1, v194
    v_lshlrev_b32 v197, 6, v197
    v_xor_b32 v198, 64, v197
    v_lshl_add_u32 v199, v192, 3, v194
    v_lshl_add_u32 v{vPGs}, v199, 6, v196
    v_lshl_add_u32 v199, v192, 2, v194
    v_lshlrev_b32 v205, 7, v199
    v_add3_u32 v{vPDp[0]}, v205, v197, v196
    v_add3_u32 v{vPDp[1]}, v205, v198, v196
    v_lshl_add_u32 v{vPDs}, v199, 6, v196
    v_bfe_u32 v192, v0, 2, 1
    v_bfe_u32 v193, v0, 4, 1
    v_xor_b32 v192, v192, v193
    v_lshlrev_b32 v192, 6, v192
    v_lshl_add_u32 v192, v195, 4, v192
    v_lshrrev_b32 v193, 3, v0
    v_mul_u32_u24 v193, {ROWD}, v193
    v_add_u32 v{vDDp}, v193, v192
    v_lshrrev_b32 v192, 2, v0
    v_lshlrev_b32 v193, 4, v195
    s_mov_b32 s{sA}, {ROWW}
    v_mul_lo_u32 v194, v192, s{sA}
    v_add_u32 v{vDGs}, v194, v193
    v_mul_u32_u24 v194, {ROWD}, v192
    v_add_u32 v{vDDs}, v194, v193
    """)
    for q in range(1, 4):
        a(f"v_add_u32 v{vDDp+q}, {q * (8 * ROWD - 1024)}, v{vDDp}")
        a(f"v_add_u32 v{vDGs+q}, {q * (16 * ROWW - 1024)}, v{vDGs}")
        a(f"v_add_u32 v{vDDs+q}, {q * (16 * ROWD - 1024)}, v{vDDs}")
    a(f"v_mov_b32 v{vTD}, v206")
    APX_LATE.clear()
    L.append(("s_nop 0", "late_done"))
    return [(x, 1) if isinstance(x, str) else (x[0], 1, x[1]) for x in L]

vR = 24; vO = 56; vP = 64; vM = 68; vFA = 72; vFB = 73; vFC = 74; vFD = 75
def fold_write_ops(acc=vTACC):
    ops = [f"s_lshl_b32 s{sE}, s{sW}, 12", f"s_add_u32 s{sE}, s{sE}, {FOLD}", f"v_add_u32 v21, s{sE}, v{vL16}"]
    w = [f"ds_write_b128 v21, {vr(acc + 4*z)} offset:{1024*z}" for z in range(4)]
    return ops, w
def fold_setup_ops():
    ops = [f"s_lshr_b32 s{sE}, s{sW}, 1", f"s_lshl_b32 s{sE}, s{sE}, 11", f"s_add_u32 s{sE}, s{sE}, {FOLD}",
           f"v_add_u32 v{vFB}, s{sE}, v{vL16}",
           f"s_and_b32 s{sE}, s{sW}, 1", f"s_lshl_b32 s{sF}, s{sCS}, 1", f"s_or_b32 s{sE}, s{sE}, s{sF}"]
    masks = [0b1100, 0b1010, 0b0110, 0b0000]
    neg = {0: (2, 3), 1: (1, 3), 2: (1, 2), 3: ()}
    for g in range(4):
        m = sum(1 << i for i in neg[g])
        ops += [f"s_lshr_b32 s{sF}, {m}, s{sE}", f"s_bitcmp1_b32 s{sF}, 0", f"s_cselect_b32 s{sSG+g}, 0xbf800000, 1.0"]
    ops += [f"s_cmp_eq_u32 s{sE}, 0", f"s_cselect_b32 s{sEA}, 1.0, 0", f"s_cselect_b32 s{sEB}, 1.0, 0",
            f"s_cmp_eq_u32 s{sE}, 3", f"s_cselect_b32 s{sEA}, 0xbf800000, s{sEA}", f"s_cselect_b32 s{sEB}, 1.0, s{sEB}"]
    return ops
def fold_reads():
    return [(f"ds_read_b128 {vr(vR + 8*g + 4*z)}, v{vFB} offset:{4096*g + 1024*z}", ("fr", g, z)) for g in range(4) for z in range(2)]
def fold_math(signs=None):
    if signs is None: signs = [f"s{sSG+g}" for g in range(4)]
    ops = []
    for r in range(8):
        R = [vR + 8*g + r for g in range(4)]
        if r == 0:
            ops += [f"v_mul_f32 v{vFD}, {signs[2]}, v{R[2]}", f"v_fma_f32 v{vFD}, {signs[3]}, v{R[3]}, v{vFD}",
                    f"v_mul_f32 v{vFD}, v{vFC}, v{vFD}",
                    f"v_fma_f32 v{vO}, {signs[0]}, v{R[0]}, v{vFD}", f"v_fma_f32 v{vO}, {signs[1]}, v{R[1]}, v{vO}"]
        else:
            ops += [f"v_mul_f32 v{vO+r}, {signs[0]}, v{R[0]}"] + [f"v_fma_f32 v{vO+r}, {signs[g]}, v{R[g]}, v{vO+r}" for g in range(1, 4)]
    for q in range(4): ops.append(f"v_cvt_pk_bf16_f32 v{vP+q}, v{vO+2*q}, v{vO+2*q+1}")
    ops += ["s_nop 1", f"v_permlane32_swap_b32 v{vP}, v{vP+2}", f"v_permlane32_swap_b32 v{vP+1}, v{vP+3}"]
    return ops
def fold_mask_ops():
    return [f"s_lshr_b32 s{sE}, s{sW}, 1", f"s_or_b32 s{sE}, s{sE}, s{sI}", f"s_cmp_eq_u32 s{sE}, 0", f"s_cselect_b32 s{sE}, 512, 0",
            f"v_cmp_gt_u32 vcc, s{sE}, v{vL16}", f"v_mov_b32 v{vFC}, 1.0", "s_nop 0", f"v_cndmask_b32 v{vFC}, v{vFC}, v{vZERO}, vcc"]
def z_addr_ops():
    return [f"s_and_b32 s{sE}, s{sW}, 1", f"s_lshl_b32 s{sE}, s{sE}, 1", f"s_add_u32 s{sE}, s{sE}, s{sCS}",
            f"s_mul_i32 s{sC}, s{sE}, {18*33*1024}", f"s_lshl_b32 s{sE}, s{sI}, 1", f"s_lshr_b32 s{sF}, s{sW}, 1", f"s_add_u32 s{sE}, s{sE}, s{sF}",
            f"s_lshl_b32 s{sE}, s{sE}, 10", f"s_add_u32 s{sC}, s{sC}, s{sE}", f"s_add_u32 s{sC}, s{sC}, {WS_Z}",
            f"s_mul_i32 s{sE}, s{sCcol}, {33*1024}", f"v_add_u32 v{vFA}, s{sE}, v{vL16}",
            f"v_bfe_u32 v{vM}, v{vL16}, 4, 5", f"s_lshl_b32 s{sE}, s{sCcol}, 5", f"v_add_u32 v{vM}, s{sE}, v{vM}",
            f"v_sub_u32 v{vM+1}, 576, v{vM}", f"v_lshrrev_b32 v{vM+2}, 5, v{vM+1}", f"v_mul_u32_u24 v{vM+2}, {33*1024}, v{vM+2}",
            f"v_and_b32 v{vM+1}, 31, v{vM+1}", f"v_lshlrev_b32 v{vM+1}, 4, v{vM+1}", f"v_and_b32 v{vM+3}, 512, v{vL16}",
            f"v_add3_u32 v{vFB}, v{vM+1}, v{vM+2}, v{vM+3}",
            f"v_cmp_eq_u32 vcc, 0, v{vM}", f"v_mov_b32 v{vM+1}, 0x7ff00000", "s_nop 0", f"v_cndmask_b32 v{vFB}, v{vFB}, v{vM+1}, vcc",
            f"s_cmp_eq_u32 s{sCS}, 1", f"s_cselect_b32 s{sD}, 0x80008000, 0"]
def z_store_ops():
    ops = [(f"buffer_store_dwordx4 {vr(vP)}, v{vFA}, {SRD(S_WS)}, s{sC} offen{ZF}", "vm")]
    ops += [(f"v_xor_b32 v{vM+q}, s{sD}, v{vP+q}", None) for q in range(4)]
    ops += [(f"buffer_store_dwordx4 {vr(vM)}, v{vFB}, {SRD(S_WS)}, s{sC} offen{ZF}", "vm")]
    return ops
def z512_ops(lbl):
    return f"""
    s_lshr_b32 s{sE}, s{sW}, 1
    s_or_b32 s{sE}, s{sE}, s{sI}
    s_cmp_eq_u32 s{sE}, 0
    s_cbranch_scc0 {lbl}
    v_mul_f32 v{vO}, s{sEA}, v{vR + 16}
    v_fma_f32 v{vO}, s{sEB}, v{vR + 24}, v{vO}
    v_cmp_gt_u32 vcc, 512, v{vL16}
    v_mov_b32 v{vO+1}, 0
    s_nop 0
    v_cndmask_b32 v{vO}, v{vO+1}, v{vO}, vcc
    v_cvt_pk_bf16_f32 v{vO+4}, v{vO}, v{vO+1}
    v_mov_b32 v{vO+5}, 0
    v_mov_b32 v{vO+6}, 0
    v_mov_b32 v{vO+7}, 0
    s_add_u32 s{sE}, s{sC}, {32 * 1024}
    buffer_store_dwordx4 {vr(vO+4)}, v{vFA}, {SRD(S_WS)}, s{sE} offen{ZF}
    s_nop 1
    v_xor_b32 v{vO+4}, s{sD}, v{vO+4}
    buffer_store_dwordx4 {vr(vO+4)}, v{vFB}, {SRD(S_WS)}, s{sE} offen{ZF}
    {lbl}:
    """

def gen_main(e):
    def set_work(u):
        pats = unit_patterns(u); sb = ring_slot(u) * SLOT
        for i, p in enumerate(pats):
            e(f"v_add_u32 v{vWK[i]}, {sb}, v{p}" if sb else f"v_mov_b32 v{vWK[i]}, v{p}")
    def reads(u, n):
        gn = 36 * u + n; b = aFR + 4 * (gn % 8); c = 0
        for (do, nr, ins, va, off) in frag_reads(u, n):
            e.lds(f"{ins} {ar(b + do, nr)}, v{va} offset:{off}", ("f", gn)); c += 1
        return c
    if "pk" in ABL: e(f"s_mov_b32 s{sPKC}, {NLOG2E}\ns_mov_b32 s{sPKC+1}, {NLOG2E}\ns_mov_b32 s{sPK1}, 1.0\ns_mov_b32 s{sPK1+1}, 1.0")
    e.wait(vm=("u", 0)); e("s_barrier")
    if DIAG: e("s_waitcnt lgkmcnt(0)"); settle(e); stamp(e, 2)
    set_work(0)
    for n in range(6): reads(0, n)

    queue = []
    def add(ops, gslot):
        prev = None
        merged = []
        for o in ops:
            if not isinstance(o, Op):
                if isinstance(o, str): o = (o, 1)
                if o[0].startswith("s_cselect") and merged and not isinstance(merged[-1], Op):
                    p_ = merged[-1]
                    assert p_[0].split("\n")[0].startswith(("s_cmp", "s_bitcmp")), p_
                    merged[-1] = (p_[0] + "\n" + o[0], p_[1] + 1) + tuple(p_[2:]); continue
            merged.append(o)
        for o in merged:
            if isinstance(o, Op): queue.append(o); continue
            op = Op(o[0], o[1], [(prev, 1)] if prev else [], gslot, o[2] if len(o) > 2 else None)
            queue.append(op); prev = op
    done = set()
    def ready(o):
        n = len(e.l)
        return all(d.at is not None and n - d.at >= dist for d, dist in o.deps)
    def emit(o):
        queue.remove(o); o.at = len(e.l); e(o.text)
        if o.tag: done.add(o.tag)
        return o.cost
    def fill(gs, room):
        used = 0
        while True:
            for o in queue[:40]:
                if o.nb <= gs and (o.cost <= room - used or (o.cost > 2 and used == 0)) and ready(o):
                    used += emit(o); break
            else: return used
    def force(o):
        for d, dist in o.deps:
            if d.at is None: force(d)
        while not ready(o): e("s_nop 0")
        emit(o)
    def drain_until(tag):
        while tag not in done:
            tgt = next(o for o in queue if o.tag == tag)
            force(tgt)
    def pop(): force(queue[0])
    G = lambda u, n: 36 * u + n
    P_early = []
    MT = []
    add(late_setup(), G(0, 0))
    def xb_dma(u_, kc, slots):
        base = (f"s{sXB2}", (kc - 5) * 4096) if kc < 7 else (f"s{sXB3}", 0)
        P_early.append((u_, slots[0] - 1, f"s_movk_i32 s{sXB}, {128 * kc}", None))
        for q in range(4):
            P_early.append((u_, slots[q] - 1, f"s_add_u32 m0, {base[0]}, {base[1] + q * 1024}", None))
            P_early.append((u_, slots[q], f"buffer_load_dwordx4 v{16+q}, {SRD(S_X)}, s{sXB} offen lds", ("x", kc)))
    xb_dma(0, 5, [1, 2, 3, 4]); xb_dma(0, 6, [5, 6, 7, 8]); xb_dma(0, 7, [9, 10, 11, 12]); xb_dma(1, 8, [7, 8, 9, 10])
    _tmp_last.clear()
    for p in range(4):
        ops, last = silu_chain(vG[p & 1], 32, G(3, 3) if p == 0 else G(4*p + 2, 3)); add(ops, 0)
        add(h_chain(vG[p & 1], vU, 2*p, last, 0, G(4*p + 4, 3)), 0)
        add(h_chain(vG[p & 1] + 16, vU + 16, 2*p + 1, last, 16, G(4*p + 4, 3)), 0)
    ops, last = silu_chain(vG[0], 16, G(17, 3)); add(ops, 0); add(h_chain(vG[0], vUS, 8, last, 0, G(18, 3)), 0)
    deadlines = {G(6, 0): [("h", 0), ("h", 1)], G(10, 0): [("h", 2), ("h", 3)], G(14, 0): [("h", 4), ("h", 5)], G(18, 0): [("h", 6), ("h", 7)], G(18, 32): [("h", 8)]}
    post = {}
    def P(u, n, text, tag=None): post.setdefault((u, n), []).append((text, tag))
    for (u_, n_, t_, g_) in P_early: P(u_, n_, t_, g_)
    pre = {}
    def PRE(u, n, fn): pre.setdefault((u, n), []).append(fn)
    PRE(1, 6, lambda: drain_until("clr_ready"))
    P(1, 30, f"buffer_store_dwordx4 v[200:203], v204, {SRD(S_WS)}, 0 offen sc1", "clr")
    PRE(0, 33, lambda: drain_until("tg_ready"))
    PRE(3, 0, lambda: drain_until("late_done"))
    def sched_dma(u, tgt, slots):
        g = dma_groups(tgt); i = 0
        for pre_, loads in g:
            for s_ in pre_: P(u, slots[i], s_)
            i += 1
            for s_ in loads: P(u, slots[i], s_, ("u", tgt)); i += 1
    STD = [1, 2, 4, 6, 8, 10, 11, 13, 15, 17, 19, 20]
    TWO_A = [1, 2, 3, 4, 5, 7, 8, 9, 10, 11, 13, 14]; TWO_B = [16, 17, 19, 21, 23, 25, 26, 27, 28, 29, 30, 31]
    sched_dma(0, 2, [13, 14, 15, 16, 17, 19, 20, 21, 22, 23, 25, 26])
    if "ramp1" not in ABL and "ramp3" not in ABL:
        sched_dma(2, 3, [0, 1, 2, 3, 4, 5, 6, 7, 9, 10, 11, 12]); sched_dma(2, 4, TWO_B)
        sched_dma(3, 5, TWO_A); sched_dma(3, 6, TWO_B)
        sched_dma(4, 7, STD)
        first_std = 5
    elif "ramp3" in ABL:
        sched_dma(1, 4, [22, 23, 24, 25, 26, 27, 28, 29, 30, 31, 32, 34])
        sched_dma(2, 3, [0, 1, 2, 3, 4, 5, 6, 7, 9, 10, 11, 12])
        sched_dma(3, 5, TWO_A); sched_dma(3, 6, TWO_B)
        first_std = 4
    else:
        sched_dma(1, 4, [12, 13, 15, 17, 19, 21, 22, 24, 26, 27, 28, 29])
        sched_dma(2, 3, [0, 1, 2, 3, 4, 5, 6, 7, 9, 10, 11, 12]); sched_dma(2, 5, TWO_B)
        first_std = 3
    for u in range(first_std, NUNIT - 3):
        if u + 3 == U_T1:
            for k_, s_ in enumerate(T_dma_addr(None)): P(u, k_ // 3, s_)
            sched_dma(u, u + 3, [11, 12, 13, 14, 15, 17, 18, 19, 20, 21, 23, 24])
        else:
            sched_dma(u, u + 3, STD)
    if "notouch" not in ABL:
        NET = next((int(a[2:]) for a in ABL if a.startswith("et")), 0)
        for k_, u in enumerate(range(max(NET, 2), PF) if "earlyt" not in ABL else []):
            for t, isv in touch_ops(u): P(0, 34 if k_ < 2 else 35, t, "touch" if isv else None)
        PFL = next((int(a[3:]) for a in ABL if a.startswith("pfl")), 20)
        cnt_ = {}
        for v in range(PF, NUNIT):
            u = max(1, v - PFL)
            while cnt_.get(u, 0) >= 2: u += 1
            k_ = cnt_.get(u, 0); cnt_[u] = k_ + 1
            sl = (31 + k_) if u in (1, 2) else (22 + 2 * k_)
            for t, isv in touch_ops(v): P(u, sl, t, "touch" if isv else None)
    PRE(1, 0, lambda: e.wait(vm=("x", 7)))
    for k_ in range(8):
        kc = 5 + k_ // 4; q4 = k_ % 4
        P(1, k_ // 4, f"ds_read_b128 {ar(4 * (4*kc + q4))}, v{20+q4} offset:{(kc - 5) * 4096}", ("lds", ("xf", 4*kc + q4)))
    P(1, 2, f"s_sub_u32 s{sXB}, s{sXB3}, s{sXB2}")
    for q4 in range(4): P(1, 2, f"v_add_u32 v{20+q4}, s{sXB}, v{20+q4}")
    for q4 in range(4): P(1, 3, f"ds_read_b128 {ar(4 * (28 + q4))}, v{20+q4}", ("lds", ("xf", 28 + q4)))
    PRE(1, 6, lambda: e.wait(lg=("xf", 31)))
    PRE(2, 8, lambda: e.wait(vm=("x", 8)))
    for q4 in range(4): P(2, 8, f"ds_read_b128 {ar(4 * (32 + q4))}, v{20+q4}", ("lds", ("xf", 32 + q4)))
    if "apxs" not in ABL:
        P(4, 2, f"s_min_u32 s{sAPX}, s{sJ}, 3")
    else:
        for k_, s_ in enumerate([f"s_sub_u32 s{sE}, s{sJ}, s{sI}", f"s_and_b32 s{sE}, s{sE}, 15", f"s_mul_i32 s{sC}, s{sE}, 13", f"s_lshr_b32 s{sC}, s{sC}, 6",
                                 f"s_mul_i32 s{sAPX}, s{sC}, 5", f"s_cmp_eq_u32 s{sAPX}, s{sE}\ns_cselect_b32 s{sAPX}, s{sC}, 3"]): P(4, 2 + k_, s_)
    P(4, 34, f"buffer_atomic_or v{vMISC}, v{vPOLL}, {SRD(S_DBG)}, 0 offen", "clrbit")
    P(8, 24, f"buffer_load_dword v{vPOLL}, v{vZERO}, {SRD(S_DBG)}, s{sFoffP} offen sc1", "pollc")
    def chk_c():
        e.wait(vm="pollc"); e(f"v_readfirstlane_b32 s{sE}, v{vPOLL}\ns_nop 3\ns_bitcmp1_b32 s{sE}, s{sFbitP}\ns_cbranch_scc0 K1_spinc\nK1_spinc_done:")
    PRE(11, 6, chk_c)
    if "notouch" not in ABL:
        tt = [f"s_lshr_b32 s{sE}, s2, 3", f"s_and_b32 s{sE}, s{sE}, 7", f"s_mul_i32 s{sE}, s{sE}, 36", f"s_mul_i32 s{sC}, s{sW}, 9",
              f"s_add_u32 s{sE}, s{sE}, s{sC}", f"s_lshl_b32 s{sE}, s{sE}, 7", f"v_lshlrev_b32 v{vMISC}, 3, v{vL16}",
              f"v_add_u32 v{vMISC}, s{sE}, v{vMISC}", f"v_cmp_gt_u32 vcc, 144, v{vL16}", f"v_mov_b32 v{vPOLL}, 0x7ff00000", "s_nop 0",
              f"v_cndmask_b32 v{vMISC}, v{vPOLL}, v{vMISC}, vcc"]
        for k_, s_ in enumerate(tt): P(12, 26 + k_ // 2, s_)
        P(13, 27, f"buffer_load_dword a{aDUM}, v{vMISC}, {SRD(S_T)}, s{sTrow} offen", "touch")
        t2 = [f"s_lshr_b32 s{sXB}, s2, 3", f"s_and_b32 s{sXB}, s{sXB}, 7", f"s_mul_i32 s{sXB}, s{sXB}, 36", f"s_mul_i32 s{sTCH}, s{sW}, 9",
              f"s_add_u32 s{sXB}, s{sXB}, s{sTCH}", f"s_lshl_b32 s{sXB}, s{sXB}, 7", f"v_lshlrev_b32 v23, 3, v{vL16}", f"v_add_u32 v23, s{sXB}, v23",
              f"v_cmp_gt_u32 vcc, 144, v{vL16}", f"v_mov_b32 v22, 0x7ff00000", "s_nop 0", f"v_cndmask_b32 v23, v22, v23, vcc",
              f"s_cmp_eq_u32 s{sAPX}, 0\ns_cselect_b32 s{sTCH}, {8 * 32 * ROWD}, 0\ns_cmp_gt_u32 s{sAPX}, 1\ns_cselect_b32 s{sTCH}, 0x7ff00000, s{sTCH}"]
        T2U = next((int(a[3:]) for a in ABL if a.startswith("t2u")), 20)
        for k_, s_ in enumerate(t2): P(T2U, 22 + k_ // 2, s_)
        P(T2U, 30, f"buffer_load_dword a{aDUM}, v23, {SRD(S_SD)}, s{sTCH} offen", "touch")
    if "notouch" not in ABL and "nomt" not in ABL:
        mt = [f"s_lshr_b32 s{sE}, s{sW}, 1\ns_lshl_b32 s{sE}, s{sE}, 3\ns_add_u32 s{sE}, s{sE}, {KA_CS}\ns_load_dwordx2 s[{S_DBG}:{S_DBG+1}], s[0:1], s{sE}",
              f"v_lshrrev_b32 v24, 4, v{vL16}", f"v_mul_u32_u24 v25, 57, v24", f"v_lshrrev_b32 v25, 9, v25",
              f"v_mul_u32_u24 v26, 9, v25", f"v_sub_u32 v26, v24, v26", f"s_lshl_b32 s{sE}, s2, 2", f"s_and_b32 s{sC}, s{sW}, 1",
              f"s_lshl_b32 s{sC}, s{sC}, 1", f"s_add_u32 s{sE}, s{sE}, s{sC}", f"v_add_u32 v25, s{sE}, v25", f"v_lshlrev_b32 v25, 12, v25",
              f"v_lshl_add_u32 v25, v26, 7, v25", f"v_mov_b32 v26, 0x7ff00000", f"v_cmp_gt_u32 vcc, 18, v24", "s_nop 1",
              f"v_cndmask_b32 v25, v26, v25, vcc"]
        for k_, s_ in enumerate(mt): P(25, 8 + k_, s_)
        P(25, 34, f"s_and_b32 s{S_DBG+1}, s{S_DBG+1}, 0xffff\ns_mov_b32 s{S_DBG+2}, {2048 * 4096}")
        MT.append(f"buffer_load_dword a{aDUM}, v25, {SRD(S_DBG)}, 0 offen")
    if "nocpf" not in ABL:
        c2 = [f"s_getpc_b64 s[{4}:{5}]\nK1_pc3:\ns_sub_u32 s4, s4, K1_pc3-K1_pc\ns_subb_u32 s5, s5, 0\ns_mov_b32 s{sCP}, s4\ns_and_b32 s{sCP+1}, s5, 0xffff\ns_mov_b32 s{sCP+2}, K1_codeend-K1_pc\ns_mov_b32 s{sCP+3}, 0x20000",
              f"s_lshr_b32 s{sE}, s2, 3", f"s_mul_i32 s{sE}, s{sE}, {CPF_LINES}", f"v_lshrrev_b32 v192, 4, v{vL16}", f"v_add_u32 v193, s{sE}, v192",
              f"v_lshlrev_b32 v193, 7, v193", f"v_mov_b32 v194, 0x7ff00000", f"v_cmp_gt_u32 vcc, {CPF_LINES}, v192", "s_nop 1", f"v_cndmask_b32 v193, v194, v193, vcc"]
        for k_, s_ in enumerate(c2): P(11, 23 + k_, s_)
        P(11, 34, f"s_cmp_eq_u32 s{sW}, 0\ns_cselect_b32 s{sE}, 0, 0x7ff00000")
        P(11, 35, f"buffer_load_dword a{aDUM}, v193, {SRD(sCP)}, s{sE} offen", "touch")
    hs = [(t, h) for t in range(9) for h in range(2)]
    hplan = [(6, 25), (7, 25), (8, 25), (9, 25), (10, 25), (11, 25), (12, 25), (13, 25), (14, 25), (14, 31), (15, 25), (15, 31),
             (17, 23), (17, 29), (17, 34), (18, 23), (18, 33), (19, 4)]
    for (t, h), (u, n) in zip(hs, hplan):
        a, b = h_store(t, h); P(u, n, a); P(u, n, b, ("hst", t))
        need = ("h", t)
        PRE(u, n, (lambda need=need: drain_until(need)))
    def mkflag(tag, val):
        def f():
            e.wait(vm=tag); e(f"v_mov_b32 v{vMISC}, {val}")
            e.vmem(f"buffer_store_dword v{vMISC}, v{vOB}, {SRD(S_WS)}, 0 offen sc1", ("flag", val))
        return f
    PRE(19, 9, mkflag(("hst", 7), 1)); PRE(20, 0, mkflag(("hst", 8), 2))
    def mkchk(tag, val, lbl):
        def f():
            e.wait(vm=tag)
            e(f"v_readfirstlane_b32 s{sE}, v{vPOLL}\ns_nop 3\ns_cmp_ge_u32 s{sE}, {val}\ns_cbranch_scc0 {lbl}\n{lbl}_done:")
        return f
    P(20, 22, f"buffer_load_dword v{vPOLL}, v{vZERO}, {SRD(S_WS)}, s{sOBp} offen sc1", "poll1")
    PRE(21, 12, mkchk("poll1", 1, "K1_spin"))
    P(22, 0, f"buffer_load_dword v{vPOLL}, v{vZERO}, {SRD(S_WS)}, s{sOBp} offen sc1", "poll2")
    PRE(22, 33, mkchk("poll2", 2, "K1_spin2"))
    hpl = [(21, 21 + 2*k_) for k_ in range(8)] + [(22, 21 + 2*k_) for k_ in range(8)] + [(23, 1), (23, 3)]
    for k_, (u, n) in enumerate(hpl):
        P(u, min(n, 35), f"s_add_u32 s{sD}, s{sHXp}, {(k_ * 1024) & ~4095}")
        P(u, min(n, 35), f"buffer_load_dwordx4 {ar(aHP + 4*k_)}, v{vL16}, {SRD(S_WS)}, s{sD} offen offset:{(k_ * 1024) & 4095} sc1", ("hp", k_))
    PRE(U_S, 17, lambda: e.wait(vm=("hp", 7)))
    PRE(U_S, 25, lambda: e.wait(vm=("hp", 15)))
    PRE(U_S, 33, lambda: e.wait(vm=("hp", 17)))
    for k_, s_ in enumerate(T_read_addr((U_T1 % 4) * SLOT)): P(21, 8 + k_ // 2, s_)
    pst = [f"v_bfe_u32 v20, v{vL16}, 4, 1", f"v_mul_u32_u24 v20, {PS}, v20" if PS < (1 << 24) else None,
           f"v_bfe_u32 v21, v{vL16}, 5, 4", f"s_and_b32 s{sE}, s{sI}, 1", f"s_lshl_b32 s{sE}, s{sE}, 4", f"v_add_u32 v21, s{sE}, v21",
           f"v_lshlrev_b32 v21, 4, v21", f"v_and_b32 v22, 512, v{vL16}", f"v_add3_u32 v{vPST}, v20, v21, v22"]
    for k_, s_ in enumerate(pst): P(22, 8 + k_, s_)
    if DIAG and "probe" in ABL:
        def mk(idx):
            def f():
                e(f"s_memrealtime s[96:97]\ns_waitcnt lgkmcnt(0)\nv_writelane_b32 v{vDIAG}, s96, {idx}")
            return f
        pts = PROBE_PTS
        for k_, (u_, n_) in enumerate(pts):
            pre.setdefault((u_, n_), []).insert(0, mk(44 + k_))
    if "nocpf" not in ABL and K2_LABELS:
        k2s, k2e = K2_LABELS
        cp = [f"s_getpc_b64 s[{S_T}:{S_T+1}]\nK1_pc2:\ns_add_u32 s{S_T}, s{S_T}, {k2s}-K1_pc2\ns_addc_u32 s{S_T+1}, s{S_T+1}, 0\ns_and_b32 s{S_T+1}, s{S_T+1}, 0xffff\ns_mov_b32 s{S_T+2}, {k2e}-{k2s}",
              f"s_lshr_b32 s{sE}, s2, 3", f"s_lshl_b32 s{sE}, s{sE}, 9", f"v_lshlrev_b32 v20, 3, v{vL16}", f"v_add_u32 v20, s{sE}, v20",
              f"v_mov_b32 v21, 0x7ff00000", f"v_cmp_gt_u32 vcc, 64, v{vL16}", "s_nop 1", f"v_cndmask_b32 v20, v21, v20, vcc"]
        for k_, s_ in enumerate(cp): P(23, 4 + k_, s_)
        P(23, 24, f"buffer_load_dword a{aDUM}, v20, {SRD(S_T)}, 0 offen", "touch")
    a_, w_ = fold_write_ops()
    def t_write():
        for s_ in a_: e(s_)
        e("s_nop 7")
        for s_ in w_: e.lds(s_, "fw")
    PRE(U_S, 0, t_write)
    fo = []
    fo += fold_setup_ops() + fold_mask_ops()
    add(fo, G(24, 0))
    add([("s_nop 0", 1, "fsetup")], G(24, 0)); queue[-1].deps = [(queue[-2], 1)]
    PRE(24, 9, lambda: drain_until("fsetup"))
    frs = fold_reads()
    for k_, (s_, tg) in enumerate(frs): P(24, 9 + k_, s_, ("lds", tg))
    PRE(24, 19, lambda: e.wait(lg=("fr", 3, 1)))
    add(z_addr_ops(), G(24, 17)); za_last = queue[-1]; add(fold_math(), G(24, 19))
    zs = z_store_ops()
    add([("s_nop 0", 1, "zready")], G(24, 19)); queue[-1].deps = [(queue[-2], 1), (za_last, 1)]
    def z_out():
        drain_until("zready")
        for s_, k_ in zs: (e.vmem(s_, "zst") if k_ else e(s_))
        e(z512_ops("K1_noz512"))
    PRE(25, 2, z_out)
    apx = {}
    ad = T_dma_addr(None) + [
        f"s_cmp_eq_u32 s{sAPX}, 2\ns_cselect_b32 s{S_T}, s{S_GW}, s{S_SD}\ns_cselect_b32 s{S_T+1}, s{S_GW+1}, s{S_SD+1}\ns_mov_b32 s{sXB}, {576 * ROWD}\ns_cselect_b32 s{S_T+2}, 1152, s{sXB}",
        f"s_cmp_gt_u32 s{sAPX}, 2\ns_cselect_b32 s{S_T+2}, 0, s{S_T+2}",
        f"v_add_u32 v21, {288 * ROWD}, v{vL16}"]
    for k_, s_ in enumerate(ad): P(24, 21 + k_ // 2 if k_ < 28 else 35, s_)
    def apx_scal():
        e(f"s_cmp_eq_u32 s{sAPX}, 0\ns_cselect_b32 s{sCcol}, 8, 0\ns_mov_b32 s{sCS}, 1\ns_mul_i32 s{sTrow}, s{sCcol}, {32 * ROWD}")
    PRE(25, 3, apx_scal)
    asl = [4, 5, 7, 9, 11, 13, 14, 16, 18, 21, 23, 24]
    i_ = 0
    for gi, (pre_, loads) in enumerate(dma_groups(U_T1, slot=APX_SLOT)):
        for s_ in pre_: P(25, asl[i_], s_)
        i_ += 1
        for q, s_ in enumerate(loads):
            special = (gi < 2 and q == 0) or gi == 2
            if special:
                lbl = f"K1_apx_n{gi}"; st_ = sT0 + gi
                txt = f"s_cmp_eq_u32 s{sAPX}, 1\ns_cbranch_scc0 {lbl}\n"
                if gi == 2: txt += f"s_cmp_eq_u32 s{sW}, 0\ns_cbranch_scc0 {lbl}\n"
                txt += (f"s_mov_b64 exec, 0xff\nbuffer_load_dwordx4 v21, {SRD(S_CD)}, s{st_} offen lds\ns_not_b64 exec, exec\n{s_}\n"
                        f"s_mov_b64 exec, -1\ns_branch {lbl}_d\n{lbl}:\n{s_}\n{lbl}_d:")
                P(25, asl[i_], txt, ("u", "apx"))
            else:
                P(25, asl[i_], s_, ("u", "apx"))
            i_ += 1
    for k_, s_ in enumerate(T_read_addr(APX_SLOT * SLOT)): P(26, 1 + k_ // 2, s_)
    if "oldp" in ABL:
        add(epi_ops(8), G(25, 4))
        pplan = {8: [(25, 12), (25, 17)], 0: [(25, 22), (25, 27)], 1: [(25, 32), (26, 6)], 2: [(26, 12), (26, 18)], 3: [(26, 24), (26, 30)],
                 4: [(27, 8), (27, 14)], 5: [(27, 20), (27, 26)]}
    else:
        add(epi_ops(8), G(24, 3))
        pplan = {8: [(24, 24), (24, 31)], 0: [(25, 27), (25, 32)], 1: [(26, 2), (26, 8)], 2: [(26, 14), (26, 20)], 3: [(26, 26), (26, 32)],
                 4: [(27, 8), (27, 15)], 5: [(27, 22), (27, 29)]}
    for q in range(2): add(epi_ops(2*q), G(25 + q, 4)); add(epi_ops(2*q + 1), G(25 + q, 4))
    for t, pl in pplan.items():
        for h, (u, n) in enumerate(pl):
            a, b = p_store(t, h); P(u, n, a); P(u, n, b, ("pst", t))
            PRE(u, n, (lambda t=t: drain_until(("e", t))))

    def slot(u, n, last_path=None):
        gs = G(u, n)
        if gs in deadlines:
            n0 = len(e.l)
            for tg_ in deadlines[gs]: drain_until(tg_)
            if VERBOSE: print("deadline", u, n, "forced", len(e.l) - n0)
        cost = 0
        for fn in pre.get((u, n), []): fn()
        nxt = u + 1 < NUNIT or last_path == "A"
        if n % 3 == 0:
            if n == 33 and nxt:
                nvm = e.vm_count([("u", u + 1)]) if u + 1 < NUNIT else len(e.vm) - apx["vmidx"]
                e(f"s_waitcnt vmcnt({min(nvm, 63)}) lgkmcnt(0)")
                settle(e); e("s_barrier"); stamp(e, 4 + u)
                if u + 1 < NUNIT: set_work(u + 1)
            else:
                e.wait(lg=[("f", gs), ("f", gs + 1), ("f", gs + 2)])
            cost += 1
        e(mfma(u, n))
        if n <= 29: cost += reads(u, n + 6)
        elif n >= 33 and nxt:
            cost += reads(u + 1, 2*(n - 33)); cost += reads(u + 1, 2*(n - 33) + 1)
        for s_, tg in post.get((u, n), []):
            if s_ is None: continue
            if isinstance(tg, tuple) and tg[0] == "lds": e.lds(s_, tg[1])
            elif tg is not None: e.vmem(s_, tg)
            else: e(s_)
            cost += 1
        if n == 32: return
        fill(gs, 5 - cost)
    LAST = NUNIT - 1
    for u in range(LAST):
        for n in range(36):
            if u == LAST - 1 and n == 33: break
            slot(u, n)
    e(f"s_cmp_gt_u32 s{sAPX}, 2\ns_cbranch_scc1 K1_tailN")
    assert not queue, [o.text for o in queue]
    sv = (list(e.vm), list(e.lg), getattr(e, "pending_stamp", None), set(done), {k_: list(v_) for k_, v_ in post.items()}, {k_: list(v_) for k_, v_ in pre.items()})
    def run(u, last):
        for n in range(36):
            gs = G(u, n)
            cost = 0
            for fn in pre.get((u, n), []): fn()
            if n % 3 == 0:
                if n == 33 and not last:
                    e("s_waitcnt lgkmcnt(0)"); set_work(u + 1)
                else: e.wait(lg=[("f", gs), ("f", gs + 1), ("f", gs + 2)])
                cost += 1
            e(mfma(u, n))
            if n <= 29: cost += reads(u, n + 6)
            elif n >= 33 and not last:
                cost += reads(u + 1, 2*(n - 33)); cost += reads(u + 1, 2*(n - 33) + 1)
            for s_, tg in post.get((u, n), []):
                if isinstance(tg, tuple) and tg[0] == "lds": e.lds(s_, tg[1])
                elif tg is not None: e.vmem(s_, tg)
                else: e(s_)
                cost += 1
            if n != 32: fill(gs, 5 - cost)
    def handover(u, nvm):
        for n in (33, 34, 35):
            if n == 33:
                e(f"s_waitcnt vmcnt({min(nvm, 63)}) lgkmcnt(0)")
                settle(e); e("s_barrier"); stamp(e, 4 + u); set_work(u + 1)
            e(mfma(u, n))
            reads(u + 1, 2*(n - 33)); reads(u + 1, 2*(n - 33) + 1)
            for s_, tg in post.get((u, n), []):
                (e.vmem(s_, tg) if tg is not None else e(s_))
    def tail():
        e("s_nop 7\ns_nop 7")
        while queue: pop()
        for t in (6, 7):
            for o in epi_ops(t): e(o[0])
            for h in range(2):
                a, b = p_store(t, h); e(a); e.vmem(b, ("pst", t))
    REMAP[LAST] = (NUNIT, APX_SLOT); REMAP[LAST + 1] = (LAST, LAST % 4)
    for fn in pre.get((LAST - 1, 33), []): fn()
    handover(LAST - 1, e.vm_count([("u", LAST), ("u", "apx")]))
    add(epi_ops(4), G(LAST, 4)); add(epi_ops(5), G(LAST, 4))
    A = appendix_parts()
    add(A["setup"], G(LAST, 6)); add([("s_nop 0", 1, "asetup")], G(LAST, 6)); queue[-1].deps = [(queue[-2], 1)]
    run(LAST, False)
    F = LAST + 1
    a_, w_ = fold_write_ops()
    def t2_write():
        drain_until("asetup")
        for s_ in a_: e(s_)
        e("s_nop 7")
        for s_ in w_: e.lds(s_, "fw2")
    PRE(F, 0, t2_write)
    PRE(F, 4, lambda: (e.wait(lg="fw2"), e("s_barrier")))
    for k_, (s_, tg) in enumerate(fold_reads()): P(F, 4 + k_, s_, ("lds", tg + ("a",)))
    PRE(F, 15, lambda: e.wait(lg=("fr", 3, 1, "a")))
    add(A["addr"], G(F, 12)); za2 = queue[-1]
    add(A["math"], G(F, 15)); add([("s_nop 0", 1, "aready")], G(F, 15)); queue[-1].deps = [(queue[-2], 1), (za2, 1)]
    def a_out():
        drain_until("aready")
        for s_ in A["stores"]: e(s_)
    PRE(F, 33, a_out)
    run(F, True)
    tail()
    for s_ in A["gate"]: e(s_)
    e("s_branch K1_fin")
    REMAP.clear()
    e("K1_tailN:")
    e.vm, e.lg, e.pending_stamp = sv[0], sv[1], sv[2]
    done.clear(); done.update(sv[3]); post.clear(); post.update(sv[4]); pre.clear(); pre.update(sv[5])
    for fn in pre.get((LAST - 1, 33), []): fn()
    handover(LAST - 1, e.vm_count([("u", LAST)]))
    add(epi_ops(4), G(LAST, 4)); add(epi_ops(5), G(LAST, 4))
    run(LAST, True)
    tail()
    for s_ in MT: e.vmem(s_, "touch")

APX_SLOT = 0
def appendix_dma(e):
    sb = APX_SLOT * SLOT
    e(f"s_cmp_gt_u32 s{sAPX}, 2\ns_cbranch_scc1 K1_apx_nodma")
    for s_ in T_dma_addr(None): e(s_)
    e(f"""
    s_cmp_eq_u32 s{sAPX}, 2
    s_cselect_b32 s{S_T}, s{S_GW}, s{S_SD}
    s_cselect_b32 s{S_T+1}, s{S_GW+1}, s{S_SD+1}
    s_mov_b32 s{sF}, {576 * ROWD}
    s_cselect_b32 s{S_T+2}, 1152, s{sF}
    s_cmp_eq_u32 s{sAPX}, 0
    s_cselect_b32 s{sCcol}, 8, 0
    s_mov_b32 s{sCS}, 1
    s_mul_i32 s{sTrow}, s{sCcol}, {32 * ROWD}
    v_add_u32 v21, {288 * ROWD}, v{vL16}
    """)
    u = U_T1
    for gi, (pre_, loads) in enumerate(dma_groups(u, slot=APX_SLOT)):
        for s_ in pre_: e(s_)
        e("s_nop 0")
        for q, s_ in enumerate(loads):
            special = (gi < 2 and q == 0) or gi == 2
            if not special: e(s_); continue
            lbl = f"K1_apx_n{gi}"
            e(f"s_cmp_eq_u32 s{sAPX}, 1\ns_cbranch_scc0 {lbl}")
            if gi == 2: e(f"s_cmp_eq_u32 s{sW}, 0\ns_cbranch_scc0 {lbl}")
            st = sT0 + gi
            e(f"s_mov_b64 exec, 0xff\nbuffer_load_dwordx4 v21, {SRD(S_CD)}, s83 offen lds" if False else "")
            e(f"s_mov_b64 exec, 0xff")
            e(f"buffer_load_dwordx4 v21, {SRD(S_CD)}, s{st} offen lds")
            e(f"s_not_b64 exec, exec")
            e(s_)
            e(f"s_mov_b64 exec, -1\ns_branch {lbl}_d\n{lbl}:")
            e(s_)
            e(f"{lbl}_d:")
    e("K1_apx_nodma:")

def appendix_parts():
    def L(txt): return [x.split(";")[0].strip() for x in txt.split("\n") if x.split(";")[0].strip() and not x.strip().startswith(";")]
    vS = 76; vE = 80
    setup = fold_setup_ops() + fold_mask_ops()
    setup += L(f"""
    s_and_b32 s{sE}, s{sW}, 1
    v_bfe_u32 v84, v{vL16}, 4, 5
    s_cmp_eq_u32 s{sAPX}, 1
    s_cselect_b32 s{sF}, 0, -1
    v_cmp_eq_u32 vcc, s{sF}, v84
    """)
    for g in range(4):
        if g in (1, 2): setup += L(f"s_cmp_eq_u32 s{sE}, 1\ns_cselect_b32 s{sF}, 0xbf800000, 1.0")
        else: setup += L(f"s_mov_b32 s{sF}, 1.0")
        setup += L(f"v_mov_b32 v{vS+g}, s{sSG+g}\nv_mov_b32 v85, s{sF}\nv_cndmask_b32 v{vS+g}, v{vS+g}, v85, vcc")
    setup += L(f"s_cmp_eq_u32 s{sE}, 0\ns_cselect_b32 s{sF}, 1.0, 0\nv_mov_b32 v85, s{sF}")
    setup += L(f"v_mov_b32 v{vE}, s{sEA}\nv_mov_b32 v{vE+1}, s{sEB}\nv_cndmask_b32 v{vE}, v{vE}, v85, vcc\nv_cndmask_b32 v{vE+1}, v{vE+1}, v85, vcc")
    setup += L(f"v_mov_b32 v86, 0\nv_mov_b32 v87, -1\nv_cndmask_b32 v86, v86, v87, vcc")
    addr = z_addr_ops()
    addr += L(f"""
    s_cmp_eq_u32 s{sAPX}, 2
    s_cselect_b32 s{sC}, 0x70000000, s{sC}
    v_and_b32 v88, 512, v{vL16}
    v_add_u32 v88, {9 * 33 * 1024}, v88
    v_mov_b32 v89, 0x7ff00000
    v_cmp_eq_u32 vcc, -1, v86
    s_nop 1
    v_cndmask_b32 v88, v89, v88, vcc
    s_sub_u32 s{sF}, s{sC}, {18 * 33 * 1024}
    """)
    math = fold_math([f"v{vS+g}" for g in range(4)])
    st = []
    st += L(f"v_cmp_eq_u32 vcc, -1, v86\nbuffer_store_dwordx4 {vr(vP)}, v88, {SRD(S_WS)}, s{sF} offen{ZF}\ns_nop 0")
    st += [f"v_cndmask_b32 v{vO+q}, v{vP+q}, v{vZERO}, vcc" for q in range(4)]
    st += [f"v_mov_b32 v{vO+4+q}, 0" for q in range(4)]
    st += L(f"buffer_store_dwordx4 {vr(vO)}, v{vFA}, {SRD(S_WS)}, s{sC} offen{ZF}\nbuffer_store_dwordx4 {vr(vO+4)}, v88, {SRD(S_WS)}, s{sC} offen{ZF}")
    st += [f"v_xor_b32 v{vM+q}, s{sD}, v{vP+q}" for q in range(4)]
    st += L(f"buffer_store_dwordx4 {vr(vM)}, v{vFB}, {SRD(S_WS)}, s{sC} offen{ZF}")
    st += L(f"""
    s_lshr_b32 s{sE}, s{sW}, 1
    s_or_b32 s{sE}, s{sE}, s{sI}
    s_cmp_eq_u32 s{sE}, 0
    s_cbranch_scc0 K1_a512
    v_mul_f32 v{vO}, v{vE}, v{vR + 16}
    v_fma_f32 v{vO}, v{vE+1}, v{vR + 24}, v{vO}
    v_cmp_gt_u32 vcc, 512, v{vL16}
    v_mov_b32 v{vO+1}, 0
    s_nop 0
    v_cndmask_b32 v{vO}, v{vO+1}, v{vO}, vcc
    v_cvt_pk_bf16_f32 v{vO+4}, v{vO}, v{vO+1}
    v_mov_b32 v{vO+5}, 0
    v_mov_b32 v{vO+6}, 0
    v_mov_b32 v{vO+7}, 0
    s_add_u32 s{sE}, s{sC}, {32 * 1024}
    s_add_u32 s{sF}, s{sF}, {32 * 1024}
    v_cmp_eq_u32 vcc, -1, v86
    s_nop 1
    v_cndmask_b32 v{vM}, v{vO+4}, v{vZERO}, vcc
    v_mov_b32 v{vM+1}, 0
    v_mov_b32 v{vM+2}, 0
    v_mov_b32 v{vM+3}, 0
    buffer_store_dwordx4 {vr(vO+4)}, v88, {SRD(S_WS)}, s{sF} offen{ZF}
    buffer_store_dwordx4 {vr(vM)}, v{vFA}, {SRD(S_WS)}, s{sE} offen{ZF}
    v_mov_b32 v{vR}, 0
    v_mov_b32 v{vR+1}, 0
    v_mov_b32 v{vR+2}, 0
    v_mov_b32 v{vR+3}, 0
    buffer_store_dwordx4 {vr(vR)}, v88, {SRD(S_WS)}, s{sE} offen{ZF}
    s_nop 1
    v_xor_b32 v{vO+4}, s{sD}, v{vO+4}
    s_nop 0
    buffer_store_dwordx4 {vr(vO+4)}, v{vFB}, {SRD(S_WS)}, s{sE} offen{ZF}
    """) + ["K1_a512:"]
    ge = Emit()
    ge(f"""
    s_cmp_eq_u32 s{sAPX}, 2
    s_cbranch_scc0 K1_fin
    v_bfe_u32 v18, v{vL16}, 4, 5
    v_lshrrev_b32 v19, 3, v18
    v_lshlrev_b32 v19, 10, v19
    v_bfe_u32 v20, v18, 2, 1
    v_lshl_add_u32 v19, v20, 9, v19
    v_and_b32 v20, 3, v18
    v_lshl_add_u32 v19, v20, 2, v19
    s_lshl_b32 s{sE}, s{sW}, 12
    s_add_u32 s{sE}, s{sE}, {FOLD}
    v_add_u32 v19, s{sE}, v19
    s_waitcnt lgkmcnt(0)
    ds_read_b32 v22, v19
    """)
    rowcalc(ge, 19, 18, sW)
    ge(f"""
    v_lshlrev_b32 v19, 2, v19
    v_mov_b32 v20, 0x7ff00000
    v_cmp_gt_u32 vcc, 512, v{vL16}
    s_waitcnt lgkmcnt(0)
    v_mul_f32 v21, {NLOG2E}, v22
    v_exp_f32 v21, v21
    v_cndmask_b32 v19, v20, v19, vcc
    v_add_f32 v21, 1.0, v21
    v_rcp_f32 v21, v21
    s_mov_b32 s{sE}, {WS_G}
    s_nop 0
    buffer_store_dword v21, v19, {SRD(S_WS)}, s{sE} offen{ZF}
    """)
    gate = [x.strip() for x in ge.l]
    return dict(setup=setup, addr=addr, math=math, stores=st, gate=gate)

def gen_k1(name="k1_kernel"):
    e = Emit()
    e.l.append(kbegin(name).rstrip("\n"))
    prologue(e)
    gen_main(e)
    e("K1_fin:")
    if DIAG: e("s_waitcnt lgkmcnt(0)"); settle(e); stamp(e, 40); e("s_waitcnt lgkmcnt(0)"); settle(e)
    e("s_waitcnt vmcnt(0)")
    if DIAG:
        stamp(e, 41); e("s_waitcnt lgkmcnt(0)"); settle(e)
        e(f"s_lshl_b32 s{sA}, s2, 2\ns_add_u32 s{sA}, s{sA}, s{sW}\ns_lshl_b32 s{sA}, s{sA}, 8\ns_add_u32 s{sA}, s{sA}, {WS_DIAG}")
        e(f"v_lshrrev_b32 v14, 2, v{vL16}")
        e(f"buffer_store_dword v{vDIAG}, v14, {SRD(S_WS)}, s{sA} offen")
        e("s_waitcnt vmcnt(0)")
    e("K1_end:")
    e("s_endpgm")
    for nm, srd_, so, test in (("K1_spin", S_WS, sOBp, f"s_cmp_ge_u32 s{sE}, 1"), ("K1_spin2", S_WS, sOBp, f"s_cmp_ge_u32 s{sE}, 2"), ("K1_spinc", S_DBG, sFoffP, f"s_bitcmp1_b32 s{sE}, s{sFbitP}")):
        e(f"""
        {nm}:
        s_mov_b32 s{sD}, 0
        {nm}_loop:
        s_sleep 4
        buffer_load_dword v{vPOLL}, v{vZERO}, {SRD(srd_)}, s{so} offen sc1
        s_waitcnt vmcnt(0)
        v_readfirstlane_b32 s{sE}, v{vPOLL}
        s_nop 3
        {test}
        s_cbranch_scc1 {nm}_done
        s_add_u32 s{sD}, s{sD}, 1
        s_cmp_lt_u32 s{sD}, 0x40000
        s_cbranch_scc1 {nm}_loop
        s_branch {nm}_done
        """)
    e("K1_codeend:")
    return e.text() + kdesc(name, 256, 252, 102)
if __name__ == "__main__":
    print(gen_k1())
```
